```python
import torch

def _softmax(x, axis=-1):
    return torch.softmax(x, dim=axis)
def _gelu(x):
    return torch.nn.functional.gelu(x, approximate="tanh")
def _silu(x):
    return torch.nn.functional.silu(x)
def _sigmoid(x):
    return torch.sigmoid(x)
def _layernorm(x, axis=-1, eps=1e-5):
    m = x.mean(dim=axis, keepdim=True)
    v = x.var(dim=axis, keepdim=True, unbiased=False)
    return (x - m) / torch.sqrt(v + eps)
def _scatter_add(tgt, idx, src, axis=0):
    return tgt.clone().index_add_(axis, idx, src)
def _segment_sum(src, seg, n):
    out = torch.zeros((n,) + src.shape[1:], dtype=src.dtype)
    return out.index_add_(0, seg, src)
def _pad(x, pw):
    flat = tuple(v for pair in reversed(pw) for v in pair)
    return torch.nn.functional.pad(x, flat)

kernel_name = 'parallel_sum__sliding_local_dilated__dense_activation_silu__prompt'

def setup_inputs():

    _w = (lambda a: (lambda t: t.to(torch.bfloat16) if t.is_floating_point() else t)(torch.as_tensor(a)))
    def _A_setup():
        B, S, D = 1, 2048, 512
        return {
            "x": _w((lambda *s: torch.randn(*s, dtype=torch.bfloat16) * 0.05)(B, S, D)),
            "wqkv": _w((lambda *s: torch.randn(*s, dtype=torch.bfloat16) * 0.05)(D, 3 * D)),
            "wo": _w((lambda *s: torch.randn(*s, dtype=torch.bfloat16) * 0.05)(D, D)),
        }
    _A_in = _A_setup()

    def _B_setup():
        B, S, D, F = 1, 2048, 512, 1792
        return {
            "x": _w((lambda *s: torch.randn(*s, dtype=torch.bfloat16) * 0.05)(B, S, D)),
            "w1": _w((lambda *s: torch.randn(*s, dtype=torch.bfloat16) * 0.8)(D, F) * (D ** -0.5)),
            "w2": _w((lambda *s: torch.randn(*s, dtype=torch.bfloat16) * 0.8)(F, D) * (F ** -0.5)),
        }
    _B_in = _B_setup()

    return {
        "A_x": _A_in["x"],
        "A_wqkv": _A_in["wqkv"],
        "A_wo": _A_in["wo"],
        "B_x": _B_in["x"],
        "B_w1": _B_in["w1"],
        "B_w2": _B_in["w2"],
    }

def reference(A_x, A_wqkv, A_wo, B_x, B_w1, B_w2):
    def _A_ref(x, wqkv, wo):
        B, S, D = x.shape
        H = 32; Dh = D // H
        W, dil = 8, 2
        qkv = (lambda x, *d: x.permute(*d))((x @ wqkv).reshape(B, S, 3, H, Dh), 2, 0, 3, 1, 4)
        q, k, v = qkv[0], qkv[1], qkv[2]
        scale = Dh ** -0.5
        pos = torch.arange(S)
        off = torch.arange(W) * dil
        idx = pos[:, None] - off[None, :]
        mask = idx >= 0
        idx_c = torch.where(mask, idx, 0).reshape(-1)
        kg = k[:, :, idx_c, :].reshape(B, H, S, W, Dh)
        vg = v[:, :, idx_c, :].reshape(B, H, S, W, Dh)
        logits = torch.einsum("bhsd,bhswd->bhsw", q, kg) * scale
        logits = torch.where(mask[None, None, :, :], logits, -1e9)
        attn = _softmax(logits, axis=-1)
        o = torch.einsum("bhsw,bhswd->bhsd", attn, vg)
        return (lambda x, *d: x.permute(*d))(o, 0, 2, 1, 3).reshape(B, S, D) @ wo

    def _B_ref(x, w1, w2):
        h = torch.einsum("bsd,df->bsf", x, w1)
        h = _silu(h)
        out = torch.einsum("bsf,fd->bsd", h, w2)
        return out

    x = A_x
    xn = _layernorm(x, axis=-1)
    return x + _A_ref(xn, A_wqkv, A_wo) + _B_ref(xn, B_w1, B_w2)
```

```python
NAME = "parallel_sum__sliding_local_dilated__dense_activation_silu__prompt"
HDR = """; Kernarg layout for this problem (72 bytes, ptrs only, base s[0:1]):
"""
class Asm:
    def __init__(self):
        self.lines = []
    def __call__(self, s):
        for l in s.split("\n"):
            l = l.strip()
            if l: self.lines.append("    " + l if not l.endswith(":") else l)
    def label(self, l): self.lines.append(l + ":")
    def text(self): return "\n".join(self.lines) + "\n"

def kernel_wrap(name, body, vgpr=256, sgpr=102, accum=256):
    return f""".globl {name}
.p2align 8
.type {name},@function
{name}:
{body}"""

def kd(name, vgpr=256, sgpr=102, accum=256):
    return f""".p2align 6
.amdhsa_kernel {name}
  .amdhsa_next_free_vgpr {vgpr}
  .amdhsa_next_free_sgpr {sgpr}
  .amdhsa_accum_offset {accum}
  .amdhsa_group_segment_fixed_size 0
  .amdhsa_kernarg_size 72
  .amdhsa_user_sgpr_count 2
  .amdhsa_user_sgpr_kernarg_segment_ptr 1
  .amdhsa_system_sgpr_workgroup_id_x 1
.end_amdhsa_kernel
"""

def single(body, grid, block, lds, vgpr=256, sgpr=102, accum=256):
    n = NAME + "_kernel"
    return (HDR + f"; @launch grid=({grid},1,1) block=({block},1,1) lds={lds}\n"
            + '.amdgcn_target "amdgcn-amd-amdhsa--gfx950"\n.text\n'
            + kernel_wrap(n, body) + '.section .rodata,"a"\n' + kd(n, vgpr, sgpr, accum))

def multi(kernels, launches):
    s = HDR
    for (n, g, b, l) in launches:
        s += f"; @launch kernel={n} grid=({g},1,1) block=({b},1,1) lds={l}\n"
    s += '.amdgcn_target "amdgcn-amd-amdhsa--gfx950"\n.text\n'
    for (n, body, v, sg, ac) in kernels:
        s += kernel_wrap(n, body)
    s += '.section .rodata,"a"\n'
    for (n, body, v, sg, ac) in kernels:
        s += kd(n, v, sg, ac)
    return s
```

```python
import re
TRANS = ("v_exp_f32", "v_log_f32", "v_rcp_f32", "v_rsq_f32", "v_sqrt_f32", "v_sin_f32", "v_cos_f32", "v_rcp_iflag_f32")
def regs(tok):
    tok = tok.strip()
    tok = tok.lstrip("-")
    m = re.fullmatch(r"(?:abs\()?\|?([vsa])\[(\d+):(\d+)\]\)?\|?", tok)
    if m: return {(m.group(1), i) for i in range(int(m.group(2)), int(m.group(3)) + 1)}
    m = re.fullmatch(r"(?:abs\()?\|?([vsa])(\d+)\)?\|?", tok)
    if m: return {(m.group(1), int(m.group(2)))}
    if tok in ("vcc", "vcc_lo", "vcc_hi"): return {("s", "vcc")}
    if tok in ("exec", "exec_lo", "exec_hi"): return {("s", "exec")}
    if tok == "m0": return {("s", "m0")}
    return set()
def split_ops(rest):
    ops = []; cur = ""; depth = 0
    for ch in rest:
        if ch in "[(": depth += 1
        if ch in "])": depth -= 1
        if ch == "," and depth == 0: ops.append(cur.strip()); cur = ""
        else: cur += ch
    mods = []
    if cur.strip():
        parts = cur.strip().split()
        ops.append(parts[0]); mods = parts[1:]
    return ops, mods
class I: pass
def parse(line):
    s = line.split(";")[0].strip()
    if not s or s.startswith(".") : return None
    if s.endswith(":"):
        i = I(); i.kind = "label"; i.name = s[:-1]; return i
    p = s.split(None, 1)
    op = p[0]; rest = p[1] if len(p) > 1 else ""
    ops, mods = split_ops(rest)
    i = I(); i.op = op; i.ops = ops; i.mods = mods; i.w = set(); i.r = set(); i.kind = "other"
    i.A = i.B = i.C = set(); i.dpp = any(m.startswith(("row_", "wave_", "quad_perm")) for m in mods)
    R = [regs(o) for o in ops]
    allr = lambda l: set().union(*l) if l else set()
    if op.startswith("v_mfma"):
        i.kind = "mfma"; i.w = R[0]; i.A = R[1]; i.B = R[2]; i.C = R[3]; i.r = R[1] | R[2] | R[3]
        i.passes = 8 if "32x32x16" in op else 4
    elif op.startswith("v_"):
        i.kind = "valu"
        if op.startswith(("v_permlane32_swap", "v_permlane16_swap")):
            i.w = R[0] | R[1]; i.r = R[0] | R[1]
        elif op.startswith(("v_add_co", "v_sub_co", "v_addc_co", "v_subb_co", "v_subrev_co")):
            i.w = R[0] | R[1]; i.r = allr(R[2:])
        else:
            i.w = R[0]; i.r = allr(R[1:])
            if op.startswith(("v_fmac", "v_dot2c", "v_writelane")) or i.dpp: i.r |= R[0]
    elif op.startswith("ds_"):
        i.kind = "ds"
        if op.startswith(("ds_read", "ds_bpermute", "ds_permute", "ds_swizzle")) or "_rtn" in op:
            i.w = R[0]; i.r = allr(R[1:])
        else: i.r = allr(R)
    elif op.startswith(("buffer_", "global_")):
        i.kind = "vmem"; i.lds = "lds" in mods
        if op.startswith(("buffer_wbl2", "buffer_inv")): pass
        elif "load" in op and not i.lds: i.w = R[0]; i.r = allr(R[1:])
        else:
            i.r = allr(R)
            if "atomic" in op and "sc0" in mods: i.w = R[0]
        i.widestore = ("store" in op) and (op.endswith("x4") or op.endswith("x3"))
        if i.widestore: i.data = R[0] if op.startswith("buffer_") else R[1]
    elif op.startswith("s_"):
        i.kind = "salu"
        if op.startswith(("s_cmp", "s_cbranch", "s_branch", "s_waitcnt", "s_barrier", "s_nop", "s_endpgm", "s_sleep", "s_setprio", "s_bitcmp")):
            i.r = allr(R)
        else:
            i.w = R[0] if R else set(); i.r = allr(R[1:])
            if "saveexec" in op: i.w |= {("s", "exec")}
    return i
def need(p, c):
    n = 0
    isv = lambda s: {x for x in s if x[0] in "va"}
    iss = lambda s: {x for x in s if x[0] == "s"}
    if p.kind == "valu":
        wv = isv(p.w); ws = iss(p.w)
        dot = p.op.startswith("v_dot")
        if c.kind == "mfma" and wv & c.r: n = max(n, 3 if dot else 2)
        if dot and c.kind in ("valu", "ds", "vmem") and wv & (c.r | c.w):
            same_c = (c.kind == "valu" and c.op == p.op and c.w == p.w and not (wv & (set().union(*[regs(o) for o in c.ops[1:3]]))))
            if not same_c: n = max(n, 3)
        if p.op.startswith(TRANS) and c.kind in ("valu", "ds", "vmem", "mfma") and wv & c.r: n = max(n, 1)
        if c.kind == "valu":
            if c.op.startswith(("v_readlane", "v_readfirstlane")) and wv & c.r: n = max(n, 1)
            if c.dpp and wv & c.r: n = max(n, 2)
            if c.op.startswith("v_permlane") and wv & c.r: n = max(n, 2)
            if ws & c.r: n = max(n, 4 if c.op.startswith(("v_readlane", "v_writelane")) else 2)
        if c.kind == "vmem" and ws & c.r: n = max(n, 5)
        if c.kind == "salu" and ws & c.r: n = max(n, 1)
    if p.kind == "mfma":
        big = {8: 12, 4: 8}[p.passes]; ovl = {8: 10, 4: 6}[p.passes]; war = {8: 7, 4: 3}[p.passes]
        if c.kind == "mfma":
            if p.w & (c.A | c.B): n = max(n, big)
            if p.w & c.C and not (c.C == p.w and c.passes == p.passes): n = max(n, ovl)
            if p.w & c.w and not (c.C == p.w and c.w == p.w): n = max(n, big)
        elif c.kind in ("valu", "ds", "vmem"):
            if p.w & (c.r | c.w): n = max(n, big)
            if p.C & c.w: n = max(n, war)
    if p.kind == "vmem" and getattr(p, "widestore", False):
        if p.data & c.w: n = max(n, 2)
    if p.kind == "salu" and ("s", "m0") in p.w and c.kind == "vmem" and getattr(c, "lds", False): n = max(n, 1)
    return n
MAXAGE = 14
def fix(lines):
    out = []; state = []
    snaps = {}; seen = set(); dead = False
    for line in lines:
        i = parse(line)
        if i is None: out.append(line); continue
        if i.kind == "label":
            seen.add(i.name)
            merged = [] if dead else state
            for sn in snaps.pop(i.name, []): merged = merged + sn
            state = merged; dead = False
            out.append(line); continue
        req = 0
        for p, age in state:
            req = max(req, need(p, i) - age)
        if req > 0:
            out.append(f"    s_nop {req-1}")
            state = [[p, a + req] for p, a in state]
        out.append(line)
        adv = 1
        if i.op == "s_nop": adv = int(i.ops[0], 0) + 1
        state = [[p, a + adv] for p, a in state if a + adv < MAXAGE]
        if i.kind in ("valu", "mfma") or getattr(i, "widestore", False) or (i.kind == "salu" and ("s", "m0") in i.w):
            state.append([i, 0])
        if i.op.startswith(("s_cbranch", "s_branch")):
            tgt = i.ops[0]
            if tgt in seen:
                for p, a in state:
                    if p.kind == "mfma": raise Exception("mfma pending at backward branch to " + tgt)
            else:
                snaps.setdefault(tgt, []).append([[p, a] for p, a in state])
            if i.op == "s_branch": dead = True; state = []
        if i.op == "s_endpgm": dead = True; state = []
    return out
```

```python
import sys, struct
from asmlib import *
import hazard

def f32(x): return "0x%08x" % struct.unpack("<I", struct.pack("<f", x))[0]
LOG2E = 1.4426950408889634

class Cnt:
    def __init__(self, a, name, mx): self.a, self.name, self.mx, self.q = a, name, mx, []
    def issue(self, tag): self.q.append(tag)
    def n_after(self, tag):
        idx = max(i for i, t in enumerate(self.q) if t == tag)
        return len(self.q) - idx - 1, idx
    def wait(self, tag):
        if tag not in self.q: return
        n, idx = self.n_after(tag)
        n = min(n, self.mx)
        self.a(f"s_waitcnt {self.name}({n})")
        self.q = self.q[len(self.q) - n:] if n else []
    def wait_all(self):
        self.a(f"s_waitcnt {self.name}(0)"); self.q = []

WS_H = 0
WS_RB2 = 144 * 2048
WS_STATS = 0x900000
WS_FLAGS = 0x910000
WS_SIZE = 0x1000000
SLOT = 32768
L_HALO = 131072
L_KV = 65536
KVS = 272
L_RING = 106496
L_CS = 155648
sX, sW, sWS, sW2, sWO, sOUT, sDBG = "s[8:11]", "s[12:15]", "s[16:19]", "s[20:23]", "s[24:27]", "s[28:31]", "s[32:35]"
s_w, s_g, s_role, s_r, s_c, s_type = "s54", "s55", "s56", "s57", "s58", "s59"
s_stride, s_seq, s_seqR, s_str64, s_str4 = "s60", "s61", "s62", "s63", "s64"
s_w2k, s_w1k = "s65", "s66"
s_t0, s_t1, s_t2, s_t3 = "s67", "s68", "s69", "s70"
s_hst = "s71"
s_halo = "s72"
s_cks = "s73"
s_ones = "s74"
s_selL, s_selH = "s75", "s76"
s_rb2, s_cb = "s77", "s78"
s_hld, s_wq, s_oq, s_ring = "s79", "s80", "s81", "s82"
s_nonce = "s83"

def srd(a, d, lo, hi, size):
    a(f"s_mov_b32 s{d}, s{lo}\ns_mov_b32 s{d+1}, s{hi}\ns_mov_b32 s{d+2}, {hex(size)}\ns_mov_b32 s{d+3}, 0x20000")

def common_prologue(a, done):
    a(f"""
    s_cmp_ge_u32 s2, 256
    s_cbranch_scc1 {done}
    s_load_dwordx16 s[36:51], s[0:1], 0
    s_load_dwordx2 s[52:53], s[0:1], 64
    v_lshrrev_b32 v2, 6, v0
    v_and_b32 v1, 63, v0
    v_readfirstlane_b32 {s_w}, v2
    s_and_b32 {s_g}, {s_w}, 3
    s_lshr_b32 {s_role}, {s_w}, 2
    s_lshl_b32 {s_w2k}, {s_w}, 11
    s_lshl_b32 {s_w1k}, {s_w}, 10
    s_bfe_u32 {s_r}, s2, 0x10002
    s_lshl_b32 {s_r}, {s_r}, 3
    s_bfe_u32 s3, s2, 0x30003
    s_add_u32 {s_r}, {s_r}, s3
    s_and_b32 {s_c}, s2, 3
    s_lshl_b32 {s_c}, {s_c}, 1
    s_bfe_u32 s3, s2, 0x10006
    s_add_u32 {s_c}, {s_c}, s3
    s_lshr_b32 {s_type}, s2, 7
    s_and_b32 {s_rb2}, s2, 7
    s_lshl_b32 {s_rb2}, {s_rb2}, 2
    s_bfe_u32 s3, s2, 0x20003
    s_add_u32 {s_rb2}, {s_rb2}, s3
    s_lshr_b32 {s_cb}, s2, 5
    s_waitcnt lgkmcnt(0)
    """)
    srd(a, 8, 36, 37, 2048*512*2)
    srd(a, 16, 52, 53, WS_SIZE)

def wave_reduce(a, v, sdst):
    for sh in (1, 2, 4, 8):
        a(f"v_add_f32_dpp {v}, {v}, {v} row_shr:{sh} row_mask:0xf bank_mask:0xf bound_ctrl:0")
    a(f"v_add_f32_dpp {v}, {v}, {v} row_bcast:15 row_mask:0xa bank_mask:0xf")
    a(f"v_add_f32_dpp {v}, {v}, {v} row_bcast:31 row_mask:0xc bank_mask:0xf")
    a(f"v_readlane_b32 {sdst}, {v}, 63")

def stats_load(a, b):
    a(f"""
    s_lshl_b32 {s_t0}, {s_r}, 7
    s_lshl_b32 {s_t1}, {s_type}, 6
    s_add_u32 {s_t0}, {s_t0}, {s_t1}
    s_lshl_b32 {s_t1}, {s_c}, 3
    s_add_u32 {s_t0}, {s_t0}, {s_t1}
    s_add_u32 s84, {s_t0}, {s_w}
    s_lshl_b32 {s_t0}, s84, 10
    v_lshlrev_b32 v2, 4, v1
    buffer_load_dwordx4 v[{b}:{b+3}], v2, {sX}, {s_t0} offen
    """)

def stats_compute(a, b):
    u = b + 4
    for i in range(4):
        a(f"v_lshlrev_b32 v{u+2*i}, 16, v{b+i}\nv_and_b32 v{u+2*i+1}, 0xffff0000, v{b+i}")
    a(f"""
    v_add_f32 v{b}, v{u}, v{u+1}
    v_add_f32 v{b+1}, v{u+2}, v{u+3}
    v_add_f32 v{b+2}, v{u+4}, v{u+5}
    v_add_f32 v{b+3}, v{u+6}, v{u+7}
    v_add_f32 v{b}, v{b}, v{b+1}
    v_add_f32 v{b+2}, v{b+2}, v{b+3}
    v_add_f32 v{b}, v{b}, v{b+2}
    """)
    wave_reduce(a, f"v{b}", s_t0)
    a(f"v_mov_b32 v{b+1}, {f32(1.0/512)}\nv_mul_f32 v{b+2}, {s_t0}, v{b+1}")
    for i in range(8): a(f"v_sub_f32 v{u+i}, v{u+i}, v{b+2}")
    a(f"v_mul_f32 v{b}, v{u}, v{u}\nv_mul_f32 v{b+3}, v{u+1}, v{u+1}")
    for i in range(2, 8, 2): a(f"v_fmac_f32 v{b}, v{u+i}, v{u+i}\nv_fmac_f32 v{b+3}, v{u+i+1}, v{u+i+1}")
    a(f"v_add_f32 v{b}, v{b}, v{b+3}")
    wave_reduce(a, f"v{b}", s_t0)
    a(f"""
    v_mul_f32 v{b}, {s_t0}, v{b+1}
    v_cvt_pk_bf16_f32 v{b}, v{b}, v{b}
    v_and_b32 v{b}, 0xffff0000, v{b}
    v_add_f32 v{b}, {f32(1e-5)}, v{b}
    v_cvt_pk_bf16_f32 v{b}, v{b}, v{b}
    v_and_b32 v{b}, 0xffff0000, v{b}
    v_sqrt_f32 v{b}, v{b}
    v_cvt_pk_bf16_f32 v{b+12}, v{b+2}, v{b}
    """)

def stats_store(a, b):
    a(f"""
    v_mov_b32 v{b+13}, {s_nonce}
    s_lshl_b32 {s_t0}, s84, 3
    s_add_u32 {s_t0}, {s_t0}, {hex(WS_STATS)}
    v_mov_b32 v{b+14}, 0
    s_mov_b64 exec, 1
    buffer_store_dwordx2 v[{b+12}:{b+13}], v{b+14}, {sWS}, {s_t0} offen sc1
    s_mov_b64 exec, -1
    """)

vXD0, vXD1, vWD, vWD2, vWD3 = 3, 4, 5, 6, 7
vXR = [[8, 9, 10, 11], [12, 13, 14, 15]]
vWR = [[16, 17], [18, 19]]
vHR = [20, 21, 22, 23]
vL2R = [24, 25]; vL3R = 26
vCS = [27, 28, 29]
vINU = 30
vST = 32
vSTH = 34
vNM = 36
vS, vC1, vRS = 40, 41, 42
vLN16 = 43
vT = 44
vWF = 56
vHACC = 80
vACC = [96, 112]
vXF = 128
vHF = [48, 52]

def vr(b, n): return f"v[{b}:{b+n-1}]"

def lane_decomp(a):
    a(f"""
    v_lshlrev_b32 v{vLN16}, 4, v1
    v_bfe_u32 v{vT}, v1, 2, 2
    v_lshrrev_b32 v{vT+1}, 5, v1
    v_and_b32 v{vINU}, 1, v1
    v_lshlrev_b32 v{vINU}, 5, v{vINU}
    v_and_b32 v{vT+2}, 16, v1
    v_or_b32 v{vINU}, v{vINU}, v{vT+2}
    v_and_b32 v{vT+2}, 2, v1
    v_lshl_or_b32 v{vINU}, v{vT+2}, 2, v{vINU}
    """)

def dma(a, vm, tag, voff, srd_, soff, m0base, m0imm):
    a(f"s_add_u32 m0, {m0base}, {m0imm}")
    a(f"buffer_load_dwordx4 v{voff}, {srd_}, {soff} offen lds")
    vm.issue(tag)

def issue_unit(a, vm, u, att):
    if u < 8:
        sl = (u % 4) * SLOT
        a(f"""
        s_bfe_u32 {s_t0}, {s_seq}, {hex(0x40000 + 4*u)}
        s_lshl_b32 {s_t1}, {s_t0}, 7
        s_mul_i32 {s_t2}, {s_t0}, {s_str64}
        s_add_u32 {s_t3}, {s_t2}, {s_str4}
        """)
        dma(a, vm, ("U", u), vXD0, sX, s_t1, s_w2k, sl)
        dma(a, vm, ("U", u), vXD1, sX, s_t1, s_w2k, sl + 1024)
        dma(a, vm, ("U", u), vWD, sW, s_t2, s_w2k, sl + 16384)
        dma(a, vm, ("U", u), vWD, sW, s_t3, s_w2k, sl + 16384 + 1024)
    elif u in (8, 9):
        for s in range(4*(u-8), 4*(u-8)+4):
            a(f"s_bfe_u32 {s_t0}, {s_seq}, {hex(0x40000 + 4*s)}\ns_mul_i32 {s_t2}, {s_t0}, {s_str64}")
            dma(a, vm, ("U", u), vWD2, sW, s_t2, s_w1k, s * 8192)
    elif u == 10 and not att:
        for e in range(4):
            a(f"s_bfe_u32 {s_t0}, {s_seqR}, {hex(0x40000 + 8*e)}\ns_mul_i32 {s_t2}, {s_t0}, {s_str64}")
            dma(a, vm, ("U", u), vWD3, sW, s_t2, s_w1k, 65536 + e * 8192)

def cs_write(a, acc, tile_imm=None, tile_v=None, t=vT):
    a(f"""
    v_cvt_pk_bf16_f32 v{t}, v{acc}, v{acc}
    v_and_b32 v{t+1}, 0xffff0000, v{t}
    v_sub_f32 v{t+1}, v{acc}, v{t+1}
    v_cvt_pk_bf16_f32 v{t}, v{acc}, v{t+1}
    """)

def silu_ops(acc, t, store):
    ops = []
    for h in range(2):
        b = acc + 8*h
        for j in range(8): ops.append(f"v_mul_f32 v{t+j}, v{b+j}, v{vC1}")
        for j in range(8): ops.append(f"v_exp_f32 v{t+j}, v{t+j}")
        for j in range(8): ops.append(f"v_fma_f32 v{t+j}, v{t+j}, v{vS}, v{vS}")
        for j in range(8): ops.append(f"v_rcp_f32 v{t+j}, v{t+j}")
        for j in range(8): ops.append(f"v_mul_f32 v{b+j}, v{b+j}, v{t+j}")
        for j in range(4): ops.append(f"v_cvt_pk_bf16_f32 v{b+j}, v{b+2*j}, v{b+2*j+1}")
        ops.append(store(b, h))
    return ops

def phase1(a, att, fused, P):
    vm = Cnt(a, "vmcnt", 63); lg = Cnt(a, "lgkmcnt", 15)
    stride = 3072 if att else 3584
    if att: srd(a, 12, 38, 39, 512*1536*2)
    else: srd(a, 12, 44, 45, 512*1792*2)
    a(f"""
    s_movk_i32 {s_stride}, {stride}
    s_mov_b32 {s_str64}, {stride*64}
    s_movk_i32 {s_str4}, {stride*4}
    s_mov_b32 {s_seq}, 0x76543210
    s_lshl_b32 {s_t0}, {s_role}, 2
    s_lshr_b32 {s_seqR}, {s_seq}, {s_t0}
    s_mov_b32 {s_ones}, 0x3f803f80
    """)
    a(f"""
    v_lshrrev_b32 v{vT}, 3, v1
    v_lshrrev_b32 v{vT+1}, 4, v1
    v_and_b32 v{vT+2}, 7, v1
    v_xor_b32 v{vT+2}, v{vT+2}, v{vT+1}
    v_lshlrev_b32 v{vT+2}, 4, v{vT+2}
    v_lshl_or_b32 v{vT+2}, v{vT}, 10, v{vT+2}
    s_lshl_b32 {s_t0}, {s_r}, 17
    s_lshl_b32 {s_t1}, {s_w}, 14
    s_add_u32 {s_t1}, {s_t1}, {s_t0}
    v_add_u32 v{vXD0}, {s_t1}, v{vT+2}
    v_add_u32 v{vXD1}, 0x2000, v{vXD0}
    v_xor_b32 v{vXD1}, 64, v{vXD1}
    """)
    if att:
        a(f"""
        s_sub_u32 {s_t0}, {s_t0}, 0x4000
        v_add_u32 v{vT+3}, {s_t0}, v{vT+2}
        v_add_u32 v{vT+4}, 0x2000, v{vT+3}
        v_xor_b32 v{vT+4}, 64, v{vT+4}
        s_lshl_b32 {s_t1}, {s_w}, 2
        s_lshr_b32 {s_t1}, {s_seq}, {s_t1}
        s_and_b32 {s_t1}, {s_t1}, 15
        s_lshl_b32 {s_t1}, {s_t1}, 7
        """)
        dma(a, vm, ("U", 0), vT+3, sX, s_t1, s_w2k, L_HALO)
        dma(a, vm, ("U", 0), vT+4, sX, s_t1, s_w2k, L_HALO + 1024)
    a(f"""
    v_bfe_u32 v{vT+2}, v1, 2, 2
    v_xor_b32 v{vT+2}, v{vT+2}, v{vT+1}
    v_and_b32 v{vT+5}, 3, v1
    v_lshlrev_b32 v{vT+5}, 4, v{vT+5}
    s_lshl_b32 {s_t0}, {s_w}, 3
    v_add_u32 v{vT+6}, {s_t0}, v{vT+1}
    v_mul_u32_u24 v{vWD}, {s_stride}, v{vT+6}
    """)
    if att:
        a(f"""
        v_and_b32 v{vT+6}, 1, v{vT+2}
        v_lshrrev_b32 v{vT+2}, 1, v{vT+2}
        v_lshlrev_b32 v{vT+2}, 10, v{vT+2}
        v_lshl_or_b32 v{vT+2}, v{vT+6}, 6, v{vT+2}
        s_lshl_b32 {s_t2}, {s_c}, 7
        s_add_u32 {s_t1}, {s_t2}, 1024
        """)
    else:
        a(f"""
        v_lshlrev_b32 v{vT+2}, 6, v{vT+2}
        s_mul_i32 {s_t3}, {s_c}, 448
        s_and_b32 {s_t0}, {s_c}, 1
        s_lshl_b32 {s_t1}, {s_t0}, 6
        s_add_u32 {s_t1}, {s_t1}, {s_t3}
        s_add_u32 {s_t2}, {s_t1}, 256
        s_xor_b32 {s_t0}, {s_t0}, 1
        s_mul_i32 {s_t0}, {s_t0}, 384
        s_add_u32 {s_t3}, {s_t3}, {s_t0}
        """)
    a(f"""
    v_add3_u32 v{vWD}, v{vWD}, v{vT+2}, v{vT+5}
    v_add_u32 v{vWD}, {s_t1}, v{vWD}
    s_lshl_b32 {s_t0}, {s_w}, 3
    v_add_u32 v{vT+6}, {s_t0}, v{vT}
    v_mul_u32_u24 v{vWD2}, {s_stride}, v{vT+6}
    v_lshrrev_b32 v{vT+6}, 2, v1
    v_xor_b32 v{vT+7}, v{vT+6}, v{vT+1}
    v_and_b32 v{vT+7}, 1, v{vT+7}
    v_lshl_or_b32 v{vT+7}, v{vT+7}, 6, v{vT+5}
    v_add3_u32 v{vWD2}, v{vWD2}, v{vT+7}, {s_t2}
    """)
    if not att:
        a(f"""
        s_lshl_b32 {s_t0}, {s_g}, 4
        v_add_u32 v{vT+6}, {s_t0}, v{vT+6}
        v_mul_u32_u24 v{vWD3}, {s_stride}, v{vT+6}
        v_add3_u32 v{vWD3}, v{vWD3}, v{vT+5}, {s_t3}
        """)
    issue_unit(a, vm, 0, att)
    issue_unit(a, vm, 1, att)
    lane_decomp(a)
    r4, hf = vT, vT+1
    a(f"""
    v_and_b32 v{vT+2}, 31, v1
    v_bfe_u32 v{vT+3}, v1, 1, 3
    v_xor_b32 v{vT+3}, v{vT+3}, v{hf}
    s_lshl_b32 {s_t0}, {s_g}, 12
    v_lshl_add_u32 v{vT+4}, v{vT+2}, 7, {s_t0}
    """)
    for ks in range(4):
        a(f"""
        v_xor_b32 v{vT+5}, {2*ks}, v{vT+3}
        v_lshl_add_u32 v{vXR[0][ks]}, v{vT+5}, 4, v{vT+4}
        v_add_u32 v{vXR[1][ks]}, 0x10000, v{vXR[0][ks]}
        """)
        if att:
            a(f"""
            v_and_b32 v{vT+6}, 15, v1
            v_lshlrev_b32 v{vT+6}, 7, v{vT+6}
            v_lshl_add_u32 v{vT+6}, v{vT+5}, 4, v{vT+6}
            v_add_u32 v{vHR[ks]}, {hex(L_HALO)}, v{vT+6}
            """)
    if att:
        a(f"""
        s_and_b32 {s_t0}, {s_g}, 1
        s_lshl_b32 {s_t0}, {s_t0}, 1
        s_add_u32 s85, {s_role}, {s_t0}
        s_xor_b32 s86, s85, 2
        s_lshr_b32 {s_t0}, {s_g}, 1
        s_cmp_eq_u32 {s_t0}, {s_role}
        s_cselect_b32 {s_halo}, 1, 0
        """)
    else:
        a(f"s_lshl_b32 s85, {s_role}, 1\ns_add_u32 s86, s85, 1")
    a(f"""
    s_lshl_b32 {s_t0}, {s_role}, 1
    s_add_u32 {s_cks}, {s_g}, {s_t0}
    s_and_b32 {s_cks}, {s_cks}, 3
    v_lshl_add_u32 v{vT+5}, v{hf}, 3, v{r4}
    v_lshl_add_u32 v{vT+6}, v{vT+5}, 8, v{vINU}
    v_add_u32 v{vT+6}, 0x4000, v{vT+6}
    """)
    for sg, sreg in enumerate(("s85", "s86")):
        a(f"""
        v_xor_b32 v{vT+7}, {sreg}, v{r4}
        v_lshl_add_u32 v{vWR[0][sg]}, v{vT+7}, 6, v{vT+6}
        v_add_u32 v{vWR[1][sg]}, 0x10000, v{vWR[0][sg]}
        """)
    a(f"""
    v_lshl_add_u32 v{vT+6}, v{vT+5}, 7, v{vINU}
    v_lshrrev_b32 v{vT+7}, 1, v{r4}
    v_lshl_add_u32 v{vL2R[0]}, v{vT+7}, 6, v{vT+6}
    v_xor_b32 v{vL2R[1]}, 64, v{vL2R[0]}
    v_lshl_add_u32 v{vL3R}, v{vT+5}, 6, v{vINU}
    v_add_u32 v{vL3R}, 0x10000, v{vL3R}
    v_mov_b32 v{vCS[0]}, 0
    v_mov_b32 v{vCS[1]}, 0
    """)
    a(f"""
    s_lshl_b32 {s_t0}, {s_r}, 1
    s_lshr_b32 {s_t1}, {s_g}, 1
    s_add_u32 {s_t0}, {s_t0}, {s_t1}
    s_mul_i32 {s_hst}, {s_t0}, {WS_RB2}
    s_lshr_b32 {s_t1}, {s_c}, 1
    s_mul_i32 {s_t1}, {s_t1}, {36*2048}
    s_add_u32 {s_hst}, {s_hst}, {s_t1}
    s_and_b32 {s_t1}, {s_g}, 1
    s_lshl_b32 {s_t1}, {s_t1}, 10
    s_add_u32 {s_hst}, {s_hst}, {s_t1}
    s_and_b32 s87, {s_c}, 1
    """)

    def stats_fetch():
        a(f"""
        v_and_b32 v{vST}, 31, v1
        v_lshlrev_b32 v{vST}, 3, v{vST}
        s_lshl_b32 {s_t0}, {s_r}, 10
        s_lshl_b32 {s_t1}, {s_g}, 8
        s_add_u32 {s_t1}, {s_t1}, {s_t0}
        s_add_u32 {s_t1}, {s_t1}, {hex(WS_STATS)}
        buffer_load_dwordx2 {vr(vST,2)}, v{vST}, {sWS}, {s_t1} offen sc1
        """)
        vm.issue("ST")
        if att:
            a(f"""
            v_and_b32 v{vSTH}, 15, v1
            v_lshlrev_b32 v{vSTH}, 3, v{vSTH}
            s_max_u32 {s_t0}, {s_t0}, 128
            s_add_u32 {s_t0}, {s_t0}, {hex(WS_STATS - 128)}
            buffer_load_dwordx2 {vr(vSTH,2)}, v{vSTH}, {sWS}, {s_t0} offen sc1
            """)
            vm.issue("ST")

    HB = [48, 52, 44]
    def reads(t):
        s, ks = divmod(t, 4)
        st = (s % 4) // 2; sl = (s % 2) * SLOT
        if att:
            a(f"""
            s_cbranch_scc0 {P}nh{t}
            ds_read_b128 {vr(HB[t%3],4)}, v{vHR[ks]} offset:{s*2048}
            {P}nh{t}:
            """)
        a(f"ds_read_b128 {vr(vXF+4*t,4)}, v{vXR[st][ks]} offset:{sl}"); lg.issue(("R", t))
        for sg in range(2):
            for b in range(2):
                d = vWF + (t % 3)*8 + sg*4 + 2*b
                a(f"ds_read_b64_tr_b16 {vr(d,2)}, v{vWR[st][sg]} offset:{sl + (16*ks+4*b)*256}"); lg.issue(("R", t))
    def barrier_stage(s):
        vm.wait(("U", s))
        a("s_barrier")
        issue_unit(a, vm, s + 2, att)
        if s == 5: stats_fetch()
    def setscc():
        if att: a(f"s_cmp_eq_u32 {s_halo}, 1")
    barrier_stage(0)
    setscc(); reads(0); reads(1)
    for t in range(32):
        s, ks = divmod(t, 4)
        if t + 2 < 32:
            if (t + 2) % 4 == 0: barrier_stage((t + 2) // 4)
            setscc(); reads(t + 2)
        lg.wait(("R", t))
        for sg in range(2):
            w = vWF + (t % 3)*8 + sg*4
            c = "0" if t == 0 else vr(vACC[sg], 16)
            a(f"v_mfma_f32_32x32x16_bf16 {vr(vACC[sg],16)}, {vr(w,4)}, {vr(vXF+4*t,4)}, {c}")
        if att:
            w = vWF + (t % 3)*8
            c = "0" if t == 0 else vr(vHACC, 16)
            setscc()
            a(f"""
            s_cbranch_scc0 {P}nm{t}
            v_mfma_f32_32x32x16_bf16 {vr(vHACC,16)}, {vr(w,4)}, {vr(HB[t%3],4)}, {c}
            {P}nm{t}:
            """)
        a(f"s_cmp_eq_u32 {s_cks}, {ks}\ns_cbranch_scc0 {P}nc{t}")
        for i in range(4):
            for sg in range(2):
                a(f"v_dot2c_f32_bf16 v{vCS[sg]}, {s_ones}, v{vWF + (t%3)*8 + sg*4 + i}")
        a(f"{P}nc{t}:")
    a(f"""
    s_lshl_b32 {s_t0}, {s_g}, 2
    v_add_u32 v{vT+3}, {s_t0}, v{vLN16}
    s_lshl_b32 {s_t0}, s85, 10
    s_lshl_b32 {s_t1}, s86, 10
    v_add_u32 v{vT+4}, {s_t0}, v{vT+3}
    v_add_u32 v{vT+5}, {s_t1}, v{vT+3}
    v_add_u32 v{vT+6}, {s_t0}, v{vLN16}
    v_add_u32 v{vT+7}, {s_t1}, v{vLN16}
    v_add_u32 v{vT+4}, 0x20000, v{vT+4}
    v_add_u32 v{vT+5}, 0x20000, v{vT+5}
    v_add_u32 v{vT+6}, 0x20000, v{vT+6}
    v_add_u32 v{vT+7}, 0x20000, v{vT+7}
    """)
    CSO = L_CS - 0x20000
    for sg in range(2):
        cs_write(a, vCS[sg])
        a(f"ds_write_b32 v{vT+4+sg}, v{vT} offset:{CSO}")
    vm.wait("ST")
    def derive(src, nm, rs):
        a(f"""
        v_and_b32 v{nm}, 0xffff, v{src}
        v_xor_b32 v{nm}, 0x8000, v{nm}
        v_lshl_or_b32 v{nm}, v{nm}, 16, v{nm}
        v_mov_b32 v{nm+1}, v{nm}
        v_mov_b32 v{nm+2}, v{nm}
        v_mov_b32 v{nm+3}, v{nm}
        v_and_b32 v{src}, 0xffff0000, v{src}
        v_rcp_f32 v{rs}, v{src}
        """)
    derive(vST, vNM, vRS)
    a(f"v_mov_b32 v{vS}, v{vST}")
    if att:
        derive(vSTH, vWF+16, vSTH+1)
        a(f"v_mul_f32 v{vC1}, {f32(0.25*LOG2E)}, v{vRS}")
    else:
        a(f"v_mul_f32 v{vC1}, {f32(-LOG2E)}, v{vRS}")
    lg.wait_all()
    a("s_barrier")
    issue_unit(a, vm, 10, att)
    for sg in range(2):
        a(f"ds_read_b128 {vr(vWF+4*sg,4)}, v{vT+6+sg} offset:{CSO}")
    lg.wait_all()
    for sg in range(2):
        a(f"v_mfma_f32_32x32x16_bf16 {vr(vACC[sg],16)}, {vr(vWF+4*sg,4)}, {vr(vNM,4)}, {vr(vACC[sg],16)}")
    if att:
        setscc()
        a(f"""
        s_cbranch_scc0 {P}nmx
        v_mfma_f32_32x32x16_bf16 {vr(vHACC,16)}, {vr(vWF,4)}, {vr(vWF+16,4)}, {vr(vHACC,16)}
        {P}nmx:
        """)
    def hstore(soff):
        def st(b, h):
            vm.issue("HS")
            return f"buffer_store_dwordx4 {vr(b,4)}, v{vLN16}, {sWS}, {soff} offen offset:{h*2048} sc1"
        return st
    if not att:
        for sg, sreg in enumerate(("s85", "s86")):
            a(f"""
            s_lshl_b32 {s_t0}, s87, 14
            s_lshl_b32 {s_t1}, {sreg}, 12
            s_add_u32 {s_t0}, {s_t0}, {s_t1}
            s_add_u32 s88, {s_t0}, {s_hst}
            """)
            for op in silu_ops(vACC[sg], vT, hstore("s88")): a(op)
    else:
        a(f"""
        v_and_b32 v{vT}, 31, v1
        s_lshl_b32 {s_t0}, {s_g}, 5
        s_add_u32 {s_t0}, {s_t0}, 16
        v_add_u32 v{vT}, {s_t0}, v{vT}
        v_mul_u32_u24 v{vT}, {KVS}, v{vT}
        v_and_b32 v{vT+1}, 32, v1
        v_add_u32 v{vT+1}, {hex(L_KV)}, v{vT+1}
        v_add_u32 v{vT}, v{vT}, v{vT+1}
        s_lshl_b32 {s_t0}, s85, 6
        s_lshl_b32 {s_t1}, s86, 6
        v_add_u32 v{vT+2}, {s_t0}, v{vT}
        v_add_u32 v{vT+3}, {s_t1}, v{vT}
        v_and_b32 v{vT+4}, 15, v1
        v_mul_u32_u24 v{vT+4}, {KVS}, v{vT+4}
        v_add3_u32 v{vT+4}, v{vT+4}, v{vT+1}, {s_t0}
        """)
        def kvout(acc, rs, addr):
            for j in range(16): a(f"v_mul_f32 v{acc+j}, v{acc+j}, v{rs}")
            for j in range(8): a(f"v_cvt_pk_bf16_f32 v{acc+j}, v{acc+2*j}, v{acc+2*j+1}")
            a(f"ds_write_b128 v{addr}, {vr(acc,4)}\nds_write_b128 v{addr}, {vr(acc+4,4)} offset:16")
        kvout(vACC[0], vRS, vT+2); kvout(vACC[1], vRS, vT+3)
        setscc()
        a(f"s_cbranch_scc0 {P}nkh")
        kvout(vHACC, vSTH+1, vT+4)
        a(f"{P}nkh:")
        lg.wait_all()
    if att: vm.wait(("U", 9))
    else: vm.wait(("U", 10))
    a("s_barrier")
    a(f"s_cmp_eq_u32 {s_role}, 0\ns_cbranch_scc1 {P}A")
    late = [(vL2R[0], 128), (vL2R[1], 128)] + ([] if att else [(vL3R, 64)])
    a(f"""
    s_lshl_b32 {s_t0}, {s_g}, 2
    v_add_u32 v{vT+3}, {s_t0}, v{vLN16}
    v_add_u32 v{vT+3}, 0x20000, v{vT+3}
    """)
    for li, (ar, rb) in enumerate(late):
        a(f"s_mul_i32 {s_t0}, {s_g}, {128*rb}\nv_add_u32 v{vT+4}, {s_t0}, v{ar}")
        base = vXF + 32*li
        for k in range(16):
            t, b = divmod(k, 2)
            a(f"ds_read_b64_tr_b16 {vr(base+2*k,2)}, v{vT+4} offset:{(16*t+4*b)*rb}")
            if k == 7 or k == 15: a("s_waitcnt lgkmcnt(8)" if False else "")
        a(f"v_mov_b32 v{vCS[li]}, 0")
        a("s_waitcnt lgkmcnt(0)")
    for li, (ar, rb) in enumerate(late):
        base = vXF + 32*li
        for k in range(32): a(f"v_dot2c_f32_bf16 v{vCS[li]}, {s_ones}, v{base+k}")
    for li in range(len(late)):
        cs_write(a, vCS[li])
        a(f"ds_write_b32 v{vT+3}, v{vT} offset:{CSO + (4+li)*1024}")
    a("s_waitcnt lgkmcnt(0)\ns_barrier")
    if fused: a(f"s_branch PH2")
    else: a("s_endpgm")
    a(f"{P}A:")
    lg.q = []
    a(f"v_add_u32 v{vINU}, 0x20000, v{vLN16}")
    if not att:
        accs = [vHACC, vACC[0], vACC[1]]
        fill = []
        def chain_reads(li, t):
            ar, rb = late[li]
            n = li*32 + t
            for b in range(2):
                d = vWF + (n % 4)*4 + 2*b
                a(f"ds_read_b64_tr_b16 {vr(d,2)}, v{ar} offset:{(16*t+4*b)*rb}"); lg.issue(("L", n))
        for n in range(3): chain_reads(0, n)
        for li in range(3):
            for t in range(32):
                n = li*32 + t
                if n + 3 < 96: chain_reads((n+3)//32, (n+3) % 32)
                if n == 14: a("s_barrier")
                if t == 26:
                    a(f"ds_read_b128 {vr(vWF+16,4)}, v{vINU} offset:{CSO + (4+li)*1024}"); lg.issue(("L", n+3))
                lg.wait(("L", n))
                c = "0" if t == 0 else vr(accs[li], 16)
                a(f"v_mfma_f32_32x32x16_bf16 {vr(accs[li],16)}, {vr(vWF+(n%4)*4,4)}, {vr(vXF+4*t,4)}, {c}")
                if t >= 2:
                    for _ in range(4):
                        if fill: a(fill.pop(0))
            lg.wait(("L", li*32+29))
            a(f"v_mfma_f32_32x32x16_bf16 {vr(accs[li],16)}, {vr(vWF+16,4)}, {vr(vNM,4)}, {vr(accs[li],16)}")
            assert not fill
            fill = [f"s_lshl_b32 {s_t0}, s87, 12", f"s_add_u32 {s_t0}, {s_t0}, {(16+4*li)*2048}", f"s_add_u32 s88, {s_t0}, {s_hst}"]
            fill += silu_ops(accs[li], vT, hstore("s88"))
        for op in fill: a(op)
        a("s_endpgm")
    else:
        def q_reads(t):
            for sg in range(2):
                for b in range(2):
                    d = vWF + (t % 3)*8 + sg*4 + 2*b
                    a(f"ds_read_b64_tr_b16 {vr(d,2)}, v{vL2R[sg]} offset:{(16*t+4*b)*128}"); lg.issue(("Q", t))
        q_reads(0); q_reads(1)
        for t in range(32):
            if t + 2 < 32: q_reads(t + 2)
            if t == 8: a("s_barrier")
            if t == 28:
                for sg in range(2):
                    a(f"ds_read_b128 {vr(vHACC+4*sg,4)}, v{vINU} offset:{CSO + (4+sg)*1024}"); lg.issue(("Q", 30))
            lg.wait(("Q", t))
            for sg in range(2):
                c = "0" if t == 0 else vr(vACC[sg], 16)
                a(f"v_mfma_f32_32x32x16_bf16 {vr(vACC[sg],16)}, {vr(vWF+(t%3)*8+sg*4,4)}, {vr(vXF+4*t,4)}, {c}")
        for sg in range(2):
            a(f"v_mfma_f32_32x32x16_bf16 {vr(vACC[sg],16)}, {vr(vHACC+4*sg,4)}, {vr(vNM,4)}, {vr(vACC[sg],16)}")
        vKV, vTOK = vT, vT+1
        a(f"""
        v_and_b32 v{vTOK}, 31, v1
        s_lshl_b32 {s_t0}, {s_g}, 5
        v_add_u32 v{vTOK}, {s_t0}, v{vTOK}
        v_add_u32 v{vKV}, 2, v{vTOK}
        v_mul_u32_u24 v{vKV}, {KVS}, v{vKV}
        v_and_b32 v{vT+2}, 32, v1
        v_add_u32 v{vT+2}, {hex(L_KV)}, v{vT+2}
        v_add_u32 v{vKV}, v{vKV}, v{vT+2}
        s_lshl_b32 {s_t0}, {s_r}, 7
        v_add_u32 v{vTOK}, {s_t0}, v{vTOK}
        s_mov_b32 {s_selL}, 0x05040100
        s_mov_b32 {s_selH}, 0x07060302
        v_mov_b32 v{vT+2}, {f32(-1e30)}
        """)
        K, V = vXF, vXF + 64
        L = vWF; Pp = vWF + 8; TT = vWF + 12; O = vHACC
        for p in range(2):
            for j in range(8):
                for hh in range(2):
                    a(f"ds_read_b128 {vr(K+8*j+4*hh,4)}, v{vKV} offset:{(14-2*j)*KVS + p*64 + 16*hh}"); lg.issue(("K", j))
                    if len(lg.q) > 14: lg.wait(lg.q[1])
            q = vACC[p]
            for j in range(8): a(f"v_cvt_pk_bf16_f32 v{q+j}, v{q+2*j}, v{q+2*j+1}")
            a(f"v_mov_b32 v{L}, 0")
            for j in range(1, 8):
                a(f"v_cmp_gt_u32 vcc, {2*j}, v{vTOK}\nv_cndmask_b32 v{L+j}, 0, v{vT+2}, vcc")
            for j in range(8):
                lg.wait(("K", j))
                for hh in range(2):
                    a(f"ds_read_b128 {vr(V+8*j+4*hh,4)}, v{vKV} offset:{(14-2*j)*KVS + 128 + p*64 + 16*hh}"); lg.issue(("V", j))
                    if len(lg.q) > 14: lg.wait(lg.q[1])
                for i in range(8): a(f"v_dot2c_f32_bf16 v{L+j}, v{q+i}, v{K+8*j+i}")
            a(f"""
            v_max3_f32 v{TT}, v{L}, v{L+1}, v{L+2}
            v_max3_f32 v{TT+1}, v{L+3}, v{L+4}, v{L+5}
            v_max3_f32 v{TT}, v{TT}, v{L+6}, v{L+7}
            v_max_f32 v{TT}, v{TT}, v{TT+1}
            v_mul_f32 v{TT}, v{TT}, v{vC1}
            """)
            for j in range(8): a(f"v_fma_f32 v{L+j}, v{L+j}, v{vC1}, -v{TT}")
            for j in range(8): a(f"v_exp_f32 v{L+j}, v{L+j}")
            a(f"""
            v_add_f32 v{TT}, v{L}, v{L+1}
            v_add_f32 v{TT+1}, v{L+2}, v{L+3}
            v_add_f32 v{TT+2}, v{L+4}, v{L+5}
            v_add_f32 v{TT+3}, v{L+6}, v{L+7}
            v_add_f32 v{TT}, v{TT}, v{TT+1}
            v_add_f32 v{TT+2}, v{TT+2}, v{TT+3}
            v_add_f32 v{TT}, v{TT}, v{TT+2}
            v_rcp_f32 v{TT}, v{TT}
            """)
            for j in range(8): a(f"v_mul_f32 v{L+j}, v{L+j}, v{TT}")
            for j in range(4): a(f"v_cvt_pk_bf16_f32 v{Pp+j}, v{L+2*j}, v{L+2*j+1}")
            for j in range(16): a(f"v_mov_b32 v{O+j}, 0")
            for jp in range(4):
                lg.wait(("V", 2*jp+1))
                va, vb = V + 16*jp, V + 16*jp + 8
                for i in range(8):
                    a(f"v_perm_b32 v{K+2*i}, v{vb+i}, v{va+i}, {s_selL}\nv_perm_b32 v{K+2*i+1}, v{vb+i}, v{va+i}, {s_selH}")
                for i in range(16): a(f"v_dot2c_f32_bf16 v{O+i}, v{K+i}, v{Pp+jp}")
            for j in range(8): a(f"v_cvt_pk_bf16_f32 v{q+8+j}, v{O+2*j}, v{O+2*j+1}")
            a(f"s_lshl_b32 {s_t0}, s87, 13\ns_add_u32 {s_t0}, {s_t0}, {(28+2*p)*2048}\ns_add_u32 s88, {s_t0}, {s_hst}")
            for h in range(2): a(hstore("s88")(q+8+4*h, h))
        a("s_endpgm")

def phase2(a, fused):
    vm = Cnt(a, "vmcnt", 63); lg = Cnt(a, "lgkmcnt", 15)
    vD, vR, vH, vO = 3, [4, 5], [6, 7], 8
    HB, WB, RA = 3, 8, 6
    vHB, vWB, vA = 16, 64, 192
    T = 9
    srd(a, 20, 46, 47, 1792*512*2)
    srd(a, 24, 40, 41, 512*512*2)
    srd(a, 28, 48, 49, 2048*512*2)
    a(f"""
    v_lshrrev_b32 v{T}, 2, v1
    v_lshrrev_b32 v{T+1}, 4, v1
    v_xor_b32 v{T}, v{T}, v{T+1}
    v_and_b32 v{T}, 1, v{T}
    v_and_b32 v{T+1}, 3, v1
    v_lshlrev_b32 v{T+1}, 4, v{T+1}
    v_lshl_or_b32 v{T}, v{T}, 6, v{T+1}
    v_lshrrev_b32 v{T+1}, 3, v1
    v_lshl_or_b32 v{T}, v{T+1}, 10, v{T}
    s_lshl_b32 {s_t0}, {s_cb}, 7
    v_add_u32 v{vD}, {s_t0}, v{T}
    s_mul_i32 {s_wq}, {s_g}, {448*1024}
    s_lshl_b32 {s_oq}, {s_g}, 17
    s_mul_i32 {s_ring}, {s_g}, 12288
    s_add_u32 {s_ring}, {s_ring}, {L_RING}
    """)
    def blk(b):
        if b < 8: cl, tau = b >> 2, b & 3
        elif b < 14: cl, tau = b & 1, 4 + ((b - 8) >> 1)
        else:
            cl, p = (b - 14) >> 1, b & 1
            return sWO, s_oq, (64*cl + 32*p)
        co = 32*tau if cl == 0 else (32 + 32*tau if tau < 6 else 0)
        return sW2, s_wq, 224*cl + co
    def D(b):
        if b >= 18: return
        sr, base, row0 = blk(b)
        for i in range(4):
            a(f"s_add_u32 {s_t0}, {base}, {row0*1024 + i*8192}")
            dma(a, vm, ("D", b), vD, sr, s_t0, s_ring, (b % 3)*4096 + i*1024)
    D(0); D(1); D(2)
    a(f"""
    v_bfe_u32 v{T}, v1, 2, 2
    v_lshrrev_b32 v{T+1}, 5, v1
    v_and_b32 v{T+2}, 1, v1
    v_lshlrev_b32 v{T+2}, 5, v{T+2}
    v_and_b32 v{T+3}, 16, v1
    v_or_b32 v{T+2}, v{T+2}, v{T+3}
    v_and_b32 v{T+3}, 2, v1
    v_lshl_or_b32 v{T+2}, v{T+3}, 2, v{T+2}
    v_lshl_add_u32 v{T+3}, v{T+1}, 4, v{T}
    v_lshl_add_u32 v{T+2}, v{T+3}, 7, v{T+2}
    v_lshrrev_b32 v{T}, 1, v{T}
    s_lshr_b32 {s_t0}, {s_g}, 1
    v_xor_b32 v{T}, {s_t0}, v{T}
    v_lshl_add_u32 v{T+2}, v{T}, 6, v{T+2}
    v_add_u32 v{vR[0]}, {s_ring}, v{T+2}
    v_xor_b32 v{vR[1]}, 64, v{vR[0]}
    s_and_b32 {s_t1}, {s_g}, 1
    s_lshl_b32 {s_t2}, {s_t1}, 10
    v_lshlrev_b32 v{T+4}, 4, v1
    v_add_u32 v{vH[0]}, {s_t2}, v{T+4}
    v_xor_b32 v{vH[1]}, 0x400, v{vH[0]}
    s_mul_i32 {s_hld}, {s_rb2}, {WS_RB2}
    s_mul_i32 {s_t2}, {s_g}, {36*2048}
    s_add_u32 {s_hld}, {s_hld}, {s_t2}
    v_and_b32 v{T}, 31, v1
    v_lshlrev_b32 v{T}, 10, v{T}
    v_lshl_or_b32 v{T}, v{T+1}, 5, v{T}
    s_lshl_b32 {s_t2}, {s_rb2}, 16
    s_lshl_b32 {s_t1}, {s_t1}, 15
    s_add_u32 {s_t2}, {s_t2}, {s_t1}
    s_lshl_b32 {s_t1}, {s_cb}, 7
    s_add_u32 {s_t2}, {s_t2}, {s_t1}
    s_lshl_b32 {s_t0}, {s_t0}, 6
    s_add_u32 {s_t2}, {s_t2}, {s_t0}
    v_add_u32 v{vO}, {s_t2}, v{T}
    """)
    def Tr(b):
        if b >= 18: return
        vm.wait(("D", b))
        for f in range(2):
            for nu in range(2):
                for b2 in range(2):
                    d = vWB + (b % WB)*16 + (f*2 + nu)*4 + 2*b2
                    a(f"ds_read_b64_tr_b16 {vr(d,2)}, v{vR[nu]} offset:{(b%3)*4096 + (8*f+4*b2)*128}"); lg.issue(("T", b))
    def H(b):
        if b >= 18: return
        a(f"s_add_u32 {s_t1}, {s_hld}, {b*4096}")
        for f in range(2):
            for tg in range(2):
                d = vHB + (b % HB)*16 + (f*2 + tg)*4
                a(f"buffer_load_dwordx4 {vr(d,4)}, v{vH[tg]}, {sWS}, {s_t1} offen offset:{f*2048} sc1"); vm.issue(("H", b))
    def M(b):
        lg.wait(("T", b)); vm.wait(("H", b))
        for f in range(2):
            for nu in range(2):
                for tg in range(2):
                    acc = vA + (nu*2 + tg)*16
                    c = "0" if (b == 0 and f == 0) else vr(acc, 16)
                    a(f"v_mfma_f32_32x32x16_bf16 {vr(acc,16)}, {vr(vWB+(b%WB)*16+(f*2+nu)*4,4)}, {vr(vHB+(b%HB)*16+(f*2+tg)*4,4)}, {c}")
    if not fused: RA = 1
    for b in range(RA):
        if not fused and b == 0: H(0); H(1)
        Tr(b); lg.wait(("T", b)); D(b + 3)
    if fused: H(0); H(1)
    for b in range(18):
        H(b + 2)
        if b == 16:
            xr = vWB + ((18) % WB)*16
            a(f"buffer_load_dwordx4 {vr(xr,4)}, v{vO}, {sX}, 0 offen\nbuffer_load_dwordx4 {vr(xr+4,4)}, v{vO}, {sX}, 0 offen offset:16")
            vm.issue("X"); vm.issue("X")
        Tr(b + RA)
        M(b)
        if b + RA < 18:
            lg.wait(("T", b + RA)); D(b + RA + 3)
    a(f"v_lshlrev_b32 v{T}, 4, v1\nv_add_u32 v{T+1}, {s_ring}, v{T}")
    for sg in range(1, 4):
        a(f"""
        s_xor_b32 {s_t0}, {s_g}, {sg}
        s_mul_i32 {s_t0}, {s_t0}, 12288
        s_add_u32 {s_t0}, {s_t0}, {L_RING}
        v_add_u32 v{T+1+sg}, {s_t0}, v{T}
        """)
    for sg in range(1, 4):
        for j in range(4):
            a(f"ds_write_b128 v{T+1}, {vr(vA+16*sg+4*j,4)} offset:{(sg-1)*4096 + j*1024}")
    a("s_waitcnt lgkmcnt(0)\ns_barrier")
    for sg in range(1, 4):
        for j in range(4):
            a(f"ds_read_b128 {vr(vA+16*sg+4*j,4)}, v{T+1+sg} offset:{(sg-1)*4096 + j*1024}"); lg.issue(("F", sg))
    vm.wait("X")
    U = vHB
    for i in range(8):
        a(f"v_lshlrev_b32 v{U+2*i}, 16, v{xr+i}\nv_and_b32 v{U+2*i+1}, 0xffff0000, v{xr+i}")
    for j in range(16): a(f"v_add_f32 v{vA+j}, v{vA+j}, v{U+j}")
    for sg in range(1, 4):
        lg.wait(("F", sg))
        for j in range(16): a(f"v_add_f32 v{vA+j}, v{vA+j}, v{vA+16*sg+j}")
    for j in range(8): a(f"v_cvt_pk_bf16_f32 v{U+j}, v{vA+2*j}, v{vA+2*j+1}")
    a(f"buffer_store_dwordx4 {vr(U,4)}, v{vO}, {sOUT}, 0 offen\nbuffer_store_dwordx4 {vr(U+4,4)}, v{vO}, {sOUT}, 0 offen offset:16")
    a("s_endpgm")

def finish(a):
    return "\n".join(hazard.fix(a.lines)) + "\n"

def build_split():
    k0 = Asm(); common_prologue(k0, "K0_done")
    k0(f"s_mov_b32 {s_nonce}, 1")
    stats_load(k0, 16); k0("s_waitcnt vmcnt(0)"); stats_compute(k0, 16); stats_store(k0, 16)
    k0("K0_done:\ns_endpgm")
    k1 = Asm(); common_prologue(k1, "K1_done")
    k1(f"s_cmp_eq_u32 {s_type}, 0\ns_cbranch_scc1 K1_att")
    phase1(k1, False, False, "M_")
    k1("K1_att:")
    phase1(k1, True, False, "T_")
    k1("K1_done:\ns_endpgm")
    k2 = Asm(); common_prologue(k2, "K2_done")
    k2(f"s_cmp_eq_u32 {s_role}, 0\ns_cbranch_scc1 K2_done")
    phase2(k2, False)
    k2("K2_done:\ns_endpgm")
    ks = [("k0_kernel", finish(k0), 64, 102, 64), ("k1_kernel", finish(k1), 256, 102, 256), ("k2_kernel", finish(k2), 256, 102, 256)]
    ls = [("k0_kernel", 256, 512, 0), ("k1_kernel", 256, 512, 163840), ("k2_kernel", 256, 512, 163840)]
    return multi(ks, ls)

if __name__ == "__main__":
    out = sys.argv[1] if len(sys.argv) > 1 else "v1.s"
    open(out, "w").write(build_split())
```

```python
import sys, struct
from asmlib import *
import hazard

def f32(x): return "0x%08x" % struct.unpack("<I", struct.pack("<f", x))[0]
LOG2E = 1.4426950408889634
OPT = dict(diag=False, seq=False, pretouch=False, RA=6)

class Cnt:
    def __init__(self, a, name, mx): self.a, self.name, self.mx, self.q = a, name, mx, []
    def issue(self, tag): self.q.append(tag)
    def wait(self, tag):
        if tag not in self.q: return
        idx = max(i for i, t in enumerate(self.q) if t == tag)
        n = min(len(self.q) - idx - 1, self.mx)
        self.a(f"s_waitcnt {self.name}({n})")
        self.q = self.q[len(self.q) - n:] if n else []
    def wait_all(self):
        self.a(f"s_waitcnt {self.name}(0)"); self.q = []

WS_RB2 = 144 * 2048
WS_STATS = 0x900000
WS_FLAGS = 0x910000
WS_SIZE = 0x1000000
WS_DIAG = 0xA00000
SLOT = 32768
L_HALO = 131072
L_KV = 65536
KVS = 272
L_RING = 106496
L_CS = 155648
L_MISC = 162816
HI = 0x20000
CSO = L_CS - HI
MISCO = L_MISC - HI
sX, sW, sWS, sW2, sWO, sOUT, sDBG = "s[8:11]", "s[12:15]", "s[16:19]", "s[20:23]", "s[24:27]", "s[28:31]", "s[32:35]"
s_w, s_g, s_role, s_r, s_c, s_type = "s54", "s55", "s56", "s57", "s58", "s59"
s_stride, s_seq, s_seqR, s_str64, s_str4 = "s60", "s61", "s62", "s63", "s64"
s_w2k, s_w1k = "s65", "s66"
s_t0, s_t1, s_t2, s_t3 = "s67", "s68", "s69", "s70"
s_hst, s_halo, s_cks, s_ones = "s71", "s72", "s73", "s74"
s_selL, s_selH = "s75", "s76"
s_rb2, s_cb = "s77", "s78"
s_hld, s_wq, s_oq, s_ring = "s79", "s80", "s81", "s82"
s_row, s_u0, s_u1, s_cl, s_so = "s83", "s84", "s85", "s86", "s87"
s_n0, s_n1 = "s88", "s89"
s_fst, s_spin = "s6", "s7"
s_b2, s_b3 = "s75", "s76"
STAMP_REGS = [90, 92, 94, 96, 98, 36, 38, 40, 42, 44, 46, 48, 50, 52]
SPIN_MAX = 20000

def vr(b, n): return f"v[{b}:{b+n-1}]"
def stamp(a, i):
    if OPT["diag"]: a(f"s_memtime s[{STAMP_REGS[i]}:{STAMP_REGS[i]+1}]")
def endpgm(a):
    if OPT["diag"]:
        a(f"""
        s_memtime s[4:5]
        s_waitcnt lgkmcnt(0)
        s_mov_b32 s3, s4
        s_memrealtime s[4:5]
        s_lshl_b32 {s_t0}, s2, 3
        s_add_u32 {s_t0}, {s_t0}, {s_w}
        s_lshl_b32 {s_t0}, {s_t0}, 7
        s_add_u32 {s_t0}, {s_t0}, {hex(WS_DIAG)}
        v_mov_b32 v2, 0
        s_mov_b64 exec, 1
        s_waitcnt lgkmcnt(0)
        """)
        for i, r in enumerate(STAMP_REGS + [3, 100, 4, 101]):
            a(f"v_mov_b32 v3, s{r}\nbuffer_store_dword v3, v2, {sWS}, {s_t0} offen offset:{4*i}")
    a("s_endpgm")

def srd(a, d, lo, hi, size):
    a(f"s_mov_b32 s{d}, s{lo}\ns_mov_b32 s{d+1}, s{hi}\ns_mov_b32 s{d+2}, {hex(size)}\ns_mov_b32 s{d+3}, 0x20000")

vXD0, vXD1, vWD, vWD2, vWD3 = 3, 4, 5, 6, 7
vXR = [[8, 9, 10, 11], [12, 13, 14, 15]]
vWR = [[16, 17], [18, 19]]
vHR = [20, 21, 22, 23]
vL2R = [24, 25]; vL3R = 26
vCS = [27, 28, 29]
vINU = 30
vD2 = 31
vST = 32
vNM = 36
vS, vC1, vRS = 40, 41, 42
vLN16 = 43
vT = 44
vWF = 56
vHACC = 80
vACC = [96, 112]
vXF = 128

def dma(a, vm, tag, voff, srd_, soff, m0base, m0imm):
    a(f"s_add_u32 m0, {m0base}, {m0imm}")
    a(f"buffer_load_dwordx4 v{voff}, {srd_}, {soff} offen lds")
    if vm is not None: vm.issue(tag)

def issue_unit(a, vm, u, att):
    if u < 8:
        sl = (u % 4) * SLOT
        a(f"""
        s_bfe_u32 {s_t0}, {s_seq}, {hex(0x40000 + 4*u)}
        s_lshl_b32 {s_t1}, {s_t0}, 7
        s_mul_i32 {s_t2}, {s_t0}, {s_str64}
        s_add_u32 {s_t3}, {s_t2}, {s_str4}
        """)
        dma(a, vm, ("U", u), vXD0, sX, s_t1, s_w2k, sl)
        dma(a, vm, ("U", u), vWD, sW, s_t2, s_w2k, sl + 16384)
        dma(a, vm, ("U", u), vXD1, sX, s_t1, s_w2k, sl + 1024)
        dma(a, vm, ("U", u), vWD, sW, s_t3, s_w2k, sl + 16384 + 1024)
    elif u in (8, 9):
        for s in range(4*(u-8), 4*(u-8)+4):
            a(f"s_bfe_u32 {s_t0}, {s_seq}, {hex(0x40000 + 4*s)}\ns_mul_i32 {s_t2}, {s_t0}, {s_str64}")
            dma(a, vm, ("U", u), vWD2, sW, s_t2, s_w1k, s * 8192)
    elif u == 10 and not att:
        for e in range(4):
            a(f"s_bfe_u32 {s_t0}, {s_seqR}, {hex(0x40000 + 8*e)}\ns_mul_i32 {s_t2}, {s_t0}, {s_str64}")
            dma(a, vm, ("U", u), vWD3, sW, s_t2, s_w1k, 65536 + e * 8192)

def wave_reduce(a, v, sdst):
    for sh in (1, 2, 4, 8):
        a(f"v_add_f32_dpp {v}, {v}, {v} row_shr:{sh} row_mask:0xf bank_mask:0xf bound_ctrl:0")
    a(f"v_add_f32_dpp {v}, {v}, {v} row_bcast:15 row_mask:0xa bank_mask:0xf")
    a(f"v_add_f32_dpp {v}, {v}, {v} row_bcast:31 row_mask:0xc bank_mask:0xf")
    a(f"v_readlane_b32 {sdst}, {v}, 63")

def stats_compute(a, b):
    u = b + 4
    for i in range(4):
        a(f"v_lshlrev_b32 v{u+2*i}, 16, v{b+i}\nv_and_b32 v{u+2*i+1}, 0xffff0000, v{b+i}")
    a(f"""
    v_add_f32 v{b}, v{u}, v{u+1}
    v_add_f32 v{b+1}, v{u+2}, v{u+3}
    v_add_f32 v{b+2}, v{u+4}, v{u+5}
    v_add_f32 v{b+3}, v{u+6}, v{u+7}
    v_add_f32 v{b}, v{b}, v{b+1}
    v_add_f32 v{b+2}, v{b+2}, v{b+3}
    v_add_f32 v{b}, v{b}, v{b+2}
    """)
    wave_reduce(a, f"v{b}", s_t0)
    a(f"v_mov_b32 v{b+1}, {f32(1.0/512)}\nv_mul_f32 v{b+2}, {s_t0}, v{b+1}")
    for i in range(8): a(f"v_sub_f32 v{u+i}, v{u+i}, v{b+2}")
    a(f"v_mul_f32 v{b}, v{u}, v{u}\nv_mul_f32 v{b+3}, v{u+1}, v{u+1}")
    for i in range(2, 8, 2): a(f"v_fmac_f32 v{b}, v{u+i}, v{u+i}\nv_fmac_f32 v{b+3}, v{u+i+1}, v{u+i+1}")
    a(f"v_add_f32 v{b}, v{b}, v{b+3}")
    wave_reduce(a, f"v{b}", s_t0)
    a(f"""
    v_mul_f32 v{b}, {s_t0}, v{b+1}
    v_cvt_pk_bf16_f32 v{b}, v{b}, v{b}
    v_and_b32 v{b}, 0xffff0000, v{b}
    v_add_f32 v{b}, {f32(1e-5)}, v{b}
    v_cvt_pk_bf16_f32 v{b}, v{b}, v{b}
    v_and_b32 v{b}, 0xffff0000, v{b}
    v_sqrt_f32 v{b}, v{b}
    v_cvt_pk_bf16_f32 v{b}, v{b+2}, v{b}
    s_lshl_b32 {s_t0}, {s_w}, 2
    s_add_u32 {s_t0}, {s_t0}, {L_MISC}
    v_mov_b32 v{b+1}, {s_t0}
    ds_write_b32 v{b+1}, v{b}
    """)

SEQS = [0x76534210, 0x76453201, 0x75643120, 0x67542301]

def prologue(a, vm):
    a(f"""
    s_cmp_ge_u32 s2, 256
    s_cbranch_scc1 L_done
    """)
    stamp(a, 0)
    if OPT["diag"]: a("s_memrealtime s[100:101]")
    a(f"""
    s_load_dwordx16 s[36:51], s[0:1], 0
    s_load_dwordx2 s[52:53], s[0:1], 64
    s_getpc_b64 s[4:5]
    L_pc:
    s_lshr_b32 s3, s2, 3
    s_lshl_b32 s3, s3, 5
    v_lshrrev_b32 v2, 4, v0
    v_and_b32 v1, 3, v0
    v_add3_u32 v2, v2, v1, s3
    v_and_b32 v2, 0x1ff, v2
    v_lshlrev_b32 v2, 7, v2
    v_min_u32 v2, L_codeend-L_pc-4, v2
    s_mov_b64 exec, 15
    global_load_dword v{vT+11}, v2, s[4:5]
    s_mov_b64 exec, -1
    v_lshrrev_b32 v2, 6, v0
    v_and_b32 v1, 63, v0
    v_readfirstlane_b32 {s_w}, v2
    s_bfe_u32 {s_r}, s2, 0x10002
    s_lshl_b32 {s_r}, {s_r}, 3
    s_bfe_u32 s3, s2, 0x30003
    s_add_u32 {s_r}, {s_r}, s3
    s_and_b32 {s_c}, s2, 3
    s_lshl_b32 {s_c}, {s_c}, 1
    s_bfe_u32 {s_cl}, s2, 0x10006
    s_add_u32 {s_c}, {s_c}, {s_cl}
    s_lshr_b32 {s_type}, s2, 7
    s_lshl_b32 {s_w2k}, {s_w}, 11
    """)
    vm.issue("PF")
    if OPT["seq"]:
        a(f"""
        s_lshr_b32 {s_t0}, s2, 6
        s_add_u32 {s_t0}, {s_t0}, s3
        s_mov_b32 {s_seq}, {hex(SEQS[0])}
        s_mov_b32 {s_t1}, {hex(SEQS[2])}
        s_bitcmp1_b32 {s_t0}, 0
        s_cselect_b32 {s_seq}, {hex(SEQS[1])}, {s_seq}
        s_cselect_b32 {s_t1}, {hex(SEQS[3])}, {s_t1}
        s_bitcmp1_b32 {s_t0}, 1
        s_cselect_b32 {s_seq}, {s_t1}, {s_seq}
        """)
    else:
        a(f"s_mov_b32 {s_seq}, 0x76543210")
    a(f"""
    v_lshrrev_b32 v{vT}, 3, v1
    v_lshrrev_b32 v{vT+1}, 4, v1
    v_and_b32 v{vT+2}, 7, v1
    v_xor_b32 v{vT+2}, v{vT+2}, v{vT+1}
    v_lshlrev_b32 v{vT+2}, 4, v{vT+2}
    v_lshl_or_b32 v{vT+8}, v{vT}, 10, v{vT+2}
    s_lshl_b32 {s_t0}, {s_r}, 17
    s_lshl_b32 {s_t1}, {s_w}, 14
    s_add_u32 {s_t1}, {s_t1}, {s_t0}
    v_add_u32 v{vXD0}, {s_t1}, v{vT+8}
    v_add_u32 v{vXD1}, 0x2000, v{vXD0}
    v_xor_b32 v{vXD1}, 64, v{vXD1}
    s_mul_i32 {s_b3}, {s_c}, 448
    s_lshl_b32 {s_t1}, {s_cl}, 6
    s_add_u32 {s_t1}, {s_t1}, {s_b3}
    s_add_u32 {s_b2}, {s_t1}, 256
    s_lshl_b32 {s_t3}, {s_c}, 7
    s_add_u32 {s_t2}, {s_t3}, 1024
    s_movk_i32 {s_stride}, 3584
    s_cmp_eq_u32 {s_type}, 0
    s_cselect_b32 {s_stride}, 3072, {s_stride}
    s_cselect_b32 {s_t1}, {s_t2}, {s_t1}
    s_cselect_b32 {s_b2}, {s_t3}, {s_b2}
    s_cselect_b32 {s_t2}, 10, 7
    s_lshl_b32 {s_str64}, {s_stride}, 6
    s_lshl_b32 {s_str4}, {s_stride}, 2
    v_lshrrev_b32 v{vT+6}, 2, v1
    v_xor_b32 v{vT+2}, v{vT+6}, v{vT+1}
    v_and_b32 v{vT+5}, 3, v1
    v_lshlrev_b32 v{vT+5}, 4, v{vT+5}
    v_and_b32 v{vT+7}, 1, v{vT+2}
    v_lshl_or_b32 v{vT+7}, v{vT+7}, 6, v{vT+5}
    v_bfe_u32 v{vT+2}, v{vT+2}, 1, 1
    v_lshlrev_b32 v{vT+2}, {s_t2}, v{vT+2}
    s_lshl_b32 {s_t0}, {s_w}, 3
    v_add_u32 v{vT+3}, {s_t0}, v{vT+1}
    v_mul_u32_u24 v{vWD}, {s_stride}, v{vT+3}
    v_add3_u32 v{vWD}, v{vWD}, v{vT+2}, v{vT+7}
    v_add_u32 v{vWD}, {s_t1}, v{vWD}
    v_lshlrev_b32 v{vLN16}, 4, v1
    s_lshl_b32 {s_row}, {s_r}, 1
    s_add_u32 {s_row}, {s_row}, {s_type}
    s_lshl_b32 {s_row}, {s_row}, 3
    s_add_u32 {s_row}, {s_row}, {s_c}
    s_lshl_b32 {s_row}, {s_row}, 3
    s_add_u32 {s_t3}, {s_row}, {s_w}
    s_lshl_b32 {s_t3}, {s_t3}, 10
    s_mov_b32 s10, 0x200000
    s_mov_b32 s11, 0x20000
    s_lshl_b32 s14, {s_stride}, 9
    s_mov_b32 s15, 0x20000
    s_cmp_eq_u32 {s_type}, 0
    s_waitcnt lgkmcnt(0)
    """)
    stamp(a, 1)
    a(f"""
    s_mov_b32 s8, s36
    s_mov_b32 s9, s37
    s_cselect_b32 s12, s38, s44
    s_cselect_b32 s13, s39, s45
    buffer_load_dwordx4 {vr(vXF,4)}, v{vLN16}, {sX}, {s_t3} offen
    """)
    vm.issue("SR")
    issue_unit(a, vm, 0, None)
    srd(a, 32, 50, 51, 256)
    a(f"""
    s_or_b32 s3, s2, {s_w}
    s_cmp_eq_u32 s3, 0
    s_cbranch_scc0 L_nonz
    s_memrealtime s[4:5]
    s_waitcnt lgkmcnt(0)
    s_lshl_b64 s[4:5], s[4:5], 3
    s_bitset1_b32 s5, 31
    v_mov_b32 v{vT+2}, s4
    v_mov_b32 v{vT+3}, s5
    v_mov_b32 v{vT+4}, 0
    s_mov_b64 exec, 1
    buffer_store_dwordx2 {vr(vT+2,2)}, v{vT+4}, {sDBG}, 0 offen sc1
    s_mov_b64 exec, -1
    L_nonz:
    s_cmp_eq_u32 {s_type}, 0
    s_cbranch_scc0 L_nohalo
    s_lshl_b32 {s_t0}, {s_r}, 17
    s_sub_u32 {s_t0}, {s_t0}, 0x4000
    v_add_u32 v{vT+3}, {s_t0}, v{vT+8}
    v_add_u32 v{vT+4}, 0x2000, v{vT+3}
    v_xor_b32 v{vT+4}, 64, v{vT+4}
    s_lshl_b32 {s_t1}, {s_w}, 2
    s_lshr_b32 {s_t1}, {s_seq}, {s_t1}
    s_and_b32 {s_t1}, {s_t1}, 15
    s_lshl_b32 {s_t1}, {s_t1}, 7
    """)
    dma(a, None, None, vT+3, sX, s_t1, s_w2k, L_HALO)
    dma(a, None, None, vT+4, sX, s_t1, s_w2k, L_HALO + 1024)
    a("L_nohalo:")
    vm.issue("HALO")
    vm.q.pop()
    issue_unit(a, vm, 1, None)
    srd(a, 16, 52, 53, WS_SIZE)
    srd(a, 20, 46, 47, 1792*512*2)
    srd(a, 24, 40, 41, 512*512*2)
    srd(a, 28, 48, 49, 2048*512*2)
    a(f"""
    s_and_b32 {s_g}, {s_w}, 3
    s_lshr_b32 {s_role}, {s_w}, 2
    s_lshl_b32 {s_w1k}, {s_w}, 10
    s_lshl_b32 {s_t0}, {s_role}, 2
    s_lshr_b32 {s_seqR}, {s_seq}, {s_t0}
    s_mov_b32 {s_ones}, 0x3f803f80
    s_and_b32 {s_rb2}, s2, 7
    s_lshl_b32 {s_rb2}, {s_rb2}, 2
    s_bfe_u32 s3, s2, 0x20003
    s_add_u32 {s_rb2}, {s_rb2}, s3
    s_lshr_b32 {s_cb}, s2, 5
    s_lshl_b32 {s_t0}, {s_w}, 3
    v_add_u32 v{vT+3}, {s_t0}, v{vT}
    v_mul_u32_u24 v{vWD2}, {s_stride}, v{vT+3}
    v_add3_u32 v{vWD2}, v{vWD2}, v{vT+7}, {s_b2}
    s_xor_b32 {s_t0}, {s_cl}, 1
    s_mul_i32 {s_t0}, {s_t0}, 384
    s_add_u32 {s_b3}, {s_b3}, {s_t0}
    s_lshl_b32 {s_t0}, {s_g}, 4
    v_add_u32 v{vT+3}, {s_t0}, v{vT+6}
    v_mul_u32_u24 v{vWD3}, {s_stride}, v{vT+3}
    v_add3_u32 v{vWD3}, v{vWD3}, v{vT+5}, {s_b3}
    s_lshl_b32 {s_t0}, {s_cb}, 7
    v_lshl_or_b32 v{vD2}, v{vT}, 10, v{vT+7}
    v_add_u32 v{vD2}, {s_t0}, v{vD2}
    s_mul_i32 {s_wq}, {s_g}, {448*1024}
    s_lshl_b32 {s_oq}, {s_g}, 17
    s_mul_i32 {s_ring}, {s_g}, 12288
    s_add_u32 {s_ring}, {s_ring}, {L_RING}
    """)
    r4, hf = vT, vT+1
    a(f"""
    v_bfe_u32 v{r4}, v1, 2, 2
    v_lshrrev_b32 v{hf}, 5, v1
    v_and_b32 v{vINU}, 1, v1
    v_lshlrev_b32 v{vINU}, 5, v{vINU}
    v_and_b32 v{vT+2}, 16, v1
    v_or_b32 v{vINU}, v{vINU}, v{vT+2}
    v_and_b32 v{vT+2}, 2, v1
    v_lshl_or_b32 v{vINU}, v{vT+2}, 2, v{vINU}
    v_and_b32 v{vT+2}, 31, v1
    v_bfe_u32 v{vT+3}, v1, 1, 3
    v_xor_b32 v{vT+3}, v{vT+3}, v{hf}
    s_lshl_b32 {s_t0}, {s_g}, 12
    v_lshl_add_u32 v{vT+4}, v{vT+2}, 7, {s_t0}
    v_and_b32 v{vT+6}, 15, v1
    v_lshlrev_b32 v{vT+6}, 7, v{vT+6}
    v_add_u32 v{vT+6}, {hex(L_HALO)}, v{vT+6}
    """)
    for ks in range(4):
        a(f"""
        v_xor_b32 v{vT+5}, {2*ks}, v{vT+3}
        v_lshl_add_u32 v{vXR[0][ks]}, v{vT+5}, 4, v{vT+4}
        v_add_u32 v{vXR[1][ks]}, 0x10000, v{vXR[0][ks]}
        v_lshl_add_u32 v{vHR[ks]}, v{vT+5}, 4, v{vT+6}
        """)
    a(f"""
    s_and_b32 {s_t0}, {s_g}, 1
    s_lshl_b32 {s_t0}, {s_t0}, 1
    s_add_u32 {s_t0}, {s_role}, {s_t0}
    s_lshl_b32 {s_t1}, {s_role}, 1
    s_add_u32 {s_cks}, {s_g}, {s_t1}
    s_and_b32 {s_cks}, {s_cks}, 3
    s_cmp_eq_u32 {s_type}, 0
    s_cselect_b32 {s_u0}, {s_t0}, {s_t1}
    s_cselect_b32 {s_t0}, 2, 1
    s_xor_b32 {s_u1}, {s_u0}, {s_t0}
    s_lshr_b32 {s_t0}, {s_g}, 1
    s_cmp_eq_u32 {s_t0}, {s_role}
    s_cselect_b32 {s_halo}, 1, 0
    v_lshl_add_u32 v{vT+5}, v{hf}, 3, v{r4}
    v_lshl_add_u32 v{vT+6}, v{vT+5}, 8, v{vINU}
    v_add_u32 v{vT+6}, 0x4000, v{vT+6}
    """)
    for sg, sreg in enumerate((s_u0, s_u1)):
        a(f"""
        v_xor_b32 v{vT+7}, {sreg}, v{r4}
        v_lshl_add_u32 v{vWR[0][sg]}, v{vT+7}, 6, v{vT+6}
        v_add_u32 v{vWR[1][sg]}, 0x10000, v{vWR[0][sg]}
        """)
    a(f"""
    v_lshl_add_u32 v{vT+6}, v{vT+5}, 7, v{vINU}
    v_lshrrev_b32 v{vT+7}, 1, v{r4}
    v_lshl_add_u32 v{vL2R[0]}, v{vT+7}, 6, v{vT+6}
    v_xor_b32 v{vL2R[1]}, 64, v{vL2R[0]}
    v_lshl_add_u32 v{vL3R}, v{vT+5}, 6, v{vINU}
    v_add_u32 v{vL3R}, 0x10000, v{vL3R}
    v_mov_b32 v{vCS[0]}, 0
    v_mov_b32 v{vCS[1]}, 0
    s_lshl_b32 {s_t0}, {s_r}, 1
    s_lshr_b32 {s_t1}, {s_g}, 1
    s_add_u32 {s_t0}, {s_t0}, {s_t1}
    s_mul_i32 {s_hst}, {s_t0}, {WS_RB2}
    s_lshr_b32 {s_t1}, {s_c}, 1
    s_mul_i32 {s_t2}, {s_t1}, {36*2048}
    s_add_u32 {s_hst}, {s_hst}, {s_t2}
    s_and_b32 {s_t2}, {s_g}, 1
    s_lshl_b32 {s_t3}, {s_t2}, 10
    s_add_u32 {s_hst}, {s_hst}, {s_t3}
    s_lshl_b32 {s_fst}, {s_t0}, 2
    s_add_u32 {s_fst}, {s_fst}, {s_t1}
    s_lshl_b32 {s_fst}, {s_fst}, 1
    s_add_u32 {s_fst}, {s_fst}, {s_type}
    s_lshl_b32 {s_fst}, {s_fst}, 1
    s_add_u32 {s_fst}, {s_fst}, {s_cl}
    s_lshl_b32 {s_fst}, {s_fst}, 1
    s_add_u32 {s_fst}, {s_fst}, {s_t2}
    s_lshl_b32 {s_fst}, {s_fst}, 1
    s_add_u32 {s_fst}, {s_fst}, {s_role}
    s_lshl_b32 {s_fst}, {s_fst}, 3
    s_add_u32 {s_fst}, {s_fst}, {hex(WS_FLAGS)}
    """)
    vm.wait("SR")
    stats_compute(a, vXF)

def flag_ops(stage, t):
    return ["s_waitcnt vmcnt(0)",
            f"s_add_u32 {s_t0}, {s_n0}, {stage}",
            f"v_mov_b32 v{t}, {s_t0}", f"v_mov_b32 v{t+1}, {s_n1}", f"v_mov_b32 v{t+2}, 0",
            "s_mov_b64 exec, 1\n" + f"buffer_store_dwordx2 {vr(t,2)}, v{t+2}, {sWS}, {s_fst} offen sc1\n" + "s_mov_b64 exec, -1"]

def cs_pack(a, acc, t=vT):
    a(f"""
    v_cvt_pk_bf16_f32 v{t}, v{acc}, v{acc}
    v_and_b32 v{t+1}, 0xffff0000, v{t}
    v_sub_f32 v{t+1}, v{acc}, v{t+1}
    v_cvt_pk_bf16_f32 v{t}, v{acc}, v{t+1}
    """)

def silu_ops(acc, t, store):
    ops = []
    for h in range(2):
        b = acc + 8*h
        for j in range(8): ops.append(f"v_mul_f32 v{t+j}, v{b+j}, v{vC1}")
        for j in range(8): ops.append(f"v_exp_f32 v{t+j}, v{t+j}")
        for j in range(8): ops.append(f"v_fma_f32 v{t+j}, v{t+j}, v{vS}, v{vS}")
        for j in range(8): ops.append(f"v_rcp_f32 v{t+j}, v{t+j}")
        for j in range(8): ops.append(f"v_mul_f32 v{b+j}, v{b+j}, v{t+j}")
        for j in range(4): ops.append(f"v_cvt_pk_bf16_f32 v{b+j}, v{b+2*j}, v{b+2*j+1}")
        ops.append(store(b, h))
    return ops

def blk(b):
    if b < 8: cl, tau = b >> 2, b & 3
    elif b < 14: cl, tau = b & 1, 4 + ((b - 8) >> 1)
    else:
        cl, p = b & 1, (b - 14) >> 1
        return sWO, s_oq, (64*cl + 32*p)
    co = 32*tau if cl == 0 else (32 + 32*tau if tau < 6 else 0)
    return sW2, s_wq, 224*cl + co
def D2(a, vm, b):
    if b >= 18: return
    sr, base, row0 = blk(b)
    for i in range(4):
        a(f"s_add_u32 {s_t0}, {base}, {row0*1024 + i*8192}")
        dma(a, vm, ("D", b), vD2, sr, s_t0, s_ring, (b % 3)*4096 + i*1024)

def phase1(a, vm0, att, P):
    vm = Cnt(a, "vmcnt", 63); vm.q = list(vm0.q)
    lg = Cnt(a, "lgkmcnt", 15)
    def stats_fetch():
        a(f"""
        v_and_b32 v2, 31, v1
        v_lshlrev_b32 v2, 4, v2
        s_lshl_b32 {s_t0}, {s_r}, 11
        s_lshl_b32 {s_t1}, {s_g}, 9
        s_add_u32 {s_t1}, {s_t1}, {s_t0}
        s_add_u32 {s_t1}, {s_t1}, {hex(WS_STATS)}
        buffer_load_dwordx4 {vr(vST,4)}, v2, {sWS}, {s_t1} offen sc1
        """)
        vm.issue("ST")
        if att:
            a(f"""
            v_and_b32 v2, 0xff, v{vLN16}
            s_max_u32 {s_t0}, {s_t0}, 256
            s_add_u32 {s_t0}, {s_t0}, {hex(WS_STATS - 256)}
            buffer_load_dwordx4 {vr(vNM,4)}, v2, {sWS}, {s_t0} offen sc1
            """)
            vm.issue("ST")
    HB = [48, 52, 44]
    def reads(t):
        s, ks = divmod(t, 4)
        st = (s % 4) // 2; sl = (s % 2) * SLOT
        if att:
            a(f"""
            s_cbranch_scc0 {P}nh{t}
            ds_read_b128 {vr(HB[t%3],4)}, v{vHR[ks]} offset:{s*2048}
            {P}nh{t}:
            """)
        a(f"ds_read_b128 {vr(vXF+4*t,4)}, v{vXR[st][ks]} offset:{sl}"); lg.issue(("R", t))
        for sg in range(2):
            for b in range(2):
                d = vWF + (t % 3)*8 + sg*4 + 2*b
                a(f"ds_read_b64_tr_b16 {vr(d,2)}, v{vWR[st][sg]} offset:{sl + (16*ks+4*b)*256}"); lg.issue(("R", t))
    def barrier_stage(s):
        if s == 0:
            a("s_waitcnt vmcnt(4) lgkmcnt(0)"); vm.q = vm.q[-4:]
        else: vm.wait(("U", s))
        a("s_barrier")
        if s == 0: stamp(a, 2)
        if s == 4: stamp(a, 3)
        if s == 0:
            a(f"""
            s_cmp_eq_u32 {s_w}, 0
            s_cbranch_scc0 {P}nld
            v_mov_b32 v2, 0
            buffer_load_dwordx2 {vr(vNM,2)}, v2, {sDBG}, 0 offen sc1
            {P}nld:
            """)
        issue_unit(a, vm, s + 2, att)
        if s == 2:
            a(f"""
            s_cmp_eq_u32 {s_w}, 0
            s_cbranch_scc0 {P}npub
            s_mov_b32 {s_spin}, 0
            {P}nchk:
            v_readfirstlane_b32 {s_n1}, v{vNM+1}
            s_cmp_lg_u32 {s_n1}, 0
            s_cbranch_scc1 {P}nok
            s_add_u32 {s_spin}, {s_spin}, 1
            s_cmp_ge_u32 {s_spin}, {SPIN_MAX}
            s_cbranch_scc1 {P}nok
            s_sleep 2
            buffer_load_dwordx2 {vr(vNM,2)}, v2, {sDBG}, 0 offen sc1
            s_waitcnt vmcnt(0)
            s_branch {P}nchk
            {P}nok:
            """)
            if OPT["diag"]: a(f"s_mov_b32 s101, {s_spin}")
            a(f"""
            v_lshlrev_b32 v2, 2, v1
            v_add_u32 v2, {HI}, v2
            ds_read_b32 v{vST}, v2 offset:{MISCO}
            v_mov_b32 v2, {HI}
            ds_write_b64 v2, {vr(vNM,2)} offset:{MISCO+64}
            s_lshl_b32 {s_t0}, {s_row}, 4
            s_add_u32 {s_t0}, {s_t0}, {hex(WS_STATS)}
            v_mov_b32 v{vST+1}, v{vNM}
            v_mov_b32 v{vST+2}, v{vNM+1}
            v_mov_b32 v{vST+3}, 0
            s_waitcnt lgkmcnt(0)
            s_mov_b64 exec, 0xff
            buffer_store_dwordx4 {vr(vST,4)}, v{vLN16}, {sWS}, {s_t0} offen sc1
            s_mov_b64 exec, -1
            {P}npub:
            """)
        if s == 6: stats_fetch()
    def setscc():
        if att: a(f"s_cmp_eq_u32 {s_halo}, 1")
    barrier_stage(0)
    setscc(); reads(0); reads(1)
    for t in range(32):
        s, ks = divmod(t, 4)
        if t + 2 < 32:
            if (t + 2) % 4 == 0:
                if (t + 2) // 4 == 2:
                    pass
                barrier_stage((t + 2) // 4)
            setscc(); reads(t + 2)
        lg.wait(("R", t))
        for sg in range(2):
            w = vWF + (t % 3)*8 + sg*4
            c = "0" if t == 0 else vr(vACC[sg], 16)
            a(f"v_mfma_f32_32x32x16_bf16 {vr(vACC[sg],16)}, {vr(w,4)}, {vr(vXF+4*t,4)}, {c}")
        if att:
            w = vWF + (t % 3)*8
            c = "0" if t == 0 else vr(vHACC, 16)
            setscc()
            a(f"""
            s_cbranch_scc0 {P}nm{t}
            v_mfma_f32_32x32x16_bf16 {vr(vHACC,16)}, {vr(w,4)}, {vr(HB[t%3],4)}, {c}
            {P}nm{t}:
            """)
        a(f"s_cmp_eq_u32 {s_cks}, {ks}\ns_cbranch_scc0 {P}nc{t}")
        for i in range(4):
            for sg in range(2):
                a(f"v_dot2c_f32_bf16 v{vCS[sg]}, {s_ones}, v{vWF + (t%3)*8 + sg*4 + i}")
        a(f"{P}nc{t}:")
    stamp(a, 4)
    a(f"""
    v_mov_b32 v2, {HI}
    ds_read_b64 {vr(vT+8,2)}, v2 offset:{MISCO+64}
    s_lshl_b32 {s_t0}, {s_u0}, 10
    s_lshl_b32 {s_t1}, {s_u1}, 10
    s_add_u32 {s_t0}, {s_t0}, {HI}
    s_add_u32 {s_t1}, {s_t1}, {HI}
    v_add_u32 v{vT+6}, {s_t0}, v{vLN16}
    v_add_u32 v{vT+7}, {s_t1}, v{vLN16}
    s_lshl_b32 {s_t0}, {s_g}, 2
    v_add_u32 v{vT+4}, {s_t0}, v{vT+6}
    v_add_u32 v{vT+5}, {s_t0}, v{vT+7}
    """)
    for sg in range(2):
        cs_pack(a, vCS[sg])
        a(f"ds_write_b32 v{vT+4+sg}, v{vT} offset:{CSO}")
    lg.wait_all()
    a("s_barrier")
    stamp(a, 5)
    for sg in range(2):
        a(f"ds_read_b128 {vr(vWF+4*sg,4)}, v{vT+6+sg} offset:{CSO}")
    a(f"v_readfirstlane_b32 {s_n0}, v{vT+8}\nv_readfirstlane_b32 {s_n1}, v{vT+9}")
    vm.wait("ST")
    issue_unit(a, vm, 10, att)
    a(f"s_cmp_eq_u32 {s_role}, 0\ns_cbranch_scc1 {P}nring")
    for b in range(3): D2(a, None, b)
    a(f"{P}nring:")
    a(f"s_mov_b32 {s_spin}, 0\n{P}schk:")
    a(f"v_cmp_ne_u32 vcc, {s_n0}, v{vST+1}\nv_cmp_ne_u32 s[4:5], {s_n1}, v{vST+2}\ns_or_b64 vcc, vcc, s[4:5]")
    if att:
        a(f"v_cmp_ne_u32 s[4:5], {s_n0}, v{vNM+1}\ns_or_b64 vcc, vcc, s[4:5]\nv_cmp_ne_u32 s[4:5], {s_n1}, v{vNM+2}\ns_or_b64 vcc, vcc, s[4:5]")
    a(f"""
    s_cbranch_scc0 {P}sok
    s_add_u32 {s_spin}, {s_spin}, 1
    s_cmp_ge_u32 {s_spin}, {SPIN_MAX}
    s_cbranch_scc1 {P}sok
    s_sleep 2
    """)
    sv = list(vm.q); stats_fetch(); vm.q = sv
    a(f"s_waitcnt vmcnt(0)\ns_branch {P}schk\n{P}sok:")
    if OPT["diag"]: a(f"s_lshl_b32 s3, {s_spin}, 8\ns_and_b32 s101, s101, 0xff\ns_or_b32 s101, s101, s3")
    def derive(src, nm, rs):
        a(f"""
        v_and_b32 v{rs}, 0xffff0000, v{src}
        v_and_b32 v{nm}, 0xffff, v{src}
        v_xor_b32 v{nm}, 0x8000, v{nm}
        v_lshl_or_b32 v{nm}, v{nm}, 16, v{nm}
        v_mov_b32 v{nm+1}, v{nm}
        v_mov_b32 v{nm+2}, v{nm}
        v_mov_b32 v{nm+3}, v{nm}
        """)
    vRSH = vST + 3
    if att:
        derive(vNM, vWF+16, vRSH)
        a(f"v_rcp_f32 v{vRSH}, v{vRSH}")
    derive(vST, vNM, vS)
    a(f"v_rcp_f32 v{vRS}, v{vS}")
    a(f"v_mul_f32 v{vC1}, {f32(0.25*LOG2E if att else -LOG2E)}, v{vRS}")
    lg.wait_all()
    for sg in range(2):
        a(f"v_mfma_f32_32x32x16_bf16 {vr(vACC[sg],16)}, {vr(vWF+4*sg,4)}, {vr(vNM,4)}, {vr(vACC[sg],16)}")
    if att:
        setscc()
        a(f"""
        s_cbranch_scc0 {P}nmx
        v_mfma_f32_32x32x16_bf16 {vr(vHACC,16)}, {vr(vWF,4)}, {vr(vWF+16,4)}, {vr(vHACC,16)}
        {P}nmx:
        """)
    def hstore(b, h):
        return f"buffer_store_dwordx4 {vr(b,4)}, v{vLN16}, {sWS}, {s_so} offen offset:{h*2048} sc1"
    if not att:
        for sg, sreg in enumerate((s_u0, s_u1)):
            a(f"""
            s_lshl_b32 {s_t0}, {s_cl}, 14
            s_lshl_b32 {s_t1}, {sreg}, 12
            s_add_u32 {s_t0}, {s_t0}, {s_t1}
            s_add_u32 {s_so}, {s_t0}, {s_hst}
            """)
            for op in silu_ops(vACC[sg], vT, hstore): a(op)
        a(f"""
        s_cmp_eq_u32 {s_role}, 0
        s_cbranch_scc0 {P}w16
        s_waitcnt vmcnt(4)
        {P}w16:
        s_waitcnt vmcnt(16)
        """)
    else:
        a(f"""
        v_and_b32 v{vT}, 31, v1
        s_lshl_b32 {s_t0}, {s_g}, 5
        s_add_u32 {s_t0}, {s_t0}, 16
        v_add_u32 v{vT}, {s_t0}, v{vT}
        v_mul_u32_u24 v{vT}, {KVS}, v{vT}
        v_and_b32 v{vT+1}, 32, v1
        v_add_u32 v{vT+1}, {hex(L_KV)}, v{vT+1}
        v_add_u32 v{vT}, v{vT}, v{vT+1}
        s_lshl_b32 {s_t0}, {s_u0}, 6
        s_lshl_b32 {s_t1}, {s_u1}, 6
        v_add_u32 v{vT+2}, {s_t0}, v{vT}
        v_add_u32 v{vT+3}, {s_t1}, v{vT}
        v_and_b32 v{vT+4}, 15, v1
        v_mul_u32_u24 v{vT+4}, {KVS}, v{vT+4}
        v_add3_u32 v{vT+4}, v{vT+4}, v{vT+1}, {s_t0}
        """)
        def kvout(acc, rs, addr):
            for j in range(16): a(f"v_mul_f32 v{acc+j}, v{acc+j}, v{rs}")
            for j in range(8): a(f"v_cvt_pk_bf16_f32 v{acc+j}, v{acc+2*j}, v{acc+2*j+1}")
            a(f"ds_write_b128 v{addr}, {vr(acc,4)}\nds_write_b128 v{addr}, {vr(acc+4,4)} offset:16")
        kvout(vACC[0], vRS, vT+2); kvout(vACC[1], vRS, vT+3)
        setscc()
        a(f"s_cbranch_scc0 {P}nkh")
        kvout(vHACC, vRSH, vT+4)
        a(f"{P}nkh:")
        a(f"""
        s_cmp_eq_u32 {s_role}, 0
        s_cbranch_scc0 {P}w12
        s_waitcnt vmcnt(0)
        {P}w12:
        s_waitcnt vmcnt(12) lgkmcnt(0)
        """)
    stamp(a, 6)
    a("s_barrier")
    stamp(a, 7)
    a(f"s_cmp_eq_u32 {s_role}, 0\ns_cbranch_scc1 {P}A")
    late = [(vL2R[0], 128), (vL2R[1], 128)] + ([] if att else [(vL3R, 64)])
    a(f"""
    s_lshl_b32 {s_t0}, {s_g}, 2
    s_add_u32 {s_t0}, {s_t0}, {HI}
    v_add_u32 v{vT+3}, {s_t0}, v{vLN16}
    """)
    for li, (ar, rb) in enumerate(late):
        a(f"s_mul_i32 {s_t0}, {s_g}, {128*rb}\nv_add_u32 v{vT+4}, {s_t0}, v{ar}")
        base = vXF + 32*li
        for k in range(16):
            t, b = divmod(k, 2)
            a(f"ds_read_b64_tr_b16 {vr(base+2*k,2)}, v{vT+4} offset:{(16*t+4*b)*rb}")
        a(f"v_mov_b32 v{vCS[li]}, 0")
    a("s_waitcnt lgkmcnt(0)")
    for li, (ar, rb) in enumerate(late):
        base = vXF + 32*li
        for k in range(32): a(f"v_dot2c_f32_bf16 v{vCS[li]}, {s_ones}, v{base+k}")
    for li in range(len(late)):
        cs_pack(a, vCS[li])
        a(f"ds_write_b32 v{vT+3}, v{vT} offset:{CSO + (4+li)*1024}")
    if not att:
        for op in flag_ops(1, vT+4): a(op)
    stamp(a, 8)
    a("s_waitcnt lgkmcnt(0)\ns_barrier")
    a(f"s_branch PH2")
    a(f"{P}A:")
    lg.q = []
    a(f"v_add_u32 v{vINU}, {HI}, v{vLN16}")
    if not att:
        accs = [vHACC, vACC[0], vACC[1]]
        fill = []
        def chain_reads(li, t):
            ar, rb = late[li]
            n = li*32 + t
            for b in range(2):
                d = vWF + (n % 4)*4 + 2*b
                a(f"ds_read_b64_tr_b16 {vr(d,2)}, v{ar} offset:{(16*t+4*b)*rb}"); lg.issue(("L", n))
        for n in range(3): chain_reads(0, n)
        for li in range(3):
            for t in range(32):
                n = li*32 + t
                if n + 3 < 96: chain_reads((n+3)//32, (n+3) % 32)
                if n == 14: stamp(a, 8); a("s_barrier"); stamp(a, 9)
                if t == 26:
                    a(f"ds_read_b128 {vr(vWF+16,4)}, v{vINU} offset:{CSO + (4+li)*1024}"); lg.issue(("L", n+3))
                lg.wait(("L", n))
                c = "0" if t == 0 else vr(accs[li], 16)
                a(f"v_mfma_f32_32x32x16_bf16 {vr(accs[li],16)}, {vr(vWF+(n%4)*4,4)}, {vr(vXF+4*t,4)}, {c}")
                if n == 8:
                    for op in flag_ops(1, vT+8): a(op)
                if n == 64:
                    for op in flag_ops(2, vT+8): a(op)
                if t >= 2:
                    for _ in range(5):
                        if fill: a(fill.pop(0))
            lg.wait(("L", li*32+29))
            a(f"v_mfma_f32_32x32x16_bf16 {vr(accs[li],16)}, {vr(vWF+16,4)}, {vr(vNM,4)}, {vr(accs[li],16)}")
            assert not fill
            fill = [f"s_lshl_b32 {s_t0}, {s_cl}, 12", f"s_add_u32 {s_t0}, {s_t0}, {(16+4*li)*2048}", f"s_add_u32 {s_so}, {s_t0}, {s_hst}"]
            fill += silu_ops(accs[li], vT, hstore)
        stamp(a, 10)
        for op in flag_ops(3, vT+8): a(op)
        for op in fill: a(op)
        for op in flag_ops(4, vT+8): a(op)
        endpgm(a)
    else:
        def q_reads(t):
            for sg in range(2):
                for b in range(2):
                    d = vWF + (t % 3)*8 + sg*4 + 2*b
                    a(f"ds_read_b64_tr_b16 {vr(d,2)}, v{vL2R[sg]} offset:{(16*t+4*b)*128}"); lg.issue(("Q", t))
        q_reads(0); q_reads(1)
        for t in range(32):
            if t + 2 < 32: q_reads(t + 2)
            if t == 8: stamp(a, 8); a("s_barrier"); stamp(a, 9)
            if t == 28:
                for sg in range(2):
                    a(f"ds_read_b128 {vr(vHACC+4*sg,4)}, v{vINU} offset:{CSO + (4+sg)*1024}"); lg.issue(("Q", 30))
            lg.wait(("Q", t))
            for sg in range(2):
                c = "0" if t == 0 else vr(vACC[sg], 16)
                a(f"v_mfma_f32_32x32x16_bf16 {vr(vACC[sg],16)}, {vr(vWF+(t%3)*8+sg*4,4)}, {vr(vXF+4*t,4)}, {c}")
        for sg in range(2):
            a(f"v_mfma_f32_32x32x16_bf16 {vr(vACC[sg],16)}, {vr(vHACC+4*sg,4)}, {vr(vNM,4)}, {vr(vACC[sg],16)}")
        stamp(a, 10)
        vKV, vTOK = vT, vT+1
        a(f"""
        v_and_b32 v{vTOK}, 31, v1
        s_lshl_b32 {s_t0}, {s_g}, 5
        v_add_u32 v{vTOK}, {s_t0}, v{vTOK}
        v_add_u32 v{vKV}, 2, v{vTOK}
        v_mul_u32_u24 v{vKV}, {KVS}, v{vKV}
        v_and_b32 v{vT+2}, 32, v1
        v_add_u32 v{vT+2}, {hex(L_KV)}, v{vT+2}
        v_add_u32 v{vKV}, v{vKV}, v{vT+2}
        s_lshl_b32 {s_t0}, {s_r}, 7
        v_add_u32 v{vTOK}, {s_t0}, v{vTOK}
        s_mov_b32 {s_selL}, 0x05040100
        s_mov_b32 {s_selH}, 0x07060302
        v_mov_b32 v{vT+2}, {f32(-1e30)}
        """)
        K, V = vXF, vXF + 64
        L = vWF; Pp = vWF + 8; TT = vWF + 12; O = vHACC
        for p in range(2):
            for j in range(8):
                for hh in range(2):
                    a(f"ds_read_b128 {vr(K+8*j+4*hh,4)}, v{vKV} offset:{(14-2*j)*KVS + p*64 + 16*hh}"); lg.issue(("K", j))
                    if len(lg.q) > 14: lg.wait(lg.q[1])
            q = vACC[p]
            for j in range(8): a(f"v_cvt_pk_bf16_f32 v{q+j}, v{q+2*j}, v{q+2*j+1}")
            a(f"v_mov_b32 v{L}, 0")
            for j in range(1, 8):
                a(f"v_cmp_gt_u32 vcc, {2*j}, v{vTOK}\nv_cndmask_b32 v{L+j}, 0, v{vT+2}, vcc")
            for j in range(8):
                lg.wait(("K", j))
                for hh in range(2):
                    a(f"ds_read_b128 {vr(V+8*j+4*hh,4)}, v{vKV} offset:{(14-2*j)*KVS + 128 + p*64 + 16*hh}"); lg.issue(("V", j))
                    if len(lg.q) > 14: lg.wait(lg.q[1])
                for i in range(8): a(f"v_dot2c_f32_bf16 v{L+j}, v{q+i}, v{K+8*j+i}")
            a(f"""
            v_max3_f32 v{TT}, v{L}, v{L+1}, v{L+2}
            v_max3_f32 v{TT+1}, v{L+3}, v{L+4}, v{L+5}
            v_max3_f32 v{TT}, v{TT}, v{L+6}, v{L+7}
            v_max_f32 v{TT}, v{TT}, v{TT+1}
            v_mul_f32 v{TT}, v{TT}, v{vC1}
            """)
            for j in range(8): a(f"v_fma_f32 v{L+j}, v{L+j}, v{vC1}, -v{TT}")
            for j in range(8): a(f"v_exp_f32 v{L+j}, v{L+j}")
            a(f"""
            v_add_f32 v{TT}, v{L}, v{L+1}
            v_add_f32 v{TT+1}, v{L+2}, v{L+3}
            v_add_f32 v{TT+2}, v{L+4}, v{L+5}
            v_add_f32 v{TT+3}, v{L+6}, v{L+7}
            v_add_f32 v{TT}, v{TT}, v{TT+1}
            v_add_f32 v{TT+2}, v{TT+2}, v{TT+3}
            v_add_f32 v{TT}, v{TT}, v{TT+2}
            v_rcp_f32 v{TT}, v{TT}
            """)
            for j in range(8): a(f"v_mul_f32 v{L+j}, v{L+j}, v{TT}")
            for j in range(4): a(f"v_cvt_pk_bf16_f32 v{Pp+j}, v{L+2*j}, v{L+2*j+1}")
            if p == 1:
                for op in flag_ops(1, vT+4): a(op)
            for j in range(16): a(f"v_mov_b32 v{O+j}, 0")
            for jp in range(4):
                lg.wait(("V", 2*jp+1))
                va, vb = V + 16*jp, V + 16*jp + 8
                for i in range(8):
                    a(f"v_perm_b32 v{K+2*i}, v{vb+i}, v{va+i}, {s_selL}\nv_perm_b32 v{K+2*i+1}, v{vb+i}, v{va+i}, {s_selH}")
                for i in range(16): a(f"v_dot2c_f32_bf16 v{O+i}, v{K+i}, v{Pp+jp}")
            for j in range(8): a(f"v_cvt_pk_bf16_f32 v{q+8+j}, v{O+2*j}, v{O+2*j+1}")
            a(f"s_lshl_b32 {s_t0}, {s_cl}, 12\ns_add_u32 {s_t0}, {s_t0}, {(28+4*p)*2048}\ns_add_u32 {s_so}, {s_t0}, {s_hst}")
            for h in range(2): a(hstore(q+8+4*h, h))
            if p == 0: stamp(a, 11)
        for op in flag_ops(2, vT+4): a(op)
        endpgm(a)

def phase2(a):
    vm = Cnt(a, "vmcnt", 63); lg = Cnt(a, "lgkmcnt", 15)
    vR, vH, vO, vFA, vF, vSG = [4, 5], [6, 7], 8, 3, 14, 13
    HB, WB, RA = 3, 8, OPT["RA"]
    vHB, vWB, vA = 16, 64, 192
    T = 9
    a("PH2:")
    stamp(a, 9)
    for b in range(3):
        for i in range(4): vm.issue(("D", b))
    a(f"""
    v_mov_b32 v2, v{vD2}
    v_bfe_u32 v{T}, v1, 2, 2
    v_lshrrev_b32 v{T+1}, 5, v1
    v_and_b32 v{T+2}, 1, v1
    v_lshlrev_b32 v{T+2}, 5, v{T+2}
    v_and_b32 v{T+3}, 16, v1
    v_or_b32 v{T+2}, v{T+2}, v{T+3}
    v_and_b32 v{T+3}, 2, v1
    v_lshl_or_b32 v{T+2}, v{T+3}, 2, v{T+2}
    v_lshl_add_u32 v{T+3}, v{T+1}, 4, v{T}
    v_lshl_add_u32 v{T+2}, v{T+3}, 7, v{T+2}
    v_lshrrev_b32 v{T}, 1, v{T}
    s_lshr_b32 {s_t0}, {s_g}, 1
    v_xor_b32 v{T}, {s_t0}, v{T}
    v_lshl_add_u32 v{T+2}, v{T}, 6, v{T+2}
    v_add_u32 v{vR[0]}, {s_ring}, v{T+2}
    v_xor_b32 v{vR[1]}, 64, v{vR[0]}
    s_and_b32 {s_t1}, {s_g}, 1
    s_lshl_b32 {s_t2}, {s_t1}, 10
    v_lshlrev_b32 v{T+3}, 4, v1
    v_add_u32 v{vH[0]}, {s_t2}, v{T+3}
    v_xor_b32 v{vH[1]}, 0x400, v{vH[0]}
    s_mul_i32 {s_hld}, {s_rb2}, {WS_RB2}
    s_mul_i32 {s_t2}, {s_g}, {36*2048}
    s_add_u32 {s_hld}, {s_hld}, {s_t2}
    v_and_b32 v{T}, 31, v1
    v_lshlrev_b32 v{T}, 10, v{T}
    v_lshl_or_b32 v{T}, v{T+1}, 5, v{T}
    s_lshl_b32 {s_t2}, {s_rb2}, 16
    s_lshl_b32 {s_t1}, {s_t1}, 15
    s_add_u32 {s_t2}, {s_t2}, {s_t1}
    s_lshl_b32 {s_t1}, {s_cb}, 7
    s_add_u32 {s_t2}, {s_t2}, {s_t1}
    s_lshl_b32 {s_t0}, {s_t0}, 6
    s_add_u32 {s_t2}, {s_t2}, {s_t0}
    v_add_u32 v{vO}, {s_t2}, v{T}
    v_and_b32 v{vFA}, 15, v1
    v_lshlrev_b32 v{vFA}, 3, v{vFA}
    s_lshl_b32 {s_fst}, {s_rb2}, 2
    s_add_u32 {s_fst}, {s_fst}, {s_g}
    s_lshl_b32 {s_fst}, {s_fst}, 7
    s_add_u32 {s_fst}, {s_fst}, {hex(WS_FLAGS)}
    """)
    def D(b):
        if b >= 18: return
        sr, base, row0 = blk(b)
        for i in range(4):
            a(f"s_add_u32 {s_t0}, {base}, {row0*1024 + i*8192}")
            dma(a, vm, ("D", b), 2, sr, s_t0, s_ring, (b % 3)*4096 + i*1024)
    def Tr(b):
        if b >= 18: return
        vm.wait(("D", b))
        for f in range(2):
            for nu in range(2):
                for b2 in range(2):
                    d = vWB + (b % WB)*16 + (f*2 + nu)*4 + 2*b2
                    a(f"ds_read_b64_tr_b16 {vr(d,2)}, v{vR[nu]} offset:{(b%3)*4096 + (8*f+4*b2)*128}"); lg.issue(("T", b))
    GR = {0: (0xff00, 1), 8: (0x5500, 2), 10: (0x5500, 3), 12: (0x5500, 4), 14: (0x0055, 1), 16: (0x0055, 2)}
    def poll():
        a(f"buffer_load_dwordx2 {vr(vF,2)}, v{vFA}, {sWS}, {s_fst} offen sc1"); vm.issue("F")
    def ensure(b):
        mask, thr = GR[b]
        vm.wait("F")
        a(f"""
        s_mov_b32 {s_spin}, 0
        P2c{b}:
        v_subrev_u32 v{vSG}, {s_n0}, v{vF}
        v_subrev_u32 v{vSG}, {thr}, v{vSG}
        v_cmp_gt_u32 vcc, {8-thr}, v{vSG}
        v_cmp_eq_u32 s[4:5], {s_n1}, v{vF+1}
        s_and_b64 vcc, vcc, s[4:5]
        s_andn2_b32 s3, {hex(mask)}, vcc_lo
        s_cbranch_scc0 P2k{b}
        s_add_u32 {s_spin}, {s_spin}, 1
        s_cmp_ge_u32 {s_spin}, {SPIN_MAX}
        s_cbranch_scc1 P2k{b}
        s_sleep 1
        buffer_load_dwordx2 {vr(vF,2)}, v{vFA}, {sWS}, {s_fst} offen sc1
        s_waitcnt vmcnt(0)
        s_branch P2c{b}
        P2k{b}:
        """)
        if OPT["diag"]:
            sh = {0: 16, 8: 20, 10: 20, 12: 24, 14: 28, 16: 28}[b]
            a(f"s_min_u32 s3, {s_spin}, 7\ns_lshl_b32 s3, s3, {sh}\ns_add_u32 s101, s101, s3")
    def H(b):
        if b >= 18: return
        if b in GR: ensure(b)
        a(f"s_add_u32 {s_t1}, {s_hld}, {b*4096}")
        for f in range(2):
            for tg in range(2):
                d = vHB + (b % HB)*16 + (f*2 + tg)*4
                a(f"buffer_load_dwordx4 {vr(d,4)}, v{vH[tg]}, {sWS}, {s_t1} offen offset:{f*2048} sc1"); vm.issue(("H", b))
    def M(b):
        lg.wait(("T", b)); vm.wait(("H", b))
        for f in range(2):
            for nu in range(2):
                for tg in range(2):
                    acc = vA + (nu*2 + tg)*16
                    c = "0" if (b == 0 and f == 0) else vr(acc, 16)
                    a(f"v_mfma_f32_32x32x16_bf16 {vr(acc,16)}, {vr(vWB+(b%WB)*16+(f*2+nu)*4,4)}, {vr(vHB+(b%HB)*16+(f*2+tg)*4,4)}, {c}")
    for b in range(RA):
        Tr(b); lg.wait(("T", b))
        if b == RA - 2 or (RA == 1): poll()
        D(b + 3)
    stamp(a, 10)
    H(0); H(1)
    stamp(a, 11)
    for b in range(18):
        if (b + 3) in GR: poll()
        H(b + 2)
        if b == 16:
            xr = vWB + ((18) % WB)*16
            a(f"buffer_load_dwordx4 {vr(xr,4)}, v{vO}, {sX}, 0 offen\nbuffer_load_dwordx4 {vr(xr+4,4)}, v{vO}, {sX}, 0 offen offset:16")
            vm.issue("X"); vm.issue("X")
        Tr(b + RA)
        M(b)
        if b == 7: stamp(a, 12)
        if b + RA < 18:
            lg.wait(("T", b + RA)); D(b + RA + 3)
    stamp(a, 13)
    a(f"v_lshlrev_b32 v{T}, 4, v1\nv_add_u32 v{T+1}, {s_ring}, v{T}")
    for sg in range(1, 4):
        a(f"""
        s_xor_b32 {s_t0}, {s_g}, {sg}
        s_mul_i32 {s_t0}, {s_t0}, 12288
        s_add_u32 {s_t0}, {s_t0}, {L_RING}
        v_add_u32 v{T+1+sg}, {s_t0}, v{T}
        """)
    for sg in range(1, 4):
        for j in range(4):
            a(f"ds_write_b128 v{T+1}, {vr(vA+16*sg+4*j,4)} offset:{(sg-1)*4096 + j*1024}")
    a("s_waitcnt lgkmcnt(0)\ns_barrier")
    for sg in range(1, 4):
        for j in range(4):
            a(f"ds_read_b128 {vr(vA+16*sg+4*j,4)}, v{T+1+sg} offset:{(sg-1)*4096 + j*1024}"); lg.issue(("F", sg))
    vm.wait("X")
    U = vHB
    for i in range(8):
        a(f"v_lshlrev_b32 v{U+2*i}, 16, v{xr+i}\nv_and_b32 v{U+2*i+1}, 0xffff0000, v{xr+i}")
    for j in range(16): a(f"v_add_f32 v{vA+j}, v{vA+j}, v{U+j}")
    for sg in range(1, 4):
        lg.wait(("F", sg))
        for j in range(16): a(f"v_add_f32 v{vA+j}, v{vA+j}, v{vA+16*sg+j}")
    for j in range(8): a(f"v_cvt_pk_bf16_f32 v{U+j}, v{vA+2*j}, v{vA+2*j+1}")
    a(f"buffer_store_dwordx4 {vr(U,4)}, v{vO}, {sOUT}, 0 offen\nbuffer_store_dwordx4 {vr(U+4,4)}, v{vO}, {sOUT}, 0 offen offset:16")
    endpgm(a)

def build():
    a = Asm()
    vm = Cnt(a, "vmcnt", 63)
    prologue(a, vm)
    if OPT["diag"]: a("s_mov_b32 s101, 0")
    a(f"s_cmp_eq_u32 {s_type}, 0\ns_cbranch_scc1 L_att")
    phase1(a, vm, False, "M_")
    a("L_att:")
    phase1(a, vm, True, "T_")
    phase2(a)
    a("L_done:\ns_endpgm\nL_codeend:")
    body = "\n".join(hazard.fix(a.lines)) + "\n"
    return single(body, 256, 512, 163840)

if __name__ == "__main__":
    out = sys.argv[1]
    for arg in sys.argv[2:]:
        if "=" in arg:
            k, v = arg.split("="); OPT[k] = int(v)
        else: OPT[arg] = True
    open(out, "w").write(build())
```

```python
import sys, struct
from asmlib import *
import hazard

def f32(x): return "0x%08x" % struct.unpack("<I", struct.pack("<f", x))[0]
LOG2E = 1.4426950408889634
OPT = dict(diag=False, prioA=0, prioB=0, pm=3, w2touch=1, share=1)

class Cnt:
    def __init__(self, a, name, mx): self.a, self.name, self.mx, self.q = a, name, mx, []
    def issue(self, tag): self.q.append(tag)
    def wait(self, tag):
        if tag not in self.q: return
        idx = max(i for i, t in enumerate(self.q) if t == tag)
        n = min(len(self.q) - idx - 1, self.mx)
        self.a(f"s_waitcnt {self.name}({n})")
        self.q = self.q[len(self.q) - n:] if n else []
    def wait_all(self):
        self.a(f"s_waitcnt {self.name}(0)"); self.q = []

WS_RB2 = 144 * 2048
WS_STATS = 0x900000
WS_FLAGS = 0x910000
WS_CS = 0x960000
WS_SIZE = 0x1000000
WS_DIAG = 0xA00000
SLOT = 45056
WOFF = 16384
RS = 448
L_KV = 0
KVS = 272
L_RING = 40960
RHI = 49152
L_CSR = 135168
L_HALO = 139264
L_CS = 155648
L_MISC = 162816
HI = 0x20000
CSO = L_CS - HI
CSRO = L_CSR - HI
MISCO = L_MISC - HI
sX, sW, sWS, sW2, sWO, sOUT, sDBG = "s[8:11]", "s[12:15]", "s[16:19]", "s[20:23]", "s[24:27]", "s[28:31]", "s[32:35]"
s_d0, s_d1, s_pfl, s_spin = "s0", "s1", "s6", "s7"
s_w, s_g, s_hs1, s_r, s_c, s_type = "s54", "s55", "s56", "s57", "s58", "s59"
s_stride, s_hs6, s_seq, s_str2, s_str64 = "s60", "s60", "s61", "s62", "s63"
s_wex = "s[64:65]"
s_g4k, s_t0, s_t1, s_t2, s_t3 = "s66", "s67", "s68", "s69", "s70"
s_hst, s_gw, s_th, s_nh = "s71", "s72", "s73", "s74"
s_selL, s_selH = "s75", "s76"
s_cls, s_fst = "s75", "s76"
s_rb2, s_cb, s_hld, s_wq, s_oq, s_ring = "s77", "s78", "s79", "s80", "s81", "s82"
s_row, s_wqp, s_wqm, s_cl, s_so = "s83", "s84", "s85", "s86", "s87"
s_n0, s_n1 = "s88", "s89"
STAMP_REGS = [90, 92, 94, 96, 98, 36, 38, 40, 42, 44, 46, 48, 50, 52]
SPIN_MAX = 20000

def vr(b, n): return f"v[{b}:{b+n-1}]"
def stamp(a, i):
    if OPT["diag"]: a(f"s_memtime s[{STAMP_REGS[i]}:{STAMP_REGS[i]+1}]")
def endpgm(a):
    if OPT["diag"]:
        a(f"""
        s_memtime s[4:5]
        s_waitcnt lgkmcnt(0)
        s_mov_b32 s3, s4
        s_memrealtime s[4:5]
        s_lshl_b32 {s_t0}, s2, 3
        s_add_u32 {s_t0}, {s_t0}, {s_w}
        s_lshl_b32 {s_t0}, {s_t0}, 7
        s_add_u32 {s_t0}, {s_t0}, {hex(WS_DIAG)}
        v_mov_b32 v2, 0
        s_mov_b64 exec, 1
        s_waitcnt lgkmcnt(0)
        """)
        for i, r in enumerate(STAMP_REGS + [3, 100, 4, 101]):
            a(f"v_mov_b32 v3, s{r}\nbuffer_store_dword v3, v2, {sWS}, {s_t0} offen offset:{4*i}")
    a("s_endpgm")
def srd(a, d, lo, hi, size):
    a(f"s_mov_b32 s{d}, s{lo}\ns_mov_b32 s{d+1}, s{hi}\ns_mov_b32 s{d+2}, {hex(size)}\ns_mov_b32 s{d+3}, 0x20000")
def emit(a, x):
    if callable(x): x()
    else: a(x)
MF = "v_mfma_f32_32x32x16_bf16"

vXD0, vXD1, vWD = 3, 4, 5
vLN16 = 6
vINU = 7
vP = 240
vSR = 224
aXR = [[8, 9, 10, 11], [12, 13, 14, 15]]; aWR = [16, 17, 18, 19]; aHR = [20, 21, 22, 23]
aCR = [24, 25, 26, 27]
aHO = 28
aS = [29, 30]; aRS = [31, 32, 33]; aC1 = [34, 35]
aNM = [36, 40, 44]
aT = 48
aFR = 64
aACC = [112 + 16*i for i in range(7)]
bD2 = 2
bFA = 8
bH = [9, 13]; bF = 10; bR = [14, 15]; bO = 0
bT = 16
bST = 32
bNM = 40
bCF = 44

def dma(a, vm, tag, voff, srd_, soff, m0base, m0imm, ex=False):
    a(f"s_add_u32 m0, {m0base}, {m0imm}")
    if ex: a(f"s_mov_b64 exec, {s_wex}")
    a(f"buffer_load_dwordx4 v{voff}, {srd_}, {soff} offen lds")
    if ex: a("s_mov_b64 exec, -1")
    if vm is not None: vm.issue(tag)

def unit_pieces(a, vm, u):
    if u >= 8: return []
    def mk(pre, voff, srd_, soff, m0b, m0i, ex):
        def f():
            if pre: a(pre)
            dma(a, vm, ("U", u), voff, srd_, soff, m0b, m0i, ex)
        return f
    sl = (u % 3) * SLOT
    pre = f"s_bfe_u32 {s_d1}, {s_seq}, {hex(0x40000 + 4*u)}\ns_lshl_b32 {s_d0}, {s_d1}, 7\ns_mul_i32 {s_d1}, {s_d1}, {s_str64}"
    ps = []
    for i in range(4):
        p = pre if i == 0 else (f"s_add_u32 {s_d0}, {s_d0}, 0x4000" if i == 2 else None)
        ps.append(mk(p, (vXD0, vXD1)[i & 1], sX, s_d0, s_g4k, sl + i*1024, False))
        for j in (2*i, 2*i+1):
            p = None if j == 0 else f"s_add_u32 {s_d1}, {s_d1}, {s_str2}"
            ps.append(mk(p, vWD, sW, s_d1, s_gw, sl + WOFF + j*2*RS, True))
    return ps

def wave_reduce(a, v, sdst):
    for sh in (1, 2, 4, 8):
        a(f"v_add_f32_dpp {v}, {v}, {v} row_shr:{sh} row_mask:0xf bank_mask:0xf bound_ctrl:0")
    a(f"v_add_f32_dpp {v}, {v}, {v} row_bcast:15 row_mask:0xa bank_mask:0xf")
    a(f"v_add_f32_dpp {v}, {v}, {v} row_bcast:31 row_mask:0xc bank_mask:0xf")
    a(f"v_readlane_b32 {sdst}, {v}, 63")

def stats_compute(a, b):
    u = b + 4
    for i in range(4):
        a(f"v_lshlrev_b32 v{u+2*i}, 16, v{b+i}\nv_and_b32 v{u+2*i+1}, 0xffff0000, v{b+i}")
    a(f"""
    v_add_f32 v{b}, v{u}, v{u+1}
    v_add_f32 v{b+1}, v{u+2}, v{u+3}
    v_add_f32 v{b+2}, v{u+4}, v{u+5}
    v_add_f32 v{b+3}, v{u+6}, v{u+7}
    v_add_f32 v{b}, v{b}, v{b+1}
    v_add_f32 v{b+2}, v{b+2}, v{b+3}
    v_add_f32 v{b}, v{b}, v{b+2}
    """)
    wave_reduce(a, f"v{b}", s_t0)
    a(f"v_mov_b32 v{b+1}, {f32(1.0/512)}\nv_mul_f32 v{b+2}, {s_t0}, v{b+1}")
    for i in range(8): a(f"v_sub_f32 v{u+i}, v{u+i}, v{b+2}")
    a(f"v_mul_f32 v{b}, v{u}, v{u}\nv_mul_f32 v{b+3}, v{u+1}, v{u+1}")
    for i in range(2, 8, 2): a(f"v_fmac_f32 v{b}, v{u+i}, v{u+i}\nv_fmac_f32 v{b+3}, v{u+i+1}, v{u+i+1}")
    a(f"v_add_f32 v{b}, v{b}, v{b+3}")
    wave_reduce(a, f"v{b}", s_t0)
    a(f"""
    v_mul_f32 v{b}, {s_t0}, v{b+1}
    v_cvt_pk_bf16_f32 v{b}, v{b}, v{b}
    v_and_b32 v{b}, 0xffff0000, v{b}
    v_add_f32 v{b}, {f32(1e-5)}, v{b}
    v_cvt_pk_bf16_f32 v{b}, v{b}, v{b}
    v_and_b32 v{b}, 0xffff0000, v{b}
    v_sqrt_f32 v{b}, v{b}
    v_cvt_pk_bf16_f32 v{b}, v{b+2}, v{b}
    s_lshl_b32 {s_t0}, {s_w}, 2
    s_add_u32 {s_t0}, {s_t0}, {L_MISC}
    v_mov_b32 v{b+1}, {s_t0}
    ds_write_b32 v{b+1}, v{b}
    """)

def nib(l): return sum(v << (4*i) for i, v in enumerate(l))
SEQS = [nib([2,0,1,3,6,4,5,7]), nib([0,3,1,2,4,7,5,6]), nib([1,0,4,2,3,5,6,7]), nib([0,1,2,5,3,4,6,7])]

def prologue(a):
    T = vP
    a(f"""
    s_cmp_ge_u32 s2, 256
    s_cbranch_scc1 L_done
    """)
    stamp(a, 0)
    if OPT["diag"]: a("s_memrealtime s[100:101]")
    a(f"""
    s_load_dwordx16 s[36:51], s[0:1], 0
    s_load_dwordx2 s[52:53], s[0:1], 64
    s_getpc_b64 s[4:5]
    L_pc:
    s_lshr_b32 s3, s2, 3
    s_lshl_b32 s3, s3, 5
    v_lshrrev_b32 v2, 4, v0
    v_and_b32 v1, 3, v0
    v_add3_u32 v2, v2, v1, s3
    v_and_b32 v2, 0x1ff, v2
    v_lshlrev_b32 v2, 7, v2
    v_min_u32 v2, L_codeend-L_pc-4, v2
    s_mov_b64 exec, 15
    global_load_dword v{T+15}, v2, s[4:5]
    s_mov_b64 exec, -1
    v_lshrrev_b32 v2, 6, v0
    v_and_b32 v1, 63, v0
    v_readfirstlane_b32 {s_w}, v2
    s_bfe_u32 {s_r}, s2, 0x10002
    s_lshl_b32 {s_r}, {s_r}, 3
    s_bfe_u32 s3, s2, 0x30003
    s_add_u32 {s_r}, {s_r}, s3
    s_and_b32 {s_c}, s2, 3
    s_lshl_b32 {s_t0}, {s_c}, 1
    s_bfe_u32 {s_cl}, s2, 0x10006
    s_add_u32 {s_c}, {s_t0}, {s_cl}
    s_lshr_b32 {s_type}, s2, 7
    s_and_b32 {s_g}, {s_w}, 3
    s_lshl_b32 {s_g4k}, {s_g}, 12
    s_mul_i32 {s_gw}, {s_g}, {16*RS}
    s_lshr_b32 {s_cls}, s2, 6
    s_add_u32 {s_cls}, {s_cls}, s3
    s_mov_b32 {s_seq}, {hex(SEQS[0])}
    s_mov_b32 {s_t1}, {hex(SEQS[2])}
    s_bitcmp1_b32 {s_cls}, 0
    s_cselect_b32 {s_seq}, {hex(SEQS[1])}, {s_seq}
    s_cselect_b32 {s_t1}, {hex(SEQS[3])}, {s_t1}
    s_bitcmp1_b32 {s_cls}, 1
    s_cselect_b32 {s_seq}, {s_t1}, {s_seq}
    s_and_b32 {s_t1}, s2, 4
    s_add_u32 {s_t0}, {s_t0}, {s_t1}
    s_and_b32 {s_t0}, {s_t0}, 7
    s_mul_i32 {s_t0}, {s_t0}, 0x11111111
    s_add_u32 {s_seq}, {s_seq}, {s_t0}
    s_and_b32 {s_seq}, {s_seq}, 0x77777777
    v_lshrrev_b32 v{T}, 3, v1
    v_lshrrev_b32 v{T+1}, 4, v1
    v_and_b32 v{T+2}, 7, v1
    v_xor_b32 v{T+2}, v{T+2}, v{T+1}
    v_lshlrev_b32 v{T+2}, 4, v{T+2}
    v_lshl_or_b32 v{T+8}, v{T}, 10, v{T+2}
    s_lshl_b32 {s_t0}, {s_r}, 17
    s_lshl_b32 {s_t1}, {s_g}, 15
    s_add_u32 {s_t1}, {s_t1}, {s_t0}
    v_add_u32 v{vXD0}, {s_t1}, v{T+8}
    v_add_u32 v{vXD1}, 0x2000, v{vXD0}
    v_xor_b32 v{vXD1}, 64, v{vXD1}
    s_mul_i32 {s_t1}, {s_c}, 448
    s_lshl_b32 {s_t3}, {s_c}, 7
    s_movk_i32 {s_stride}, 3584
    s_mov_b32 s64, -1
    s_mov_b32 s65, 0x00ffffff
    s_cmp_eq_u32 {s_type}, 0
    s_cselect_b32 {s_stride}, 3072, {s_stride}
    s_cselect_b32 {s_t1}, {s_t3}, {s_t1}
    s_cselect_b32 {s_t2}, 10, 7
    s_cselect_b32 s64, 0xf0ffffff, s64
    s_cselect_b32 s65, 0x000fffff, s65
    s_lshl_b32 {s_str64}, {s_stride}, 6
    s_lshl_b32 {s_str2}, {s_stride}, 1
    v_cmp_lt_u32 vcc, 27, v1
    v_subrev_u32 v{T+3}, 28, v1
    s_lshl_b32 {s_t0}, {s_g}, 4
    s_mul_i32 {s_t0}, {s_t0}, {s_stride}
    s_add_u32 {s_t1}, {s_t1}, {s_t0}
    v_mov_b32 v{T+4}, {s_stride}
    v_cndmask_b32 v{T+3}, v1, v{T+3}, vcc
    v_cndmask_b32 v{T+4}, 0, v{T+4}, vcc
    v_lshrrev_b32 v{T+5}, 3, v{T+3}
    v_lshlrev_b32 v{T+5}, {s_t2}, v{T+5}
    v_and_b32 v{T+3}, 7, v{T+3}
    v_lshl_add_u32 v{T+3}, v{T+3}, 4, v{T+5}
    v_add3_u32 v{vWD}, v{T+3}, v{T+4}, {s_t1}
    v_lshlrev_b32 v{vLN16}, 4, v1
    s_lshl_b32 {s_row}, {s_r}, 1
    s_add_u32 {s_row}, {s_row}, {s_type}
    s_lshl_b32 {s_row}, {s_row}, 3
    s_add_u32 {s_row}, {s_row}, {s_c}
    s_lshl_b32 {s_row}, {s_row}, 3
    s_add_u32 {s_t3}, {s_row}, {s_w}
    s_lshl_b32 {s_t3}, {s_t3}, 10
    s_mov_b32 s10, 0x200000
    s_mov_b32 s11, 0x20000
    s_lshl_b32 s14, {s_stride}, 9
    s_mov_b32 s15, 0x20000
    s_cmp_eq_u32 {s_type}, 0
    s_waitcnt lgkmcnt(0)
    """)
    stamp(a, 1)
    a(f"""
    s_mov_b32 s8, s36
    s_mov_b32 s9, s37
    s_cselect_b32 s12, s38, s44
    s_cselect_b32 s13, s39, s45
    buffer_load_dwordx4 {vr(vSR,4)}, v{vLN16}, {sX}, {s_t3} offen
    s_cmp_ge_u32 {s_w}, 4
    s_cbranch_scc1 L_b0
    """)
    for f in unit_pieces(a, None, 0): f()
    a("L_b0:")
    srd(a, 32, 50, 51, 256)
    a(f"""
    s_cmp_eq_u32 s2, 0
    s_cselect_b32 s3, {s_w}, 0
    s_cmp_eq_u32 s3, 4
    s_cbranch_scc0 L_nonz
    s_memrealtime s[4:5]
    s_waitcnt lgkmcnt(0)
    s_bitset1_b32 s5, 31
    v_mov_b32 v{T+2}, s4
    v_mov_b32 v{T+3}, s5
    v_mov_b32 v{T+4}, 0
    s_mov_b64 exec, 1
    buffer_store_dwordx2 {vr(T+2,2)}, v{T+4}, {sDBG}, 0 offen sc1
    s_mov_b64 exec, -1
    L_nonz:
    """)
    srd(a, 16, 52, 53, WS_SIZE)
    srd(a, 20, 46, 47, 1792*512*2)
    srd(a, 24, 40, 41, 512*512*2)
    srd(a, 28, 48, 49, 2048*512*2)
    if OPT["diag"]: a("s_mov_b32 s101, 0")
    a(f"""
    v_bfe_u32 v{T+9}, v1, 2, 2
    v_lshrrev_b32 v{T+10}, 5, v1
    v_and_b32 v{vINU}, 1, v1
    v_lshlrev_b32 v{vINU}, 5, v{vINU}
    v_and_b32 v{T+2}, 16, v1
    v_or_b32 v{vINU}, v{vINU}, v{T+2}
    v_and_b32 v{T+2}, 2, v1
    v_lshl_or_b32 v{vINU}, v{T+2}, 2, v{vINU}
    v_lshl_add_u32 v{T+11}, v{T+10}, 3, v{T+9}
    v_mul_u32_u24 v{T+13}, {RS}, v{T+11}
    v_add_u32 v{T+13}, v{T+13}, v{vINU}
    v_add_u32 v{T+13}, {WOFF}, v{T+13}
    s_lshr_b32 {s_th}, {s_g}, 1
    s_and_b32 {s_nh}, {s_g}, 1
    s_lshl_b32 {s_t0}, {s_r}, 1
    s_add_u32 {s_t0}, {s_t0}, {s_th}
    s_mul_i32 {s_hst}, {s_t0}, {WS_RB2}
    s_lshr_b32 {s_t1}, {s_c}, 1
    s_mul_i32 {s_t2}, {s_t1}, {36*2048}
    s_add_u32 {s_hst}, {s_hst}, {s_t2}
    s_lshl_b32 {s_t3}, {s_nh}, 10
    s_add_u32 {s_hst}, {s_hst}, {s_t3}
    s_lshl_b32 {s_t2}, {s_cl}, 12
    s_add_u32 {s_hs6}, {s_hst}, {s_t2}
    s_lshl_b32 {s_t2}, {s_cl}, 1
    s_add_u32 {s_t2}, {s_t2}, {s_nh}
    s_lshl_b32 {s_t3}, {s_t2}, 12
    s_add_u32 {s_hst}, {s_hst}, {s_t3}
    s_xor_b32 {s_hs1}, {s_hst}, 0x400
    s_lshl_b32 {s_pfl}, {s_t0}, 2
    s_add_u32 {s_pfl}, {s_pfl}, {s_t1}
    s_lshl_b32 {s_pfl}, {s_pfl}, 1
    s_add_u32 {s_pfl}, {s_pfl}, {s_type}
    s_lshl_b32 {s_pfl}, {s_pfl}, 7
    s_add_u32 {s_pfl}, {s_pfl}, {s_t2}
    s_lshl_b32 {s_pfl}, {s_pfl}, 3
    s_add_u32 {s_pfl}, {s_pfl}, {hex(WS_FLAGS)}
    s_mul_i32 {s_t0}, {s_g}, 12288
    s_cmp_eq_u32 {s_g}, 3
    s_cselect_b32 {s_t0}, {L_HALO}, {s_t0}
    v_add_u32 v{T+14}, {s_t0}, v{vLN16}
    s_cmp_ge_u32 {s_w}, 4
    s_cbranch_scc1 L_B
    """)

def flag_store(stage, t):
    return [f"v_mov_b32 v{t}, {s_n0}", f"v_mov_b32 v{t+1}, {s_n1}", f"v_mov_b32 v{t+2}, 0",
            "s_mov_b64 exec, 1\n" + f"buffer_store_dwordx2 {vr(t,2)}, v{t+2}, {sWS}, {s_pfl} offen offset:{stage*128} sc1\n" + "s_mov_b64 exec, -1"]
def derive(src, nm, sd):
    return [f"v_and_b32 v{sd}, 0xffff0000, v{src}", f"v_and_b32 v{nm}, 0xffff, v{src}", f"v_xor_b32 v{nm}, 0x8000, v{nm}",
            f"v_lshl_or_b32 v{nm}, v{nm}, 16, v{nm}", f"v_mov_b32 v{nm+1}, v{nm}", f"v_mov_b32 v{nm+2}, v{nm}", f"v_mov_b32 v{nm+3}, v{nm}"]
def lds_signal(a, t, off):
    a(f"""
    v_mov_b32 v{t}, {HI}
    v_mov_b32 v{t+1}, 1
    s_mov_b64 exec, 1
    ds_add_u32 v{t}, v{t+1} offset:{MISCO+off}
    s_mov_b64 exec, -1
    """)
def lds_wait(a, t, off, count, lbl):
    a(f"""
    v_mov_b32 v{t}, {HI}
    s_mov_b32 {s_spin}, 0
    {lbl}:
    ds_read_b32 v{t+1}, v{t} offset:{MISCO+off}
    s_waitcnt lgkmcnt(0)
    v_readfirstlane_b32 s3, v{t+1}
    s_cmp_ge_u32 s3, {count}
    s_cbranch_scc1 {lbl}k
    s_add_u32 {s_spin}, {s_spin}, 1
    s_cmp_ge_u32 {s_spin}, 0x400000
    s_cbranch_scc1 {lbl}k
    s_nop 7
    s_branch {lbl}
    {lbl}k:
    """)
def silu_ops(acc, c1, sd, t):
    ops = []
    for h in range(2):
        b = acc + 8*h
        for j in range(8): ops.append(f"v_mul_f32 v{t+j}, v{b+j}, v{c1}")
        for j in range(8): ops.append(f"v_exp_f32 v{t+j}, v{t+j}")
        for j in range(8): ops.append(f"v_fma_f32 v{t+j}, v{t+j}, v{sd}, v{sd}")
        for j in range(8): ops.append(f"v_rcp_f32 v{t+j}, v{t+j}")
        for j in range(8): ops.append(f"v_mul_f32 v{b+j}, v{b+j}, v{t+j}")
        for j in range(4): ops.append(f"v_cvt_pk_bf16_f32 v{b+j}, v{b+2*j}, v{b+2*j+1}")
    return ops
def hstore(b, h):
    return f"buffer_store_dwordx4 {vr(b,4)}, v{vLN16}, {sWS}, {s_so} offen offset:{h*2048} sc1"

POS = {"w1": 0, "w2": 16384, "w0": 32768, "w3": 49152, "att": 57344}
def blk(p):
    if p < 12:
        e, cl, nh = p >> 2, (p >> 1) & 1, p & 1
        base, tau = [(s_wqp, 2 + nh), (s_wqm, 4 + nh), (s_wq, nh)][e]
        return sW2, base, 224*cl + 32*tau
    if p < 14: return sW2, s_wq, 224*(p - 12) + 192
    cl, nh = ((p - 14) >> 1) & 1, p & 1
    return sWO, s_oq, 64*cl + 32*nh

def waveA_setup(a):
    T = vP
    if OPT["prioA"]: a(f"s_setprio {OPT['prioA']}")
    a(f"""
    s_cmp_eq_u32 {s_type}, 0
    s_cbranch_scc0 L_nohalo
    s_lshl_b32 {s_t0}, {s_r}, 17
    s_sub_u32 {s_t0}, {s_t0}, 0x4000
    v_add_u32 v{T+3}, {s_t0}, v{T+8}
    v_add_u32 v{T+4}, 0x2000, v{T+3}
    v_xor_b32 v{T+4}, 64, v{T+4}
    s_lshl_b32 {s_t1}, {s_g}, 3
    s_lshr_b32 {s_t1}, {s_seq}, {s_t1}
    s_and_b32 {s_t2}, {s_t1}, 15
    s_lshl_b32 {s_t2}, {s_t2}, 7
    s_bfe_u32 {s_t1}, {s_t1}, 0x40004
    s_lshl_b32 {s_t1}, {s_t1}, 7
    """)
    dma(a, None, None, T+3, sX, s_t2, s_g4k, L_HALO)
    dma(a, None, None, T+4, sX, s_t2, s_g4k, L_HALO + 1024)
    dma(a, None, None, T+3, sX, s_t1, s_g4k, L_HALO + 2048)
    dma(a, None, None, T+4, sX, s_t1, s_g4k, L_HALO + 3072)
    a("L_nohalo:")
    a(f"""
    v_bfe_u32 v{T+12}, v1, 1, 3
    v_xor_b32 v{T+12}, v{T+12}, v{T+10}
    v_and_b32 v{T+2}, 31, v1
    v_lshl_add_u32 v{T+4}, v{T+2}, 7, {s_g4k}
    v_and_b32 v{T+3}, 15, v1
    v_lshlrev_b32 v{T+3}, 7, v{T+3}
    v_add_u32 v{T+3}, {hex(L_HALO)}, v{T+3}
    """)
    for ks in range(4):
        a(f"""
        v_xor_b32 v{T+5}, {2*ks}, v{T+12}
        v_lshl_add_u32 v{aXR[0][ks]}, v{T+5}, 4, v{T+4}
        v_xor_b32 v{aXR[1][ks]}, 0x1000, v{aXR[0][ks]}
        v_lshl_add_u32 v{aHR[ks]}, v{T+5}, 4, v{T+3}
        """)
    a(f"""
    s_lshl_b32 {s_t0}, {s_nh}, 6
    s_lshl_b32 {s_t1}, {s_th}, 7
    v_add_u32 v{aWR[0]}, {s_t0}, v{T+13}
    s_add_u32 {s_t2}, {s_t1}, 128
    v_add_u32 v{aWR[1]}, {s_t2}, v{aWR[0]}
    s_sub_u32 {s_t3}, 256, {s_t1}
    v_add_u32 v{aWR[2]}, {s_t3}, v{aWR[0]}
    v_add_u32 v{aWR[3]}, 384, v{T+13}
    v_add_u32 v{aCR[3]}, {L_CS}, v{vLN16}
    s_lshl_b32 {s_t0}, {s_t0}, 4
    s_lshl_b32 {s_t2}, {s_t2}, 4
    s_lshl_b32 {s_t3}, {s_t3}, 4
    v_add_u32 v{aCR[0]}, {s_t0}, v{aCR[3]}
    v_add_u32 v{aCR[1]}, {s_t2}, v{aCR[0]}
    v_add_u32 v{aCR[2]}, {s_t3}, v{aCR[0]}
    v_add_u32 v{aCR[3]}, 6144, v{aCR[3]}
    v_mov_b32 v{aHO}, v{T+14}
    s_waitcnt vmcnt(12)
    """)
    stats_compute(a, vSR)
    a("s_waitcnt vmcnt(0) lgkmcnt(0)\ns_barrier")
    stamp(a, 2)
    a(f"s_cmp_eq_u32 {s_type}, 0\ns_cbranch_scc1 L_A_att")

def waveA(a, att, P):
    lg = Cnt(a, "lgkmcnt", 15)
    def fr(t, i): return aFR + (t % 2)*24 + 4*i
    def rd(txt, tag):
        def f(): a(txt); lg.issue(tag)
        return f
    def read_ops(t):
        if t == 32:
            order = [(4, 2), (5, 3), (3, 1), (2, 0)] if not att else [(3, 1), (4, 2), (2, 0)]
            return [rd(f"ds_read_b128 {vr(fr(t,i),4)}, v{aCR[m]}", (t, i)) for i, m in order]
        s, ks = divmod(t, 4)
        ops = []
        def wfrag(i, m):
            return [rd(f"ds_read_b64_tr_b16 {vr(fr(t,i)+2*b,2)}, v{aWR[m]} offset:{(16*ks+4*b)*RS}", (t, i)) for b in range(2)]
        ops.append(rd(f"ds_read_b128 {vr(fr(t,0),4)}, v{aXR[0][ks]}", (t, 0)))
        ops += wfrag(2, 0)
        ops.append(rd(f"ds_read_b128 {vr(fr(t,1),4)}, v{aXR[1][ks]}", (t, 1)))
        ops += wfrag(3, 1) + wfrag(4, 2)
        if att: ops.append(rd(f"ds_read_b128 {vr(fr(t,5),4)}, v{aHR[ks]} offset:{s*2048}", (t, 5)))
        else: ops += wfrag(5, 3)
        return ops
    def adv(regs, s):
        d = SLOT if (s + 1) % 3 else -2*SLOT
        return [f"v_add_u32 v{r}, {hex(d & 0xffffffff)}, v{r}" for r in regs]
    MM = [(2, 0), (2, 1), (3, 0), (3, 1), (4, 0), (4, 1), (3, 5) if att else (5, 0)]
    for f in read_ops(0): f()
    for t in range(32):
        s, ks = divmod(t, 4)
        rds = read_ops(t + 1)
        post = adv([aXR[0][(t+1) % 4], aXR[1][(t+1) % 4]], (t+1)//4) if t + 1 < 28 else []
        if ks == 2 and s < 7: post += adv(aWR[:3] if att else aWR, s)
        if t == 0: post += adv([aXR[0][0], aXR[1][0]], 0)
        if t == 28:
            post.append(f"""
            v_and_b32 v{aT}, 31, v1
            s_lshl_b32 {s_t0}, {s_g}, 7
            s_add_u32 {s_t0}, {s_t0}, {HI}
            v_lshl_add_u32 v{aT}, v{aT}, 2, {s_t0}""")
            post.append(f"v_xor_b32 v{aT+6}, 0x80, v{aT}\nv_mov_b32 v{aT+7}, {HI}")
            post.append(rd(f"ds_read_b32 v{aT+1}, v{aT} offset:{MISCO+128}", "S"))
            post.append(rd(f"ds_read_b32 v{aT+2}, v{aT+6} offset:{MISCO+128}", "S"))
            post.append(rd(f"ds_read_b64 {vr(aT+4,2)}, v{aT+7} offset:{MISCO+64}", "S"))
            if att:
                post.append(f"v_and_b32 v{aT+6}, 15, v1\nv_lshl_add_u32 v{aT+6}, v{aT+6}, 2, v{aT+7}")
                post.append(rd(f"ds_read_b32 v{aT+3}, v{aT+6} offset:{MISCO+128+512}", "S"))
        if t == 29:
            post.append(lambda: lg.wait("S"))
            post += derive(aT+1, aNM[0], aS[0]) + [f"v_readfirstlane_b32 {s_n0}, v{aT+4}", f"v_readfirstlane_b32 {s_n1}, v{aT+5}"]
        if t == 30:
            post += derive(aT+2, aNM[1], aS[1]) + [f"v_rcp_f32 v{aRS[0]}, v{aS[0]}", f"v_rcp_f32 v{aRS[1]}, v{aS[1]}"]
        if t == 31:
            k1 = f32(0.25*LOG2E if att else -LOG2E)
            post += [f"v_mul_f32 v{aC1[0]}, {k1}, v{aRS[0]}", f"v_mul_f32 v{aC1[1]}, {k1}, v{aRS[1]}"]
            if att: post += derive(aT+3, aNM[2], aRS[2]) + [f"v_rcp_f32 v{aRS[2]}, v{aRS[2]}"]
        for m, (wi, xi) in enumerate(MM):
            bar = (m == 0 and ks == 3 and s < 7)
            if bar: lg.wait_all()
            lg.wait((t, wi)); lg.wait((t, xi))
            c = "0" if t == 0 else vr(aACC[m], 16)
            a(f"{MF} {vr(aACC[m],16)}, {vr(fr(t,wi),4)}, {vr(fr(t,xi),4)}, {c}")
            if bar:
                a("s_barrier")
                if s == 3: stamp(a, 3)
                if s == 6: stamp(a, 4)
            n = 0
            for _ in range(3):
                if rds: rds.pop(0)(); n += 1
            if not rds:
                for _ in range(4 - n if m < 6 else 99):
                    if post: emit(a, post.pop(0))
    for m in ([4, 5, 6, 2, 3, 0, 1] if not att else [2, 3, 6, 4, 5, 0, 1]):
        wi, xi = MM[m]
        lg.wait((32, wi))
        a(f"{MF} {vr(aACC[m],16)}, {vr(fr(32,wi),4)}, {vr(aNM[{0: 0, 1: 1, 5: 2}[xi]],4)}, {vr(aACC[m],16)}")
    stamp(a, 5)
    if not att:
        def tile(acc, x, base, off, extra=None, flag=None):
            ops = silu_ops(acc, aC1[x], aS[x], aT)
            k = 0
            for op in ops:
                a(op); k += 1
                if extra and k % 4 == 0: emit(a, extra.pop(0))
            if flag:
                a(f"s_waitcnt vmcnt({flag[1]})")
                for op in flag_store(flag[0], aT+12): a(op)
            a(f"s_add_u32 {s_so}, {base}, {off}")
            for h in range(2): a(hstore(acc + 8*h, h))
        if OPT["share"]:
            for i, m in enumerate((4, 5, 6)):
                for j in range(4): a(f"ds_write_b128 v{aHO}, {vr(aACC[m]+4*j,4)} offset:{i*4096 + j*1024}")
            lds_signal(a, aT+8, 96)
            tile(aACC[2], 0, s_hst, POS["w1"])
            tile(aACC[3], 1, s_hs1, POS["w1"])
            stamp(a, 6)
            tile(aACC[0], 0, s_hst, POS["w0"])
            tile(aACC[1], 1, s_hs1, POS["w0"], flag=(1, 2))
            stamp(a, 8)
            a("s_waitcnt vmcnt(0)")
            for op in flag_store(3, aT+12): a(op)
        else:
            lds_signal(a, aT+8, 96)
            tile(aACC[2], 0, s_hst, POS["w1"])
            tile(aACC[3], 1, s_hs1, POS["w1"])
            stamp(a, 6)
            tile(aACC[4], 0, s_hst, POS["w2"])
            tile(aACC[5], 1, s_hs1, POS["w2"], flag=(1, 2))
            tile(aACC[0], 0, s_hst, POS["w0"])
            tile(aACC[1], 1, s_hs1, POS["w0"], flag=(2, 2))
            tile(aACC[6], 0, s_hs6, POS["w3"])
            stamp(a, 8)
            a("s_waitcnt vmcnt(2)")
            for op in flag_store(3, aT+12): a(op)
            a("s_waitcnt vmcnt(1)")
            for op in flag_store(4, aT+12): a(op)
        endpgm(a)
        return
    lds_signal(a, aT+8, 96)
    vKV = [aT+4, aT+5]; vTOK = [aT+6, aT+7]; vNEG = aT+3
    a(f"""
    v_and_b32 v{vTOK[0]}, 31, v1
    s_lshl_b32 {s_t0}, {s_g}, 5
    v_add_u32 v{vTOK[0]}, {s_t0}, v{vTOK[0]}
    v_xor_b32 v{vTOK[1]}, 32, v{vTOK[0]}
    v_and_b32 v{aT+2}, 32, v1
    s_lshl_b32 {s_t1}, {s_nh}, 6
    s_add_u32 {s_t1}, {s_t1}, {L_KV + 2*KVS}
    v_add_u32 v{aT+2}, {s_t1}, v{aT+2}
    v_mul_u32_u24 v{vKV[0]}, {KVS}, v{vTOK[0]}
    v_mul_u32_u24 v{vKV[1]}, {KVS}, v{vTOK[1]}
    v_add_u32 v{vKV[0]}, v{vKV[0]}, v{aT+2}
    v_add_u32 v{vKV[1]}, v{vKV[1]}, v{aT+2}
    s_lshl_b32 {s_t0}, {s_r}, 7
    v_add_u32 v{vTOK[0]}, {s_t0}, v{vTOK[0]}
    v_add_u32 v{vTOK[1]}, {s_t0}, v{vTOK[1]}
    s_lshl_b32 {s_t0}, {s_th}, 7
    s_xor_b32 {s_t1}, {s_t0}, 128
    v_add_u32 v8, {s_t0}, v{vKV[0]}
    v_add_u32 v9, {s_t0}, v{vKV[1]}
    v_add_u32 v10, {s_t1}, v{vKV[0]}
    v_add_u32 v11, {s_t1}, v{vKV[1]}
    v_and_b32 v12, 15, v1
    v_mul_u32_u24 v12, {KVS}, v12
    v_add3_u32 v12, v12, v{aT+2}, {s_t0}
    v_subrev_u32 v12, {2*KVS}, v12
    s_mov_b32 {s_selL}, 0x05040100
    s_mov_b32 {s_selH}, 0x07060302
    v_mov_b32 v{vNEG}, {f32(-1e30)}
    """)
    def kvout(acc, rs, addr, off):
        for j in range(16): a(f"v_mul_f32 v{acc+j}, v{acc+j}, v{rs}")
        for j in range(8): a(f"v_cvt_pk_bf16_f32 v{acc+j}, v{acc+2*j}, v{acc+2*j+1}")
        a(f"ds_write_b128 v{addr}, {vr(acc,4)} offset:{off}\nds_write_b128 v{addr}, {vr(acc+4,4)} offset:{off+16}")
    kvout(aACC[2], aRS[0], 8, 14*KVS); kvout(aACC[3], aRS[1], 9, 14*KVS); kvout(aACC[6], aRS[2], 12, 0)
    kvout(aACC[4], aRS[0], 10, 14*KVS); kvout(aACC[5], aRS[1], 11, 14*KVS)
    lds_signal(a, aT, 100)
    for x in range(2):
        q = aACC[x]
        for j in range(8): a(f"v_cvt_pk_bf16_f32 v{q+j}, v{q+2*j}, v{q+2*j+1}")
    stamp(a, 6)
    lds_wait(a, aT+12, 100, 4, P + "c1")
    stamp(a, 7)
    lg.q = []
    K = 144; V0 = 64
    def Vr(j): return V0 + 8*j if j < 6 else 208 + 8*(j-6)
    L = 8; Pp = 16; TT = 20; O = 224
    for x in range(2):
        kv = vKV[x]
        for j in range(8):
            for hh in range(2):
                a(f"ds_read_b128 {vr(K+8*j+4*hh,4)}, v{kv} offset:{(14-2*j)*KVS + 16*hh}"); lg.issue(("K", j))
                if len(lg.q) > 14: lg.wait(lg.q[1])
        q = aACC[x]
        a(f"v_mov_b32 v{L}, 0")
        for j in range(1, 8):
            a(f"v_cmp_gt_u32 vcc, {2*j}, v{vTOK[x]}\nv_cndmask_b32 v{L+j}, 0, v{vNEG}, vcc")
        for j in range(8):
            lg.wait(("K", j))
            for hh in range(2):
                a(f"ds_read_b128 {vr(Vr(j)+4*hh,4)}, v{kv} offset:{(14-2*j)*KVS + 128 + 16*hh}"); lg.issue(("V", j))
                if len(lg.q) > 14: lg.wait(lg.q[1])
            for i in range(8): a(f"v_dot2c_f32_bf16 v{L+j}, v{q+i}, v{K+8*j+i}")
        a(f"""
        v_max3_f32 v{TT}, v{L}, v{L+1}, v{L+2}
        v_max3_f32 v{TT+1}, v{L+3}, v{L+4}, v{L+5}
        v_max3_f32 v{TT}, v{TT}, v{L+6}, v{L+7}
        v_max_f32 v{TT}, v{TT}, v{TT+1}
        v_mul_f32 v{TT}, v{TT}, v{aC1[x]}
        """)
        for j in range(8): a(f"v_fma_f32 v{L+j}, v{L+j}, v{aC1[x]}, -v{TT}")
        for j in range(8): a(f"v_exp_f32 v{L+j}, v{L+j}")
        a(f"""
        v_add_f32 v{TT}, v{L}, v{L+1}
        v_add_f32 v{TT+1}, v{L+2}, v{L+3}
        v_add_f32 v{TT+2}, v{L+4}, v{L+5}
        v_add_f32 v{TT+3}, v{L+6}, v{L+7}
        v_add_f32 v{TT}, v{TT}, v{TT+1}
        v_add_f32 v{TT+2}, v{TT+2}, v{TT+3}
        v_add_f32 v{TT}, v{TT}, v{TT+2}
        v_rcp_f32 v{TT}, v{TT}
        """)
        for j in range(8): a(f"v_mul_f32 v{L+j}, v{L+j}, v{TT}")
        for j in range(4): a(f"v_cvt_pk_bf16_f32 v{Pp+j}, v{L+2*j}, v{L+2*j+1}")
        for j in range(16): a(f"v_mov_b32 v{O+j}, 0")
        for jp in range(4):
            lg.wait(("V", 2*jp+1))
            va, vb = Vr(2*jp), Vr(2*jp+1)
            for i in range(8):
                a(f"v_perm_b32 v{K+2*i}, v{vb+i}, v{va+i}, {s_selL}\nv_perm_b32 v{K+2*i+1}, v{vb+i}, v{va+i}, {s_selH}")
            for i in range(16): a(f"v_dot2c_f32_bf16 v{O+i}, v{K+i}, v{Pp+jp}")
        for j in range(8): a(f"v_cvt_pk_bf16_f32 v{q+8+j}, v{O+2*j}, v{O+2*j+1}")
        a(f"s_add_u32 {s_so}, {(s_hst, s_hs1)[x]}, {POS['att']}")
        for h in range(2): a(hstore(q+8+4*h, h))
        if x == 0: stamp(a, 8)
    a("s_waitcnt vmcnt(0)")
    for op in flag_store(1, aT+12): a(op)
    endpgm(a)

def waveB(a):
    T = vP
    vm = Cnt(a, "vmcnt", 63); lg = Cnt(a, "lgkmcnt", 15)
    HB, WB = 3, 8
    vHB, vWB, vA = 16, 64, 192
    bCR, bHO = 11, 12
    a("L_B:")
    if OPT["prioB"]: a(f"s_setprio {OPT['prioB']}")
    u1 = unit_pieces(a, vm, 1)
    for f in u1[:3]: f()
    a(f"""
    s_and_b32 {s_rb2}, s2, 7
    s_lshl_b32 {s_rb2}, {s_rb2}, 2
    s_bfe_u32 s3, s2, 0x20003
    s_add_u32 {s_rb2}, {s_rb2}, s3
    s_lshr_b32 {s_cb}, s2, 5
    v_lshrrev_b32 v{T+6}, 2, v1
    v_xor_b32 v{T+6}, v{T+6}, v{T+1}
    v_and_b32 v{T+6}, 1, v{T+6}
    v_and_b32 v{T+5}, 3, v1
    v_lshlrev_b32 v{bFA}, 3, v{T+5}
    v_lshlrev_b32 v{T+5}, 4, v{T+5}
    v_lshl_or_b32 v{T+6}, v{T+6}, 6, v{T+5}
    s_lshl_b32 {s_t3}, {s_cb}, 7
    v_lshl_or_b32 v{bD2}, v{T}, 10, v{T+6}
    v_add_u32 v{bD2}, {s_t3}, v{bD2}
    s_mul_i32 {s_wq}, {s_g}, {448*1024}
    s_and_b32 {s_t3}, {s_rb2}, 1
    s_lshl_b32 {s_t3}, {s_t3}, 16
    s_add_u32 {s_wqp}, {s_wq}, {s_t3}
    s_sub_u32 {s_wqm}, {s_wq}, {s_t3}
    s_lshl_b32 {s_oq}, {s_g}, 17
    s_mul_i32 {s_ring}, {s_g}, 12288
    s_add_u32 {s_ring}, {s_ring}, {L_RING}
    s_and_b32 {s_cls}, {s_cls}, 3
    s_cmp_eq_u32 {s_cls}, 1
    s_cselect_b32 {s_cls}, 1, 0
    s_mul_i32 {s_t3}, {s_cls}, {SLOT}
    s_add_u32 {s_t3}, {s_t3}, {s_gw}
    s_and_b32 {s_t2}, {s_r}, 4
    s_lshl_b32 {s_t2}, {s_t2}, 6
    s_add_u32 {s_t3}, {s_t3}, {s_t2}
    v_add_u32 v{bCR}, {s_t3}, v{T+13}
    v_mov_b32 v{bHO}, v{T+14}
    v_lshl_add_u32 v{T+3}, v{T+10}, 4, v{T+9}
    v_lshl_add_u32 v{T+2}, v{T+3}, 7, v{vINU}
    v_lshrrev_b32 v{T+3}, 1, v{T+9}
    v_xor_b32 v{T+3}, {s_th}, v{T+3}
    v_lshl_add_u32 v{T+2}, v{T+3}, 6, v{T+2}
    v_add_u32 v{bR[0]}, {s_ring}, v{T+2}
    v_xor_b32 v{bR[1]}, 64, v{bR[0]}
    s_lshl_b32 {s_t2}, {s_nh}, 10
    v_add_u32 v{bH[0]}, {s_t2}, v{vLN16}
    v_xor_b32 v{bH[1]}, 0x400, v{bH[0]}
    s_mul_i32 {s_hld}, {s_rb2}, {WS_RB2}
    s_mul_i32 {s_t2}, {s_g}, {36*2048}
    s_add_u32 {s_hld}, {s_hld}, {s_t2}
    v_and_b32 v{T+3}, 31, v1
    v_lshlrev_b32 v{T+3}, 10, v{T+3}
    v_lshl_or_b32 v{T+3}, v{T+10}, 5, v{T+3}
    s_lshl_b32 {s_t2}, {s_rb2}, 16
    s_lshl_b32 {s_t1}, {s_nh}, 15
    s_add_u32 {s_t2}, {s_t2}, {s_t1}
    s_lshl_b32 {s_t1}, {s_cb}, 7
    s_add_u32 {s_t2}, {s_t2}, {s_t1}
    s_lshl_b32 {s_t0}, {s_th}, 6
    s_add_u32 {s_t2}, {s_t2}, {s_t0}
    v_add_u32 v{bO}, {s_t2}, v{T+3}
    s_lshl_b32 {s_fst}, {s_rb2}, 2
    s_add_u32 {s_fst}, {s_fst}, {s_g}
    s_lshl_b32 {s_fst}, {s_fst}, 11
    s_add_u32 {s_fst}, {s_fst}, {hex(WS_FLAGS)}
    v_mov_b32 v{bT}, {HI}
    v_mov_b32 v{bT+2}, 0
    v_mov_b32 v{bT+3}, 0
    ds_write_b64 v{bT}, {vr(bT+2,2)} offset:{MISCO+96}
    s_waitcnt vmcnt(3)
    """)
    stats_compute(a, vSR)
    a("s_waitcnt lgkmcnt(0)\ns_barrier")
    stamp(a, 2)
    def nonce_load():
        a(f"v_mov_b32 v{bT+8}, 0\nbuffer_load_dwordx2 {vr(bNM,2)}, v{bT+8}, {sDBG}, 0 offen sc1")
    def cs_partial(s):
        a(f"s_cmp_eq_u32 {s_cls}, {s}\ns_cbranch_scc0 B_ncs{s}")
        for m in range(4):
            for b in range(2):
                a(f"ds_read_b64_tr_b16 {vr(bCF+4*m+2*b,2)}, v{bCR} offset:{m*64 + 4*b*RS}")
        a(f"""
        v_and_b32 v{bT+8}, 31, v1
        v_lshlrev_b32 v{bT+8}, 5, v{bT+8}
        v_lshrrev_b32 v{bT+9}, 5, v1
        v_lshl_or_b32 v{bT+8}, v{bT+9}, 2, v{bT+8}
        s_lshl_b32 {s_t0}, {s_g}, 3
        s_add_u32 {s_t0}, {s_t0}, {HI}
        v_add_u32 v{bT+8}, {s_t0}, v{bT+8}
        s_waitcnt lgkmcnt(0)
        """)
        for i in range(4):
            for m in range(4):
                src = bCF + 4*m + i
                a(f"v_lshlrev_b32 v{bT+m}, 16, v{src}\nv_and_b32 v{src}, 0xffff0000, v{src}")
            for m in range(4): a(f"v_add_f32 v{bCF+4*m+i}, v{bCF+4*m+i}, v{bT+m}")
        for m in range(4):
            b = bCF + 4*m
            a(f"v_add_f32 v{b}, v{b}, v{b+1}\nv_add_f32 v{b+2}, v{b+2}, v{b+3}")
        for m in range(4):
            b = bCF + 4*m
            a(f"v_add_f32 v{b}, v{b}, v{b+2}\nds_write_b32 v{bT+8}, v{b} offset:{CSRO + m*1024}")
        a(f"s_waitcnt lgkmcnt(0)\nB_ncs{s}:")
    def publish():
        vm.wait("N")
        a(f"""
        s_mov_b32 {s_spin}, 0
        B_nchk:
        v_readfirstlane_b32 {s_n1}, v{bNM+1}
        v_readfirstlane_b32 {s_n0}, v{bNM}
        s_cmp_lg_u32 {s_n1}, 0
        s_cbranch_scc1 B_nok
        s_add_u32 {s_spin}, {s_spin}, 1
        s_cmp_ge_u32 {s_spin}, {SPIN_MAX}
        s_cbranch_scc1 B_nok
        s_sleep 2
        """)
        nonce_load()
        a(f"s_waitcnt vmcnt(0)\ns_branch B_nchk\nB_nok:")
        if OPT["diag"]: a(f"s_mov_b32 s101, {s_spin}")
        a(f"""
        v_and_b32 v{bT+8}, 31, v1
        v_lshlrev_b32 v{bT+9}, 5, v{bT+8}
        s_lshl_b32 {s_t0}, {s_g}, 10
        s_add_u32 {s_t0}, {s_t0}, {HI}
        v_add_u32 v{bT+9}, {s_t0}, v{bT+9}
        ds_read_b128 {vr(bCF,4)}, v{bT+9} offset:{CSRO}
        ds_read_b128 {vr(bCF+4,4)}, v{bT+9} offset:{CSRO+16}
        v_lshlrev_b32 v{bT+9}, 2, v1
        v_add_u32 v{bT+9}, {HI}, v{bT+9}
        ds_read_b32 v{bST}, v{bT+9} offset:{MISCO}
        v_mov_b32 v{bT+9}, {HI}
        ds_write_b64 v{bT+9}, {vr(bNM,2)} offset:{MISCO+64}
        v_lshlrev_b32 v{bT+8}, 3, v{bT+8}
        s_lshl_b32 {s_t0}, {s_cls}, 2
        s_lshr_b32 {s_t0}, {s_seq}, {s_t0}
        s_and_b32 {s_t0}, {s_t0}, 7
        s_lshl_b32 {s_t0}, {s_t0}, 8
        s_and_b32 {s_t1}, {s_r}, 4
        s_add_u32 {s_t1}, {s_t1}, {s_g}
        s_lshl_b32 {s_t1}, {s_t1}, 11
        s_add_u32 {s_t0}, {s_t0}, {s_t1}
        s_lshl_b32 {s_t1}, {s_type}, 3
        s_add_u32 {s_t1}, {s_t1}, {s_c}
        s_lshl_b32 {s_t1}, {s_t1}, 14
        s_add_u32 {s_cls}, {s_t1}, {hex(WS_CS)}
        s_add_u32 {s_t0}, {s_t0}, {s_cls}
        s_lshl_b32 {s_t1}, {s_row}, 4
        s_add_u32 {s_t1}, {s_t1}, {hex(WS_STATS)}
        v_mov_b32 v{bST+1}, v{bNM}
        v_mov_b32 v{bST+2}, v{bNM+1}
        v_mov_b32 v{bST+3}, 0
        s_waitcnt lgkmcnt(0)
        v_add_f32 v{bCF}, v{bCF}, v{bCF+1}
        v_add_f32 v{bCF+2}, v{bCF+2}, v{bCF+3}
        v_add_f32 v{bCF+4}, v{bCF+4}, v{bCF+5}
        v_add_f32 v{bCF+6}, v{bCF+6}, v{bCF+7}
        v_add_f32 v{bCF}, v{bCF}, v{bCF+2}
        v_add_f32 v{bCF+4}, v{bCF+4}, v{bCF+6}
        v_add_f32 v{bCF}, v{bCF}, v{bCF+4}
        v_cvt_pk_bf16_f32 v{bCF+2}, v{bCF}, v{bCF}
        v_and_b32 v{bCF+2}, 0xffff0000, v{bCF+2}
        v_sub_f32 v{bCF+2}, v{bCF}, v{bCF+2}
        v_cvt_pk_bf16_f32 v{bCF}, v{bCF}, v{bCF+2}
        v_mov_b32 v{bCF+1}, v{bNM}
        s_mov_b64 exec, 0xffffffff
        buffer_store_dwordx2 {vr(bCF,2)}, v{bT+8}, {sWS}, {s_t0} offen sc1
        s_cmp_eq_u32 {s_g}, 0
        s_cbranch_scc0 B_npub
        s_mov_b64 exec, 0xff
        buffer_store_dwordx4 {vr(bST,4)}, v{vLN16}, {sWS}, {s_t1} offen sc1
        B_npub:
        s_mov_b64 exec, -1
        """)
        vm.issue("PS")
    def fetch():
        a(f"""
        v_and_b32 v{bT+8}, 0x1ff, v{vLN16}
        s_lshl_b32 {s_t0}, {s_r}, 11
        s_lshl_b32 {s_t1}, {s_g}, 9
        s_add_u32 {s_t1}, {s_t1}, {s_t0}
        s_add_u32 {s_t1}, {s_t1}, {hex(WS_STATS)}
        buffer_load_dwordx4 {vr(bST,4)}, v{bT+8}, {sWS}, {s_t1} offen sc1
        v_and_b32 v{bT+8}, 0xff, v{vLN16}
        s_max_u32 {s_t0}, {s_t0}, 256
        s_add_u32 {s_t0}, {s_t0}, {hex(WS_STATS - 256)}
        s_cmp_eq_u32 {s_type}, 0
        s_cselect_b32 {s_t0}, {s_t0}, {s_t1}
        buffer_load_dwordx4 {vr(bST+4,4)}, v{bT+8}, {sWS}, {s_t0} offen sc1
        v_lshlrev_b32 v{bT+8}, 3, v1
        s_lshl_b32 {s_t0}, {s_g}, 11
        s_add_u32 {s_t0}, {s_t0}, {s_cls}
        s_add_u32 {s_t1}, {s_t0}, 8192
        """)
        for k in range(8):
            a(f"buffer_load_dwordx2 {vr(bCF+2*k,2)}, v{bT+8}, {sWS}, {(s_t0, s_t1)[k//4]} offen offset:{(k%4)*512} sc1")
        for _ in range(10): vm.issue("ST")
    def handover():
        vm.wait("ST")
        a(f"""
        s_mov_b32 {s_spin}, 0
        B_schk:
        v_cmp_ne_u32 vcc, {s_n0}, v{bST+1}
        """)
        for reg, n in [(bST+2, s_n1), (bST+5, s_n0), (bST+6, s_n1)] + [(bCF+2*k+1, s_n0) for k in range(8)]:
            a(f"v_cmp_ne_u32 s[4:5], {n}, v{reg}\ns_or_b64 vcc, vcc, s[4:5]")
        a(f"""
        s_cbranch_scc0 B_sok
        s_add_u32 {s_spin}, {s_spin}, 1
        s_cmp_ge_u32 {s_spin}, {SPIN_MAX}
        s_cbranch_scc1 B_sok
        s_sleep 2
        """)
        sv = list(vm.q); fetch(); vm.q = sv
        a(f"s_waitcnt vmcnt(0)\ns_branch B_schk\nB_sok:")
        if OPT["diag"]: a(f"s_lshl_b32 s3, {s_spin}, 8\ns_and_b32 s101, s101, 0xff\ns_or_b32 s101, s101, s3")
        a(f"""
        v_and_b32 v{bT+8}, 31, v1
        s_lshl_b32 {s_t0}, {s_g}, 7
        s_add_u32 {s_t0}, {s_t0}, {HI}
        v_lshl_add_u32 v{bT+10}, v{bT+8}, 2, {s_t0}
        ds_write_b32 v{bT+10}, v{bST} offset:{MISCO+128}
        v_and_b32 v{bT+8}, 15, v1
        v_lshlrev_b32 v{bT+8}, 2, v{bT+8}
        v_add_u32 v{bT+8}, {HI}, v{bT+8}
        ds_write_b32 v{bT+8}, v{bST+4} offset:{MISCO+128+512}
        s_lshl_b32 {s_t0}, {s_g}, 10
        s_add_u32 {s_t0}, {s_t0}, {HI}
        v_add_u32 v{bT+8}, {s_t0}, v{vLN16}
        v_mov_b32 v{bCF+1}, v{bCF+4}
        v_mov_b32 v{bCF+3}, v{bCF+6}
        v_mov_b32 v{bCF+9}, v{bCF+12}
        v_mov_b32 v{bCF+11}, v{bCF+14}
        ds_write_b128 v{bT+8}, {vr(bCF,4)} offset:{CSO}
        s_cmp_eq_u32 {s_g}, 3
        s_cbranch_scc1 B_nu7
        ds_write_b128 v{bT+8}, {vr(bCF+8,4)} offset:{CSO+4096}
        B_nu7:
        """)
        lg.issue("SW")
    def rslot(b):
        if b <= 10: return RHI + (b % 3)*4096
        if b <= 13: return (b - 11)*4096
        return rslot(b - 6)
    def Dp(b):
        if b >= 18: return []
        sr, base, row0 = blk(b)
        ps = []
        for i in range(4):
            def f(i=i):
                a(f"s_add_u32 {s_d0}, {base}, {row0*1024 + i*8192}")
                dma(a, vm, ("D", b), bD2, sr, s_d0, s_ring, rslot(b) + i*1024)
            ps.append(f)
        return ps
    def Trp(b):
        if b >= 18: return []
        ps = []
        for f in range(2):
            for nu in range(2):
                def g(f=f, nu=nu):
                    vm.wait(("D", b))
                    for b2 in range(2):
                        d = vWB + (b % WB)*16 + (f*2 + nu)*4 + 2*b2
                        a(f"ds_read_b64_tr_b16 {vr(d,2)}, v{bR[nu]} offset:{rslot(b) + (8*f+4*b2)*128}"); lg.issue(("T", b))
                ps.append(g)
        return ps
    def TD(b):
        return Trp(b) + [lambda: lg.wait(("T", b))] + Dp(b + 3)
    for s in range(7):
        if s == 0:
            for f in u1[3:]: f()
            nonce_load(); vm.issue("N")
            cs_partial(0)
        loads = unit_pieces(a, vm, s + 2) if s < 6 else Dp(0) + Dp(1) + Dp(2)
        for f in loads[:6]: f()
        if s == 1: cs_partial(1)
        if s == 6: handover()
        for f in loads[6:]: f()
        if s == OPT.get("w2touch", -1):
            a(f"""
            s_lshl_b32 {s_t0}, s2, 2
            s_add_u32 {s_t0}, {s_t0}, {s_g}
            s_mul_i32 {s_t1}, {s_t0}, {14*128}
            s_lshl_b32 {s_t0}, {s_t0}, 9
            v_lshlrev_b32 v{bT+8}, 7, v1
            s_mov_b64 exec, 0x3fff
            buffer_load_dword v{bT+11}, v{bT+8}, {sW2}, {s_t1} offen
            s_mov_b64 exec, 0xf
            buffer_load_dword v{bT+11}, v{bT+8}, {sWO}, {s_t0} offen
            s_mov_b64 exec, -1
            """)
            vm.issue("PT"); vm.issue("PT")
        if s == 2: publish()
        if s == 4: fetch()
        vm.wait(("U", s + 1))
        if lg.q: lg.wait_all()
        a("s_barrier")
        if s == 3: stamp(a, 3)
        if s == 6: stamp(a, 4)
    GR = {0: 1024 + 128, 4: 1024 + 256, 8: 1024 + 384, 12: 1024 + 512, 14: 128}
    def LD(b):
        if OPT["pm"] == 3:
            return (f"v_mov_b32 v{bF}, 0\nv_mov_b32 v{bF+1}, 0\ns_mov_b64 exec, 15\n"
                    f"buffer_atomic_or_x2 {vr(bF,2)}, v{bFA}, {sWS}, {s_fst} offen offset:{GR[b]} sc0 sc1\ns_mov_b64 exec, -1")
        return f"buffer_load_dwordx2 {vr(bF,2)}, v{bFA}, {sWS}, {s_fst} offen offset:{GR[b]} sc1"
    def do_poll(b):
        if b not in GR or OPT.get("nopoll"): return
        a(LD(b)); vm.issue(("F", b))
    def ensure(b):
        vm.wait(("F", b))
        a(f"""
        s_mov_b32 {s_spin}, 0
        P2c{b}:
        v_cmp_ne_u32 vcc, {s_n0}, v{bF}
        v_cmp_ne_u32 s[4:5], {s_n1}, v{bF+1}
        s_or_b64 vcc, vcc, s[4:5]
        s_and_b32 s3, vcc_lo, 15
        s_cbranch_scc0 P2k{b}
        s_add_u32 {s_spin}, {s_spin}, 1
        """)
        if OPT["diag"]:
            sh = 16 if b == 0 else (20 if b < 8 else (24 if b < 14 else 28))
            a(f"s_bitset1_b32 s101, {sh}")
        a(f"""
        s_cmp_ge_u32 {s_spin}, {SPIN_MAX}
        s_cbranch_scc1 P2k{b}
        s_sleep 2
        s_nop 7
        {LD(b)}
        s_waitcnt vmcnt(0)
        s_branch P2c{b}
        P2k{b}:
        """)
    def Hp(b):
        if b >= 18: return []
        ps = []
        for f in range(2):
            for tg in range(2):
                def g(f=f, tg=tg):
                    if f == 0 and tg == 0:
                        if b in GR and not OPT.get("nopoll"): ensure(b)
                        a(f"s_add_u32 {s_t1}, {s_hld}, {b*4096}")
                    d = vHB + (b % HB)*16 + (f*2 + tg)*4
                    a(f"buffer_load_dwordx4 {vr(d,4)}, v{bH[tg]}, {sWS}, {s_t1} offen offset:{f*2048} sc1"); vm.issue(("H", b))
                ps.append(g)
        return ps
    def Mp(b):
        ps = []
        for f in range(2):
            for nu in range(2):
                for tg in range(2):
                    def g(f=f, nu=nu, tg=tg):
                        lg.wait(("T", b)); vm.wait(("H", b))
                        acc = vA + (nu*2 + tg)*16
                        c = "0" if (b == 0 and f == 0) else vr(acc, 16)
                        a(f"{MF} {vr(acc,16)}, {vr(vWB+(b%WB)*16+(f*2+nu)*4,4)}, {vr(vHB+(b%HB)*16+(f*2+tg)*4,4)}, {c}")
                    ps.append(g)
        return ps
    NPRE = OPT.get("npre", 4)
    if OPT["share"]:
        a(f"v_xor_b32 v{bT+11}, 0x80, v{bT+10}\nds_read_b32 v{bST+1}, v{bT+11} offset:{MISCO+128}"); lg.issue("S1")
    for b in range(NPRE):
        for f in TD(b): f()
    stamp(a, 5)
    lds_wait(a, bT, 96, 4, "B_c0"); lg.q = []
    stamp(a, 6)
    rest = []
    for b in range(NPRE, 8): rest += TD(b)
    rest += Dp(11) + Dp(12) + Dp(13)
    if OPT["share"]:
        q0, l0 = list(vm.q), list(lg.q)
        a(f"s_cmp_eq_u32 {s_type}, 0\ns_cbranch_scc1 B_att2")
        for i in range(3):
            for j in range(4):
                a(f"ds_read_b128 {vr(vA+16*i+4*j,4)}, v{bHO} offset:{i*4096 + j*1024}"); lg.issue(("A", i))
        S = [bST+2, bST+3]; C1 = [bST+4, bST+5]
        a(f"""
        v_and_b32 v{S[0]}, 0xffff0000, v{bST}
        v_and_b32 v{S[1]}, 0xffff0000, v{bST+1}
        v_rcp_f32 v{C1[0]}, v{S[0]}
        v_rcp_f32 v{C1[1]}, v{S[1]}
        v_mul_f32 v{C1[0]}, {f32(-LOG2E)}, v{C1[0]}
        v_mul_f32 v{C1[1]}, {f32(-LOG2E)}, v{C1[1]}
        """)
        r2 = list(rest)
        def st(txt, tag):
            a(txt); vm.issue(tag)
        for i, (x, base, off) in enumerate([(0, s_hst, POS["w2"]), (1, s_hs1, POS["w2"]), (0, s_hs6, POS["w3"])]):
            lg.wait(("A", i))
            k = 0
            for op in silu_ops(vA+16*i, C1[x], S[x], bT):
                a(op); k += 1
                if k % 6 == 0 and r2: r2.pop(0)()
            a(f"s_add_u32 {s_so}, {base}, {off}")
            for h in range(2): st(hstore(vA+16*i+8*h, h), ("HS", i))
        stamp(a, 7)
        while r2: r2.pop(0)()
        vm.wait(("HS", 1))
        for op in flag_store(2, bT+12): a(op)
        vm.issue("FL")
        vm.wait(("HS", 2))
        for op in flag_store(4, bT+12): a(op)
        qm, lm = list(vm.q), list(lg.q)
        a("s_branch B_join\nB_att2:")
        vm.q, lg.q = q0, l0
        for f in rest: f()
        a("B_join:")
    else:
        for f in rest: f()
    do_poll(0)
    stamp(a, 10)
    for f in Hp(0) + Hp(1) + Hp(2): f()
    stamp(a, 11)
    xr = vWB + 2*16
    for b in range(18):
        ms = Mp(b); ts = Trp(b + 7) if b >= 1 else []; ds = Dp(b + 12) if b >= 2 else []
        do_poll(b + 4)
        for i in range(8):
            ms[i]()
            if i < 4:
                if ds:
                    if i == 0: lg.wait(("T", b + 6))
                    ds[i]()
            else:
                if ts: ts[i-4]()
        for f in Hp(b + 3): f()
        if b == 14:
            a(f"buffer_load_dwordx4 {vr(xr,4)}, v{bO}, {sX}, 0 offen\nbuffer_load_dwordx4 {vr(xr+4,4)}, v{bO}, {sX}, 0 offen offset:16")
            vm.issue("X"); vm.issue("X")
        if b == 7: stamp(a, 12)
    stamp(a, 13)
    R = 2
    a(f"v_add_u32 v{R}, {s_ring}, v{vLN16}")
    for sg in range(1, 4):
        a(f"""
        s_xor_b32 {s_t0}, {s_g}, {sg}
        s_mul_i32 {s_t0}, {s_t0}, 12288
        s_add_u32 {s_t0}, {s_t0}, {L_RING}
        v_add_u32 v{R+sg}, {s_t0}, v{vLN16}
        """)
    for sg in range(1, 4):
        for j in range(4):
            a(f"ds_write_b128 v{R}, {vr(vA+16*sg+4*j,4)} offset:{(sg-1)*4096 + j*1024}")
    a("s_waitcnt lgkmcnt(0)\ns_barrier")
    lg.q = []
    for sg in range(1, 4):
        for j in range(4):
            a(f"ds_read_b128 {vr(vA+16*sg+4*j,4)}, v{R+sg} offset:{(sg-1)*4096 + j*1024}"); lg.issue(("F", sg))
    vm.wait("X")
    U = vHB
    for i in range(8):
        a(f"v_lshlrev_b32 v{U+2*i}, 16, v{xr+i}\nv_and_b32 v{U+2*i+1}, 0xffff0000, v{xr+i}")
    for j in range(16): a(f"v_add_f32 v{vA+j}, v{vA+j}, v{U+j}")
    for sg in range(1, 4):
        lg.wait(("F", sg))
        for j in range(16): a(f"v_add_f32 v{vA+j}, v{vA+j}, v{vA+16*sg+j}")
    for j in range(8): a(f"v_cvt_pk_bf16_f32 v{U+j}, v{vA+2*j}, v{vA+2*j+1}")
    a(f"buffer_store_dwordx4 {vr(U,4)}, v{bO}, {sOUT}, 0 offen\nbuffer_store_dwordx4 {vr(U+4,4)}, v{bO}, {sOUT}, 0 offen offset:16")
    endpgm(a)

def build():
    a = Asm()
    prologue(a)
    waveA_setup(a)
    waveA(a, False, "M_")
    a("L_A_att:")
    waveA(a, True, "T_")
    waveB(a)
    a("L_done:\ns_endpgm\nL_codeend:")
    body = "\n".join(hazard.fix(a.lines)) + "\n"
    return single(body, 256, 512, 163840)

if __name__ == "__main__":
    out = sys.argv[1]
    for arg in sys.argv[2:]:
        if "=" in arg:
            k, v = arg.split("="); OPT[k] = int(v)
        else: OPT[arg] = True
    open(out, "w").write(build())
```

```python
import sys, struct
from asmlib import *
import hazard

def f32(x): return "0x%08x" % struct.unpack("<I", struct.pack("<f", x))[0]
LOG2E = 1.4426950408889634
OPT = dict(diag=False, prioA=0, prioB=0, pm=3, w2touch=3, share=0, xc=0, nraw=0, pk=1, seq=6, split0=1, f5=1, quiet=1, ep=1)

class Cnt:
    def __init__(self, a, name, mx): self.a, self.name, self.mx, self.q = a, name, mx, []
    def issue(self, tag): self.q.append(tag)
    def wait(self, tag):
        if tag not in self.q: return
        idx = max(i for i, t in enumerate(self.q) if t == tag)
        n = min(len(self.q) - idx - 1, self.mx)
        self.a(f"s_waitcnt {self.name}({n})")
        self.q = self.q[len(self.q) - n:] if n else []
    def wait_all(self):
        self.a(f"s_waitcnt {self.name}(0)"); self.q = []

WS_RB2 = 144 * 2048
WS_STATS = 0x900000
WS_FLAGS = 0x910000
WS_CS = 0x960000
WS_SIZE = 0x1000000
WS_DIAG = 0xA00000
SLOT = 45056
WOFF = 16384
RS = 448
L_KV = 0
KVS = 272
L_RING = 40960
RHI = 49152
L_CSR = 135168
L_HALO = 139264
L_CS = 155648
L_MISC = 162816
C_RDY, C_FRE, C_KV, C_HO, C_ST = 768, 800, 832, 836, 840
HI = 0x20000
CSO = L_CS - HI
CSRO = L_CSR - HI
MISCO = L_MISC - HI
sX, sW, sWS, sW2, sWO, sOUT, sDBG = "s[8:11]", "s[12:15]", "s[16:19]", "s[20:23]", "s[24:27]", "s[28:31]", "s[32:35]"
s_d0, s_d1, s_pfl, s_spin = "s0", "s1", "s6", "s7"
s_w, s_g, s_hs1, s_r, s_c, s_type = "s54", "s55", "s56", "s57", "s58", "s59"
s_stride, s_hs6, s_seq, s_str2, s_str64 = "s60", "s60", "s61", "s62", "s63"
s_wex = "s[64:65]"
s_g4k, s_t0, s_t1, s_t2, s_t3 = "s66", "s67", "s68", "s69", "s70"
s_hst, s_gw, s_th, s_nh = "s71", "s72", "s73", "s74"
s_selL, s_selH = "s75", "s76"
s_cls, s_fst = "s75", "s76"
s_rb2, s_cb, s_hld, s_wq, s_oq, s_ring = "s77", "s78", "s79", "s80", "s81", "s82"
s_row, s_wqp, s_wqm, s_cl, s_so = "s83", "s84", "s85", "s86", "s87"
s_csb, s_csp = "s58", "s86"
s_n0, s_n1 = "s88", "s89"
STAMP_REGS = [90, 92, 94, 96, 98, 36, 38, 40, 42, 44, 46, 48, 50, 52]
s_lam = "s75"
SPIN_MAX = 20000

def vr(b, n): return f"v[{b}:{b+n-1}]"
def stamp(a, i, grp=None):
    if OPT["diag"] and (i < 3 or OPT.get("grp") == grp): a(f"{'s_memrealtime' if OPT.get('rt') else 's_memtime'} s[{STAMP_REGS[i]}:{STAMP_REGS[i]+1}]")
def endpgm(a):
    if OPT["diag"]:
        a(f"""
        {'s_memrealtime' if OPT.get('rt') else 's_memtime'} s[4:5]
        s_waitcnt lgkmcnt(0)
        s_mov_b32 s3, s4
        s_memrealtime s[4:5]
        s_lshl_b32 {s_t0}, s2, 3
        s_add_u32 {s_t0}, {s_t0}, {s_w}
        s_lshl_b32 {s_t0}, {s_t0}, 7
        s_add_u32 {s_t0}, {s_t0}, {hex(WS_DIAG)}
        v_mov_b32 v2, 0
        s_mov_b64 exec, 1
        s_waitcnt lgkmcnt(0)
        """)
        for i, r in enumerate(STAMP_REGS + [3, 100, 4, 101]):
            a(f"v_mov_b32 v3, s{r}\nbuffer_store_dword v3, v2, {sWS}, {s_t0} offen offset:{4*i}")
    a("s_endpgm")
def srd(a, d, lo, hi, size):
    a(f"s_mov_b32 s{d}, s{lo}\ns_mov_b32 s{d+1}, s{hi}\ns_mov_b32 s{d+2}, {hex(size)}\ns_mov_b32 s{d+3}, 0x20000")
def emit(a, x):
    if callable(x): x()
    else: a(x)
MF = "v_mfma_f32_32x32x16_bf16"

vXD0, vXD1, vWD = 3, 4, 5
vLN16 = 6
vINU = 7
vP = 240
vSR = 224
aXR = [[8, 9, 10, 11], [12, 13, 14, 15]]; aWR = [16, 17, 18, 19]; aHR = [20, 21, 22, 23]
aCR = [24, 25, 26, 27]
aHO = 28
aSW = 5
aHI = 2; aRC = 4
aS = [29, 30]; aRS = [31, 32, 33]; aC1 = [34, 35]
aNM = [36, 40, 44]
aT = 48
aFR = 64
aACC = [112 + 16*i for i in range(7)]
bD2 = 2
bFA = 8
bH = [9, 13]; bF = 10; bR = [14, 15]; bO = 0
bT = 16
bST = 32
bNM = 40
bCF = 44

def dma(a, vm, tag, voff, srd_, soff, m0base, m0imm, ex=False):
    a(f"s_add_u32 m0, {m0base}, {m0imm}")
    if ex: a(f"s_mov_b64 exec, {s_wex}")
    a(f"buffer_load_dwordx4 v{voff}, {srd_}, {soff} offen lds")
    if ex: a("s_mov_b64 exec, -1")
    if vm is not None: vm.issue(tag)

def unit_pieces(a, vm, u):
    if u >= 8: return []
    def mk(pre, voff, srd_, soff, m0b, m0i, ex):
        def f():
            if pre: a(pre)
            dma(a, vm, ("U", u), voff, srd_, soff, m0b, m0i, ex)
        return f
    sl = (u % 3) * SLOT
    pre = f"s_bfe_u32 {s_d1}, {s_seq}, {hex(0x40000 + 4*u)}\ns_lshl_b32 {s_d0}, {s_d1}, 7\ns_mul_i32 {s_d1}, {s_d1}, {s_str64}"
    ps = []
    for i in range(4):
        p = pre if i == 0 else (f"s_add_u32 {s_d0}, {s_d0}, 0x4000" if i == 2 else None)
        ps.append(mk(p, (vXD0, vXD1)[i & 1], sX, s_d0, s_g4k, sl + i*1024, False))
        for j in (2*i, 2*i+1):
            p = None if j == 0 else f"s_add_u32 {s_d1}, {s_d1}, {s_str2}"
            ps.append(mk(p, vWD, sW, s_d1, s_gw, sl + WOFF + j*2*RS, True))
    return ps

def wave_reduce(a, v, sdst):
    for sh in (1, 2, 4, 8):
        a(f"v_add_f32_dpp {v}, {v}, {v} row_shr:{sh} row_mask:0xf bank_mask:0xf bound_ctrl:0")
    a(f"v_add_f32_dpp {v}, {v}, {v} row_bcast:15 row_mask:0xa bank_mask:0xf")
    a(f"v_add_f32_dpp {v}, {v}, {v} row_bcast:31 row_mask:0xc bank_mask:0xf")
    a(f"v_readlane_b32 {sdst}, {v}, 63")

def stats_ops(b, idx_off, st):
    t = Asm(); u = b + 4
    def red(v):
        for sh in (1, 2, 4, 8):
            t(f"v_add_f32_dpp {v}, {v}, {v} row_shr:{sh} row_mask:0xf bank_mask:0xf bound_ctrl:0")
        t(f"v_add_f32_dpp {v}, {v}, {v} row_bcast:15 row_mask:0xa bank_mask:0xf")
        t(f"v_add_f32_dpp {v}, {v}, {v} row_bcast:31 row_mask:0xc bank_mask:0xf")
        t(f"v_readlane_b32 {st}, {v}, 63")
    for i in range(4):
        t(f"v_lshlrev_b32 v{u+2*i}, 16, v{b+i}\nv_and_b32 v{u+2*i+1}, 0xffff0000, v{b+i}")
    t(f"""
    v_add_f32 v{b}, v{u}, v{u+1}
    v_add_f32 v{b+1}, v{u+2}, v{u+3}
    v_add_f32 v{b+2}, v{u+4}, v{u+5}
    v_add_f32 v{b+3}, v{u+6}, v{u+7}
    v_add_f32 v{b}, v{b}, v{b+1}
    v_add_f32 v{b+2}, v{b+2}, v{b+3}
    v_add_f32 v{b}, v{b}, v{b+2}
    """)
    red(f"v{b}")
    t(f"v_mov_b32 v{b+1}, {f32(1.0/512)}\nv_mul_f32 v{b+2}, {st}, v{b+1}")
    for i in range(8): t(f"v_sub_f32 v{u+i}, v{u+i}, v{b+2}")
    t(f"v_mul_f32 v{b}, v{u}, v{u}\nv_mul_f32 v{b+3}, v{u+1}, v{u+1}")
    for i in range(2, 8, 2): t(f"v_fmac_f32 v{b}, v{u+i}, v{u+i}\nv_fmac_f32 v{b+3}, v{u+i+1}, v{u+i+1}")
    t(f"v_add_f32 v{b}, v{b}, v{b+3}")
    red(f"v{b}")
    t(f"""
    v_mul_f32 v{b}, {st}, v{b+1}
    v_cvt_pk_bf16_f32 v{b}, v{b}, v{b}
    v_and_b32 v{b}, 0xffff0000, v{b}
    v_add_f32 v{b}, {f32(1e-5)}, v{b}
    v_cvt_pk_bf16_f32 v{b}, v{b}, v{b}
    v_and_b32 v{b}, 0xffff0000, v{b}
    v_sqrt_f32 v{b}, v{b}
    v_cvt_pk_bf16_f32 v{b}, v{b+2}, v{b}
    """)
    return [l.strip() for l in t.lines]

def nib(l): return sum(v << (4*i) for i, v in enumerate(l))
SEQT = {
 0: [[0,1,2,3,4,5,6,7]]*4,
 1: [[2,0,1,3,4,5,6,7], [0,3,1,2,4,5,6,7], [1,0,2,3,4,5,6,7], [0,1,2,3,4,5,6,7]],
 2: [[0,1,2,3,4,5,6,7], [1,2,3,0,5,6,7,4], [2,3,0,1,6,7,4,5], [3,0,1,2,7,4,5,6]],
 3: [[0,1,2,3,4,5,6,7], [0,2,1,3,4,5,6,7], [0,3,1,2,4,5,6,7], [0,1,3,2,4,5,6,7]],
 4: [[0,2,1,3,4,5,6,7], [1,3,0,2,4,5,6,7], [0,2,1,3,4,5,6,7], [1,3,0,2,4,5,6,7]],
 5: [[0,1,2,3,4,5,6,7], [1,0,3,2,5,4,7,6], [0,1,2,3,4,5,6,7], [1,0,3,2,5,4,7,6]],
 6: [[0,1,2,3,4,5,6,7], [1,2,3,0,4,5,6,7], [2,3,0,1,4,5,6,7], [3,0,1,2,4,5,6,7]],
 7: [[0,1,2,3,4,5,6,7], [1,2,3,0,5,4,7,6], [2,3,0,1,4,5,6,7], [3,0,1,2,5,4,7,6]],
}

def prologue(a):
    T = vP
    SQ = [nib(x) for x in SEQT[OPT["seq"]]]
    a(f"""
    s_cmp_ge_u32 s2, 256
    s_cbranch_scc1 L_done
    """)
    stamp(a, 0)
    if OPT["diag"]: a("s_memrealtime s[100:101]")
    a(f"""
    s_load_dwordx16 s[36:51], s[0:1], 0
    s_load_dwordx2 s[52:53], s[0:1], 64
    s_getpc_b64 s[4:5]
    L_pc:
    s_lshr_b32 s3, s2, 3
    s_lshl_b32 s3, s3, 5
    v_lshrrev_b32 v2, 4, v0
    v_and_b32 v1, 3, v0
    v_add3_u32 v2, v2, v1, s3
    v_and_b32 v2, 0x1ff, v2
    v_lshlrev_b32 v2, 7, v2
    v_min_u32 v2, L_codeend-L_pc-4, v2
    s_mov_b64 exec, 15
    global_load_dword v{T+15}, v2, s[4:5]
    s_mov_b64 exec, -1
    v_lshrrev_b32 v2, 6, v0
    v_and_b32 v1, 63, v0
    v_readfirstlane_b32 {s_w}, v2
    s_bfe_u32 {s_r}, s2, 0x10002
    s_lshl_b32 {s_r}, {s_r}, 3
    s_bfe_u32 s3, s2, 0x30003
    s_add_u32 {s_r}, {s_r}, s3
    s_and_b32 {s_c}, s2, 3
    s_lshl_b32 {s_t0}, {s_c}, 1
    s_bfe_u32 {s_cl}, s2, 0x10006
    s_add_u32 {s_c}, {s_t0}, {s_cl}
    s_lshr_b32 {s_type}, s2, 7
    s_and_b32 {s_g}, {s_w}, 3
    s_lshl_b32 {s_g4k}, {s_g}, 12
    s_mul_i32 {s_gw}, {s_g}, {16*RS}
    s_and_b32 {s_t1}, s2, 4
    {f"s_add_u32 {s_t1}, {s_t0}, {s_t1}" if OPT["xc"] else ""}
    s_and_b32 {s_t1}, {s_t1}, 7
    s_mul_i32 {s_t1}, {s_t1}, 0x11111111
    s_lshr_b32 {s_t2}, s2, 6
    s_add_u32 {s_t2}, {s_t2}, s3
    s_mov_b32 {s_seq}, {hex(SQ[0])}
    s_mov_b32 {s_t3}, {hex(SQ[2])}
    s_bitcmp1_b32 {s_t2}, 0
    s_cselect_b32 {s_seq}, {hex(SQ[1])}, {s_seq}
    s_cselect_b32 {s_t3}, {hex(SQ[3])}, {s_t3}
    s_bitcmp1_b32 {s_t2}, 1
    s_cselect_b32 {s_seq}, {s_t3}, {s_seq}
    s_add_u32 {s_seq}, {s_seq}, {s_t1}
    s_and_b32 {s_seq}, {s_seq}, 0x77777777
    v_lshrrev_b32 v{T}, 3, v1
    v_lshrrev_b32 v{T+1}, 4, v1
    v_and_b32 v{T+2}, 7, v1
    v_xor_b32 v{T+2}, v{T+2}, v{T+1}
    v_lshlrev_b32 v{T+2}, 4, v{T+2}
    v_lshl_or_b32 v{T+8}, v{T}, 10, v{T+2}
    s_lshl_b32 {s_t0}, {s_r}, 17
    s_lshl_b32 {s_t1}, {s_g}, 15
    s_add_u32 {s_t1}, {s_t1}, {s_t0}
    v_add_u32 v{vXD0}, {s_t1}, v{T+8}
    v_add_u32 v{vXD1}, 0x2000, v{vXD0}
    v_xor_b32 v{vXD1}, 64, v{vXD1}
    s_mul_i32 {s_t1}, {s_c}, 448
    s_lshl_b32 {s_t3}, {s_c}, 7
    s_movk_i32 {s_stride}, 3584
    s_mov_b32 s64, -1
    s_mov_b32 s65, 0x00ffffff
    s_cmp_eq_u32 {s_type}, 0
    s_cselect_b32 {s_stride}, 3072, {s_stride}
    s_cselect_b32 {s_t1}, {s_t3}, {s_t1}
    s_cselect_b32 {s_t2}, 10, 7
    s_cselect_b32 s64, 0xf0ffffff, s64
    s_cselect_b32 s65, 0x000fffff, s65
    s_lshl_b32 {s_str64}, {s_stride}, 6
    s_lshl_b32 {s_str2}, {s_stride}, 1
    v_cmp_lt_u32 vcc, 27, v1
    v_subrev_u32 v{T+3}, 28, v1
    s_lshl_b32 {s_t0}, {s_g}, 4
    s_mul_i32 {s_t0}, {s_t0}, {s_stride}
    s_add_u32 {s_t1}, {s_t1}, {s_t0}
    v_mov_b32 v{T+4}, {s_stride}
    v_cndmask_b32 v{T+3}, v1, v{T+3}, vcc
    v_cndmask_b32 v{T+4}, 0, v{T+4}, vcc
    v_lshrrev_b32 v{T+5}, 3, v{T+3}
    v_lshlrev_b32 v{T+5}, {s_t2}, v{T+5}
    v_and_b32 v{T+3}, 7, v{T+3}
    v_lshl_add_u32 v{T+3}, v{T+3}, 4, v{T+5}
    v_add3_u32 v{vWD}, v{T+3}, v{T+4}, {s_t1}
    v_lshlrev_b32 v{vLN16}, 4, v1
    s_lshl_b32 {s_row}, {s_r}, 1
    s_add_u32 {s_row}, {s_row}, {s_type}
    s_lshl_b32 {s_row}, {s_row}, 3
    s_add_u32 {s_row}, {s_row}, {s_c}
    s_lshl_b32 {s_row}, {s_row}, 3
    s_mul_i32 {s_t3}, {s_g}, {2*RS}
    s_mul_i32 {s_t0}, {s_g}, 14
    s_mul_i32 {s_t0}, {s_t0}, {s_stride}
    v_subrev_u32 v{T+6}, {s_t0}, v{vWD}
    s_lshl_b32 {s_t2}, {s_stride}, 3
    s_lshl_b32 {s_t0}, {s_r}, 17
    s_sub_u32 {s_t0}, {s_t0}, 0x4000
    s_and_b32 {s_t1}, {s_g}, 1
    s_lshl_b32 {s_so}, {s_t1}, 13
    s_add_u32 {s_t0}, {s_t0}, {s_so}
    s_lshl_b32 {s_t1}, {s_t1}, 6
    v_xor_b32 v{T+7}, {s_t1}, v{T+8}
    v_add_u32 v{T+7}, {s_t0}, v{T+7}
    s_and_b32 {s_so}, {s_g}, 2
    s_lshl_b32 {s_so}, {s_so}, 1
    s_lshr_b32 {s_so}, {s_seq}, {s_so}
    s_lshl_b32 {s_hld}, {s_g}, 10
    s_mov_b32 s10, 0x200000
    s_mov_b32 s11, 0x20000
    s_lshl_b32 s14, {s_stride}, 9
    s_mov_b32 s15, 0x20000
    s_cmp_eq_u32 {s_type}, 0
    s_waitcnt lgkmcnt(0)
    """)
    stamp(a, 1)
    a(f"""
    s_mov_b32 s8, s36
    s_mov_b32 s9, s37
    s_cselect_b32 s12, s38, s44
    s_cselect_b32 s13, s39, s45
    s_cmp_ge_u32 {s_w}, 4
    s_cbranch_scc1 L_b0
    s_and_b32 {s_d1}, {s_seq}, 15
    s_lshl_b32 {s_d0}, {s_d1}, 7
    s_mul_i32 {s_d1}, {s_d1}, {s_str64}
    """)
    for i in range(4):
        if i == 2: a(f"s_add_u32 {s_d0}, {s_d0}, 0x4000")
        dma(a, None, None, (vXD0, vXD1)[i & 1], sX, s_d0, s_g4k, i*1024)
        if i > 0: a(f"s_add_u32 {s_d1}, {s_d1}, {s_t2}")
        dma(a, None, None, T+6, sW, s_d1, s_t3, WOFF + i*8*RS, True)
    def halo(i):
        a(f"s_bfe_u32 {s_d0}, {s_so}, {hex(0x40000 + 8*i)}\ns_lshl_b32 {s_d0}, {s_d0}, 7")
        dma(a, None, None, T+7, sX, s_d0, s_hld, L_HALO + i*4096)
    a(f"s_cmp_eq_u32 {s_type}, 0\ns_cbranch_scc0 L_nh0")
    halo(0)
    a("L_nh0:")
    for j in range(4, 8):
        a(f"s_add_u32 {s_d1}, {s_d1}, {s_t2}")
        dma(a, None, None, T+6, sW, s_d1, s_t3, WOFF + j*8*RS, True)
    a("L_b0:")
    global HALO_FN
    HALO_FN = halo
    srd(a, 32, 50, 51, 256)
    a(f"""
    s_cmp_eq_u32 s2, 0
    s_cselect_b32 s3, {s_w}, 0
    s_cmp_eq_u32 s3, 4
    s_cbranch_scc0 L_nonz
    s_memrealtime s[4:5]
    s_waitcnt lgkmcnt(0)
    s_bitset1_b32 s5, 31
    v_mov_b32 v{T+2}, s4
    v_mov_b32 v{T+3}, s5
    v_mov_b32 v{T+4}, 0
    s_mov_b64 exec, 1
    buffer_store_dwordx2 {vr(T+2,2)}, v{T+4}, {sDBG}, 0 offen sc1
    s_mov_b64 exec, -1
    L_nonz:
    """)
    srd(a, 16, 52, 53, WS_SIZE)
    srd(a, 20, 46, 47, 1792*512*2)
    srd(a, 24, 40, 41, 512*512*2)
    srd(a, 28, 48, 49, 2048*512*2)
    if OPT["diag"]: a("s_mov_b32 s101, 0")
    a(f"""
    v_bfe_u32 v{T+9}, v1, 2, 2
    v_lshrrev_b32 v{T+10}, 5, v1
    v_and_b32 v{vINU}, 1, v1
    v_lshlrev_b32 v{vINU}, 5, v{vINU}
    v_and_b32 v{T+2}, 16, v1
    v_or_b32 v{vINU}, v{vINU}, v{T+2}
    v_and_b32 v{T+2}, 2, v1
    v_lshl_or_b32 v{vINU}, v{T+2}, 2, v{vINU}
    v_lshl_add_u32 v{T+11}, v{T+10}, 3, v{T+9}
    v_mul_u32_u24 v{T+13}, {RS}, v{T+11}
    v_add_u32 v{T+13}, v{T+13}, v{vINU}
    v_add_u32 v{T+13}, {WOFF}, v{T+13}
    s_lshr_b32 {s_th}, {s_g}, 1
    s_and_b32 {s_nh}, {s_g}, 1
    s_lshl_b32 {s_t0}, {s_r}, 1
    s_add_u32 {s_t0}, {s_t0}, {s_th}
    s_mul_i32 {s_hst}, {s_t0}, {WS_RB2}
    s_lshr_b32 {s_t1}, {s_c}, 1
    s_mul_i32 {s_t2}, {s_t1}, {36*2048}
    s_add_u32 {s_hst}, {s_hst}, {s_t2}
    s_lshl_b32 {s_t3}, {s_nh}, 10
    s_add_u32 {s_hst}, {s_hst}, {s_t3}
    s_lshl_b32 {s_t2}, {s_cl}, 12
    s_add_u32 {s_hs6}, {s_hst}, {s_t2}
    s_lshl_b32 {s_t2}, {s_cl}, 1
    s_add_u32 {s_t2}, {s_t2}, {s_nh}
    s_lshl_b32 {s_t3}, {s_t2}, 12
    s_add_u32 {s_hst}, {s_hst}, {s_t3}
    s_xor_b32 {s_hs1}, {s_hst}, 0x400
    s_lshl_b32 {s_pfl}, {s_t0}, 2
    s_add_u32 {s_pfl}, {s_pfl}, {s_t1}
    s_lshl_b32 {s_pfl}, {s_pfl}, 6
    s_add_u32 {s_pfl}, {s_pfl}, {s_t2}
    s_lshl_b32 {s_pfl}, {s_pfl}, 3
    s_add_u32 {s_pfl}, {s_pfl}, {hex(WS_FLAGS)}
    s_mul_i32 {s_t0}, {s_g}, 12288
    s_cmp_eq_u32 {s_g}, 3
    s_cselect_b32 {s_t0}, {L_HALO}, {s_t0}
    v_add_u32 v{T+14}, {s_t0}, v{vLN16}
    s_cmp_ge_u32 {s_w}, 4
    s_cbranch_scc1 L_B
    """)

def flag_store(stage, t):
    return [f"v_mov_b32 v{t}, {s_n0}", f"v_mov_b32 v{t+1}, {s_n1}", f"v_mov_b32 v{t+2}, 0",
            "s_mov_b64 exec, 1\n" + f"buffer_store_dwordx2 {vr(t,2)}, v{t+2}, {sWS}, {s_pfl} offen offset:{stage*128} sc1\n" + "s_mov_b64 exec, -1"]
def derive(src, nm, sd):
    return [f"v_and_b32 v{sd}, 0xffff0000, v{src}", f"v_and_b32 v{nm}, 0xffff, v{src}", f"v_xor_b32 v{nm}, 0x8000, v{nm}",
            f"v_lshl_or_b32 v{nm}, v{nm}, 16, v{nm}", f"v_mov_b32 v{nm+1}, v{nm}", f"v_mov_b32 v{nm+2}, v{nm}", f"v_mov_b32 v{nm+3}, v{nm}"]
def lds_signal(vh, off):
    return f"s_mov_b64 exec, 1\nds_add_u32 v{vh}, v{vh+1} offset:{MISCO+off}\ns_mov_b64 exec, -1"
def lds_spin(a, vh, t, off, lbl, sleep=True):
    a(f"""
    s_mov_b32 {s_spin}, 0
    {lbl}:
    ds_read_b32 v{t}, v{vh} offset:{MISCO+off}
    s_waitcnt lgkmcnt(0)
    v_readfirstlane_b32 s3, v{t}
    s_cmp_ge_u32 s3, 4
    s_cbranch_scc1 {lbl}k
    s_add_u32 {s_spin}, {s_spin}, 1
    s_cmp_ge_u32 {s_spin}, 0x200000
    s_cbranch_scc1 {lbl}k
    {"s_sleep 1" if sleep else "s_nop 7"}
    s_nop 7
    s_branch {lbl}
    {lbl}k:
    """)
def silu_ops(acc, c1, sd, t, pk=None):
    ops = []
    if pk is None: pk = OPT['pk']
    for h in range(2):
        b = acc + 8*h
        if pk:
            def bc(r): return (vr(r & ~1, 2), r & 1)
            cp, cs = bc(c1); sp, ss = bc(sd)
            for j in range(0, 8, 2): ops.append(f"v_pk_mul_f32 {vr(t+j,2)}, {vr(b+j,2)}, {cp} op_sel:[0,{cs}] op_sel_hi:[1,{cs}]")
            for j in range(8): ops.append(f"v_exp_f32 v{t+j}, v{t+j}")
            for j in range(0, 8, 2): ops.append(f"v_pk_fma_f32 {vr(t+j,2)}, {vr(t+j,2)}, {sp}, {sp} op_sel:[0,{ss},{ss}] op_sel_hi:[1,{ss},{ss}]")
            for j in range(8): ops.append(f"v_rcp_f32 v{t+j}, v{t+j}")
            for j in range(0, 8, 2): ops.append(f"v_pk_mul_f32 {vr(b+j,2)}, {vr(b+j,2)}, {vr(t+j,2)}")
        else:
            for j in range(8): ops.append(f"v_mul_f32 v{t+j}, v{b+j}, v{c1}")
            for j in range(8): ops.append(f"v_exp_f32 v{t+j}, v{t+j}")
            for j in range(8): ops.append(f"v_fma_f32 v{t+j}, v{t+j}, v{sd}, v{sd}")
            for j in range(8): ops.append(f"v_rcp_f32 v{t+j}, v{t+j}")
            for j in range(8): ops.append(f"v_mul_f32 v{b+j}, v{b+j}, v{t+j}")
        for j in range(4): ops.append(f"v_cvt_pk_bf16_f32 v{b+j}, v{b+2*j}, v{b+2*j+1}")
    return ops
def hstore(b, h):
    return f"buffer_store_dwordx4 {vr(b,4)}, v{vLN16}, {sWS}, {s_so} offen offset:{h*2048} sc1"

POS = {"w1": 0, "w2": 16384, "w0": 32768, "w3": 49152, "att": 57344}
def blk(p):
    if p < 12:
        e, cl, nh = p >> 2, (p >> 1) & 1, p & 1
        base, tau = [(s_wqp, 2 + nh), (s_wqm, 4 + nh), (s_wq, nh)][e]
        return sW2, base, 224*cl + 32*tau
    if p < 14: return sW2, s_wq, 224*(p - 12) + 192
    cl, nh = ((p - 14) >> 1) & 1, p & 1
    return sWO, s_oq, 64*cl + 32*nh

def waveA_setup(a):
    T = vP
    if OPT["prioA"]: a(f"s_setprio {OPT['prioA']}")
    a(f"""
    v_bfe_u32 v{T+12}, v1, 1, 3
    v_xor_b32 v{T+12}, v{T+12}, v{T+10}
    v_and_b32 v{T+2}, 31, v1
    v_lshl_add_u32 v{T+4}, v{T+2}, 7, {s_g4k}
    v_and_b32 v{T+3}, 15, v1
    v_lshlrev_b32 v{T+3}, 7, v{T+3}
    v_add_u32 v{T+3}, {hex(L_HALO)}, v{T+3}
    """)
    for ks in range(4):
        a(f"""
        v_xor_b32 v{T+5}, {2*ks}, v{T+12}
        v_lshl_add_u32 v{aXR[0][ks]}, v{T+5}, 4, v{T+4}
        v_xor_b32 v{aXR[1][ks]}, 0x1000, v{aXR[0][ks]}
        v_lshl_add_u32 v{aHR[ks]}, v{T+5}, 4, v{T+3}
        """)
    a(f"""
    s_lshl_b32 {s_t0}, {s_nh}, 6
    s_lshl_b32 {s_t1}, {s_th}, 7
    v_add_u32 v{aWR[0]}, {s_t0}, v{T+13}
    s_add_u32 {s_t2}, {s_t1}, 128
    v_add_u32 v{aWR[1]}, {s_t2}, v{aWR[0]}
    s_sub_u32 {s_t3}, 256, {s_t1}
    v_add_u32 v{aWR[2]}, {s_t3}, v{aWR[0]}
    v_add_u32 v{aWR[3]}, 384, v{T+13}
    v_add_u32 v{aCR[3]}, {L_CS}, v{vLN16}
    s_lshl_b32 {s_t0}, {s_t0}, 4
    s_lshl_b32 {s_t2}, {s_t2}, 4
    s_lshl_b32 {s_t3}, {s_t3}, 4
    v_add_u32 v{aCR[0]}, {s_t0}, v{aCR[3]}
    v_add_u32 v{aCR[1]}, {s_t2}, v{aCR[0]}
    v_add_u32 v{aCR[2]}, {s_t3}, v{aCR[0]}
    v_add_u32 v{aCR[3]}, 6144, v{aCR[3]}
    v_mov_b32 v{aHO}, v{T+14}
    v_mov_b32 v{aHI}, {HI}
    v_mov_b32 v{aHI+1}, 1
    s_lshl_b32 {s_t0}, {s_g}, 3
    s_add_u32 {s_t0}, {s_t0}, {HI}
    v_mov_b32 v{aSW}, {s_t0}
    s_cmp_eq_u32 {s_type}, 0
    s_cbranch_scc0 L_nh1
    """)
    for i in range(1, 4): HALO_FN(i)
    a(f"""
    L_nh1:
    s_lshl_b32 {s_t0}, {s_g}, 1
    s_add_u32 {s_t0}, {s_t0}, {s_row}
    s_lshl_b32 {s_t0}, {s_t0}, 10
    buffer_load_dwordx4 {vr(vSR,4)}, v{vLN16}, {sX}, {s_t0} offen
    buffer_load_dwordx4 {vr(vSR+12,4)}, v{vLN16}, {sX}, {s_t0} offen offset:1024
    s_cmp_eq_u32 {s_type}, 0
    s_cbranch_scc1 L_A_att
    """)

def waveA(a, att, P):
    lg = Cnt(a, "lgkmcnt", 15)
    def fr(t, i): return aFR + (t % 2)*24 + 4*i
    def rd(txt, tag):
        def f(): a(txt); lg.issue(tag)
        return f
    def read_ops(t):
        if t == 32:
            order = [(3, 1), (4, 2), (2, 0), (5, 3)] if not att else [(3, 1), (4, 2), (2, 0)]
            return [rd(f"ds_read_b128 {vr(fr(t,i),4)}, v{aCR[m]}", (t, i)) for i, m in order]
        s, ks = divmod(t, 4)
        ops = []
        def wfrag(i, m):
            return [rd(f"ds_read_b64_tr_b16 {vr(fr(t,i)+2*b,2)}, v{aWR[m]} offset:{(16*ks+4*b)*RS}", (t, i)) for b in range(2)]
        ops.append(rd(f"ds_read_b128 {vr(fr(t,0),4)}, v{aXR[0][ks]}", (t, 0)))
        ops += wfrag(2, 0)
        ops.append(rd(f"ds_read_b128 {vr(fr(t,1),4)}, v{aXR[1][ks]}", (t, 1)))
        ops += wfrag(3, 1) + wfrag(4, 2)
        if att: ops.append(rd(f"ds_read_b128 {vr(fr(t,5),4)}, v{aHR[ks]} offset:{s*2048}", (t, 5)))
        else: ops += wfrag(5, 3)
        return ops
    def adv(regs, s):
        d = SLOT if (s + 1) % 3 else -2*SLOT
        return [f"v_add_u32 v{r}, {hex(d & 0xffffffff)}, v{r}" for r in regs]
    MM = [(2, 0), (2, 1), (3, 0), (3, 1), (4, 0), (4, 1), (3, 5) if att else (5, 0)]
    vKV = [aT+4, aT+5]; vTOK = [aT+6, aT+7]; vNEG = aT+3
    def kv_ops(acc, rs, addr, off):
        ops = [f"v_mul_f32 v{acc+j}, v{acc+j}, v{rs}" for j in range(16)]
        ops += [f"v_cvt_pk_bf16_f32 v{acc+j}, v{acc+2*j}, v{acc+2*j+1}" for j in range(8)]
        ops += [rd(f"ds_write_b128 v{addr}, {vr(acc,4)} offset:{off}", "KW"), rd(f"ds_write_b128 v{addr}, {vr(acc+4,4)} offset:{off+16}", "KW")]
        return ops
    def shadow_ops():
        if not att: return silu_ops(aACC[2], aC1[0], aS[0], aT, pk=0)
        txt = f"""
        v_and_b32 v{vTOK[0]}, 31, v1
        s_lshl_b32 {s_t0}, {s_g}, 5
        v_add_u32 v{vTOK[0]}, {s_t0}, v{vTOK[0]}
        v_xor_b32 v{vTOK[1]}, 32, v{vTOK[0]}
        v_and_b32 v{aT+2}, 32, v1
        s_lshl_b32 {s_t1}, {s_nh}, 6
        s_add_u32 {s_t1}, {s_t1}, {L_KV + 2*KVS}
        v_add_u32 v{aT+2}, {s_t1}, v{aT+2}
        v_mul_u32_u24 v{vKV[0]}, {KVS}, v{vTOK[0]}
        v_mul_u32_u24 v{vKV[1]}, {KVS}, v{vTOK[1]}
        v_add_u32 v{vKV[0]}, v{vKV[0]}, v{aT+2}
        v_add_u32 v{vKV[1]}, v{vKV[1]}, v{aT+2}
        s_lshl_b32 {s_t0}, {s_r}, 7
        v_add_u32 v{vTOK[0]}, {s_t0}, v{vTOK[0]}
        v_add_u32 v{vTOK[1]}, {s_t0}, v{vTOK[1]}
        s_lshl_b32 {s_t0}, {s_th}, 7
        s_xor_b32 {s_t1}, {s_t0}, 128
        v_add_u32 v8, {s_t0}, v{vKV[0]}
        v_add_u32 v9, {s_t0}, v{vKV[1]}
        v_add_u32 v10, {s_t1}, v{vKV[0]}
        v_add_u32 v11, {s_t1}, v{vKV[1]}
        v_and_b32 v12, 15, v1
        v_mul_u32_u24 v12, {KVS}, v12
        v_add3_u32 v12, v12, v{aT+2}, {s_t0}
        v_subrev_u32 v12, {2*KVS}, v12
        s_mov_b32 {s_selL}, 0x05040100
        s_mov_b32 {s_selH}, 0x07060302
        v_mov_b32 v{vNEG}, {f32(-1e30)}
        """
        ops = [l.strip() for l in txt.split("\n") if l.strip()]
        return (ops + kv_ops(aACC[2], aRS[0], 8, 14*KVS) + kv_ops(aACC[3], aRS[1], 9, 14*KVS) + kv_ops(aACC[6], aRS[2], 12, 0)
                + kv_ops(aACC[4], aRS[0], 10, 14*KVS) + kv_ops(aACC[5], aRS[1], 11, 14*KVS))
    yng = 5 if att else 2
    a(f"s_waitcnt vmcnt({yng + 4 if OPT['split0'] else yng})\ns_barrier")
    stamp(a, 2)
    s0, s1 = stats_ops(vSR, 0, s_t2), stats_ops(vSR+12, 1, s_t3)
    sfill = []
    for x, y in zip(s0, s1): sfill += [x, y]
    sfill.append(f"v_mov_b32 v{vSR+1}, v{vSR+12}")
    sfill.append(rd(f"ds_write_b64 v{aSW}, {vr(vSR,2)} offset:{MISCO}", "SW"))
    X7 = lambda ks, x: 224 + (2*ks + x)*4
    R7 = []
    M7 = []
    pool = [0]
    def pslot(i): return aFR + (i % 12)*4
    def addw(m, ks):
        i = pool[0]; pool[0] += 1
        R7.append(([rd(f"ds_read_b64_tr_b16 {vr(pslot(i)+2*b,2)}, v{aWR[m]} offset:{(16*ks+4*b)*RS}", ("p", i)) for b in range(2)], i)); return i
    def addq(txt):
        i = pool[0]; pool[0] += 1
        R7.append(([rd(txt.format(d=vr(pslot(i),4)), ("p", i))], i)); return i
    R7.append(([rd(f"ds_read_b32 v{aT+1}, v{aT} offset:{MISCO+128}", "S"), rd(f"ds_read_b32 v{aT+2}, v{aT+6} offset:{MISCO+128}", "S"),
                rd(f"ds_read_b64 {vr(aT+4,2)}, v{aHI} offset:{MISCO+64}", "S")]
               + ([rd(f"ds_read_b32 v{aT+3}, v{aT+7} offset:{MISCO+128+512}", "S")] if att else []), None))
    groups = [(1, (2, 3)), (2, (4, 5)), (0, (0, 1))] + ([] if att else [(3, (6,))])
    for gi, (m, accs) in enumerate(groups):
        for ks in range(4):
            if gi == 0: R7.append(([rd(f"ds_read_b128 {vr(X7(ks,0),4)}, v{aXR[0][ks]}", ("x", ks, 0))], None))
            w = addw(m, ks)
            if gi == 0: R7.append(([rd(f"ds_read_b128 {vr(X7(ks,1),4)}, v{aXR[1][ks]}", ("x", ks, 1))], None))
            for x, acc in enumerate(accs): M7.append((acc, pslot(w), X7(ks, x), [("p", w), ("x", ks, x)], [w]))
            if gi == 0 and att:
                h = addq("ds_read_b128 {d}, " + f"v{aHR[ks]} offset:{7*2048}")
                M7.append((6, pslot(w), pslot(h), [("p", w), ("p", h)], [w, h]))
        c = addq("ds_read_b128 {d}, " + f"v{aCR[m]}")
        for x, acc in enumerate(accs): M7.append((acc, pslot(c), aNM[x], [("p", c)], [c]))
        if gi == 0 and att: M7.append((6, pslot(c), aNM[2], [("p", c)], [c]))
        if gi == 0: g1_end = len(M7)
    last_use = {}
    for k, mm in enumerate(M7):
        for i in mm[4]: last_use[i] = k
    R7f = []
    for ops, i in R7:
        for op in ops: R7f.append((op, i))
    def r7_issue(n, done):
        cnt = 0
        while R7f and cnt < n:
            op, i = R7f[0]
            if i is not None:
                if 6 <= i < 12 and done < 0: break
                if i >= 12 and last_use[i-12] >= done: break
            R7f.pop(0); op(); cnt += 1
        return cnt
    k1 = f32(0.25*LOG2E if att else -LOG2E)
    dv = [lambda: lg.wait("S")] + derive(aT+1, aNM[0], aS[0]) + derive(aT+2, aNM[1], aS[1])
    if att: dv += derive(aT+3, aNM[2], aRS[2]) + [f"v_rcp_f32 v{aRS[2]}, v{aRS[2]}"]
    dv += [f"v_rcp_f32 v{aRS[0]}, v{aS[0]}", f"v_rcp_f32 v{aRS[1]}, v{aS[1]}", f"v_readfirstlane_b32 {s_n0}, v{aT+4}", f"v_readfirstlane_b32 {s_n1}, v{aT+5}",
           f"v_mul_f32 v{aC1[0]}, {k1}, v{aRS[0]}", f"v_mul_f32 v{aC1[1]}, {k1}, v{aRS[1]}"]

    for f in read_ops(0): f()
    for t in range(28):
        s, ks = divmod(t, 4)
        rds = read_ops(t + 1) if t < 27 else []
        post = adv([aXR[0][(t+1) % 4], aXR[1][(t+1) % 4]], (t+1)//4) if t + 1 < 28 else []
        if ks == 2: post += adv(aWR[:3] if att else aWR, s)
        if t == 0: post += adv([aXR[0][0], aXR[1][0]], 0)
        if t == 3: post.append("s_waitcnt vmcnt(0)")
        if 3 <= t <= 10:
            k = 18 if t < 10 else 999
            post += sfill[:k]; sfill = sfill[k:]
        if t == 24:
            post += [f"v_and_b32 v{aT}, 31, v1", f"s_lshl_b32 {s_t0}, {s_g}, 7\ns_add_u32 {s_t0}, {s_t0}, {HI}",
                     f"v_lshl_add_u32 v{aT}, v{aT}, 2, {s_t0}", f"v_xor_b32 v{aT+6}, 0x80, v{aT}",
                     f"v_and_b32 v{aT+7}, 15, v1", f"v_lshl_add_u32 v{aT+7}, v{aT+7}, 2, v{aHI}"]
        for m, (wi, xi) in enumerate(MM):
            bar = (m == 0 and ks == 3)
            if bar: lg.wait_all()
            lg.wait((t, wi)); lg.wait((t, xi))
            c = "0" if t == 0 else vr(aACC[m], 16)
            a(f"{MF} {vr(aACC[m],16)}, {vr(fr(t,wi),4)}, {vr(fr(t,xi),4)}, {c}")
            if m == 0 and t == 1 and OPT["split0"]: a(f"s_waitcnt vmcnt({yng})\ns_barrier")
            if bar:
                a("s_barrier")
                stamp(a, 3 + s, 1)
                if s == 3: stamp(a, 3)
                if s == 6: stamp(a, 4)
            if t == 27:
                n = r7_issue(3, -1 if m < 6 else 0)
                if m >= 3:
                    for _ in range(5 - n):
                        if dv: emit(a, dv.pop(0))
                continue
            n = 0
            for _ in range(3):
                if rds: rds.pop(0)(); n += 1
            if not rds:
                for _ in range(5 - n if m < 6 else 99):
                    if post: emit(a, post.pop(0))
    fill = shadow_ops()
    signalled = False
    for k, (acc, ra, rb, tags, _u) in enumerate(M7):
        if rb in aNM:
            while dv: emit(a, dv.pop(0))
        for tg in tags: lg.wait(tg)
        a(f"{MF} {vr(aACC[acc],16)}, {vr(ra,4)}, {vr(rb,4)}, {vr(aACC[acc],16)}")
        n = r7_issue(2, k + 1)
        src = dv if dv else (fill if k >= g1_end + 1 else [])
        budget = 5 - n
        while budget > 0 and src:
            op = src.pop(0); emit(a, op)
            budget -= 2 if (isinstance(op, str) and op.startswith(("v_exp", "v_rcp"))) else 1
    assert not R7f
    a(lds_signal(aHI, C_FRE)); lg.issue("SG")
    stamp(a, 5)
    if not att:
        def act(m, x):
            for op in silu_ops(aACC[m], aC1[x], aS[x], aT): a(op)
        def put(m, base, off):
            a(f"s_add_u32 {s_so}, {base}, {off}")
            for h in range(2): a(hstore(aACC[m] + 8*h, h))
        def flag(st):
            a("s_waitcnt vmcnt(0)")
            for op in flag_store(st, aT+12): a(op)
        T7 = [(2, 0, s_hst, "w1"), (3, 1, s_hs1, "w1"), (4, 0, s_hst, "w2"), (5, 1, s_hs1, "w2"), (0, 0, s_hst, "w0"), (1, 1, s_hs1, "w0"), (6, 0, s_hs6, "w3")]
        def fl(st, n):
            a(f"s_waitcnt vmcnt({n})")
            for op in flag_store(st, aT+12): a(op)
        FL = {0: {4: (1, 4), 6: (2, 5)}, 1: {3: (1, 2), 5: (2, 2)}}[OPT.get("fe", 0)]
        for i, (m, x, base, pos) in enumerate(T7):
            if i == 0:
                for op in fill: emit(a, op)
            else: act(m, x)
            if i in FL: fl(*FL[i])
            put(m, base, POS[pos])
            if i == 1: stamp(a, 6)
            if i == 3: stamp(a, 7)
        stamp(a, 8)
        if OPT["quiet"]: a(lds_signal(aHI, C_ST))
        flag(3)
        endpgm(a)
        return
    for op in fill: emit(a, op)
    a(lds_signal(aHI, C_KV))
    for x in range(2):
        q = aACC[x]
        for j in range(8): a(f"v_cvt_pk_bf16_f32 v{q+j}, v{q+2*j}, v{q+2*j+1}")
    stamp(a, 6)
    lds_spin(a, aHI, aRC, C_KV, P + "c1", sleep=False)
    stamp(a, 7)
    lg.q = []
    K = 144; V0 = 64
    def Vr(j): return V0 + 8*j if j < 6 else 208 + 8*(j-6)
    L = 8; Pp = 16; TT = 20; O = 224
    for x in range(2):
        kv = vKV[x]
        for j in range(8):
            for hh in range(2):
                a(f"ds_read_b128 {vr(K+8*j+4*hh,4)}, v{kv} offset:{(14-2*j)*KVS + 16*hh}"); lg.issue(("K", j))
                if len(lg.q) > 14: lg.wait(lg.q[1])
        q = aACC[x]
        a(f"v_mov_b32 v{L}, 0")
        for j in range(1, 8):
            a(f"v_cmp_gt_u32 vcc, {2*j}, v{vTOK[x]}\nv_cndmask_b32 v{L+j}, 0, v{vNEG}, vcc")
        for j in range(8):
            lg.wait(("K", j))
            for hh in range(2):
                a(f"ds_read_b128 {vr(Vr(j)+4*hh,4)}, v{kv} offset:{(14-2*j)*KVS + 128 + 16*hh}"); lg.issue(("V", j))
                if len(lg.q) > 14: lg.wait(lg.q[1])
            for i in range(8): a(f"v_dot2c_f32_bf16 v{L+j}, v{q+i}, v{K+8*j+i}")
        a(f"""
        v_max3_f32 v{TT}, v{L}, v{L+1}, v{L+2}
        v_max3_f32 v{TT+1}, v{L+3}, v{L+4}, v{L+5}
        v_max3_f32 v{TT}, v{TT}, v{L+6}, v{L+7}
        v_max_f32 v{TT}, v{TT}, v{TT+1}
        v_mul_f32 v{TT}, v{TT}, v{aC1[x]}
        """)
        for j in range(8): a(f"v_fma_f32 v{L+j}, v{L+j}, v{aC1[x]}, -v{TT}")
        for j in range(8): a(f"v_exp_f32 v{L+j}, v{L+j}")
        a(f"""
        v_add_f32 v{TT}, v{L}, v{L+1}
        v_add_f32 v{TT+1}, v{L+2}, v{L+3}
        v_add_f32 v{TT+2}, v{L+4}, v{L+5}
        v_add_f32 v{TT+3}, v{L+6}, v{L+7}
        v_add_f32 v{TT}, v{TT}, v{TT+1}
        v_add_f32 v{TT+2}, v{TT+2}, v{TT+3}
        v_add_f32 v{TT}, v{TT}, v{TT+2}
        v_rcp_f32 v{TT}, v{TT}
        """)
        for j in range(8): a(f"v_mul_f32 v{L+j}, v{L+j}, v{TT}")
        for j in range(4): a(f"v_cvt_pk_bf16_f32 v{Pp+j}, v{L+2*j}, v{L+2*j+1}")
        for j in range(16): a(f"v_mov_b32 v{O+j}, 0")
        for jp in range(4):
            lg.wait(("V", 2*jp+1))
            va, vb = Vr(2*jp), Vr(2*jp+1)
            for i in range(8):
                a(f"v_perm_b32 v{K+2*i}, v{vb+i}, v{va+i}, {s_selL}\nv_perm_b32 v{K+2*i+1}, v{vb+i}, v{va+i}, {s_selH}")
            for i in range(16): a(f"v_dot2c_f32_bf16 v{O+i}, v{K+i}, v{Pp+jp}")
        for j in range(8): a(f"v_cvt_pk_bf16_f32 v{q+8+j}, v{O+2*j}, v{O+2*j+1}")
        a(f"s_add_u32 {s_so}, {(s_hst, s_hs1)[x]}, {POS['att']}")
        for h in range(2): a(hstore(q+8+4*h, h))
        if x == 0: stamp(a, 8)
    a("s_waitcnt vmcnt(0)")
    for op in flag_store(0, aT+12): a(op)
    endpgm(a)

def waveB(a):
    T = vP
    vm = Cnt(a, "vmcnt", 63); lg = Cnt(a, "lgkmcnt", 15)
    HB, WB = 3, 8
    vHB, vWB, vA = 16, 64, 192
    bCR, bHO = 11, 12
    a("L_B:")
    a(f"s_setprio {OPT['prioB']}")
    bHI = 62
    a(f"""
    s_and_b32 {s_rb2}, s2, 7
    s_lshl_b32 {s_rb2}, {s_rb2}, 2
    s_bfe_u32 s3, s2, 0x20003
    s_add_u32 {s_rb2}, {s_rb2}, s3
    s_lshr_b32 {s_cb}, s2, 5
    {f"s_and_b32 s3, s3, 1" if OPT.get("mix") else ""}
    {f"s_lshl_b32 s3, s3, 2" if OPT.get("mix") else ""}
    {f"s_xor_b32 {s_cb}, {s_cb}, s3" if OPT.get("mix") else ""}
    s_add_u32 {s_lam}, {s_rb2}, {s_cb}
    s_and_b32 {s_lam}, {s_lam}, 3
    v_lshrrev_b32 v{T+6}, 2, v1
    v_xor_b32 v{T+6}, v{T+6}, v{T+1}
    v_and_b32 v{T+6}, 1, v{T+6}
    v_and_b32 v{T+5}, 3, v1
    v_lshlrev_b32 v{bFA}, 3, v{T+5}
    v_lshl_or_b32 v{bFA}, v{T+9}, 7, v{bFA}
    v_lshlrev_b32 v{T+5}, 4, v{T+5}
    v_lshl_or_b32 v{T+6}, v{T+6}, 6, v{T+5}
    s_lshl_b32 {s_t3}, {s_cb}, 7
    v_lshl_or_b32 v{bD2}, v{T}, 10, v{T+6}
    v_add_u32 v{bD2}, {s_t3}, v{bD2}
    s_mul_i32 {s_wq}, {s_g}, {448*1024}
    s_and_b32 {s_t3}, {s_rb2}, 1
    s_lshl_b32 {s_t3}, {s_t3}, 16
    s_add_u32 {s_wqp}, {s_wq}, {s_t3}
    s_sub_u32 {s_wqm}, {s_wq}, {s_t3}
    s_lshl_b32 {s_oq}, {s_g}, 17
    s_mul_i32 {s_ring}, {s_g}, 12288
    s_add_u32 {s_ring}, {s_ring}, {L_RING}
    s_bfe_u32 {s_t2}, {s_r}, 0x10002
    s_lshl_b32 {s_t2}, {s_t2}, 1
    s_and_b32 {s_t3}, {s_r}, 1
    s_add_u32 {s_t2}, {s_t2}, {s_t3}
    s_lshl_b32 {s_t3}, {s_t2}, 7
    s_add_u32 {s_t3}, {s_t3}, {s_gw}
    v_add_u32 v{bCR}, {s_t3}, v{T+13}
    s_lshl_b32 {s_t1}, {s_type}, 3
    s_add_u32 {s_t1}, {s_t1}, {s_c}
    s_lshl_b32 {s_t1}, {s_t1}, 13
    s_add_u32 {s_csb}, {s_t1}, {hex(WS_CS)}
    s_lshl_b32 {s_t0}, {s_t2}, 11
    s_bfe_u32 {s_t1}, {s_r}, 0x10001
    s_lshl_b32 {s_t1}, {s_t1}, 3
    s_add_u32 {s_t0}, {s_t0}, {s_t1}
    s_lshr_b32 {s_t1}, {s_r}, 3
    s_lshl_b32 {s_t1}, {s_t1}, 9
    s_add_u32 {s_t0}, {s_t0}, {s_t1}
    s_add_u32 {s_csp}, {s_t0}, {s_csb}
    s_lshl_b32 {s_t0}, {s_g}, 11
    s_add_u32 {s_csb}, {s_csb}, {s_t0}
    s_lshl_b32 {s_row}, {s_row}, 4
    s_add_u32 {s_row}, {s_row}, {hex(WS_STATS)}
    v_and_b32 v{bT+12}, 31, v1
    v_lshlrev_b32 v{bT+13}, 5, v{bT+12}
    v_add_u32 v{bT+13}, {HI}, v{bT+13}
    v_lshl_or_b32 v{bT+14}, v{T+10}, 2, v{bT+13}
    s_lshl_b32 {s_t0}, {s_g}, 3
    v_add_u32 v{bT+14}, {s_t0}, v{bT+14}
    s_lshl_b32 {s_t0}, {s_g}, 11
    s_add_u32 {s_t0}, {s_t0}, {HI}
    v_add_u32 v{bT+15}, {s_t0}, v{vLN16}
    s_lshl_b32 {s_t0}, {s_r}, 11
    s_lshl_b32 {s_t1}, {s_g}, 9
    s_add_u32 {s_t1}, {s_t1}, {s_t0}
    s_max_u32 {s_t0}, {s_t0}, 256
    s_sub_u32 {s_t0}, {s_t0}, 256
    s_cmp_eq_u32 {s_type}, 0
    s_cselect_b32 {s_t0}, {s_t0}, {s_t1}
    v_and_b32 v{bT+8}, 15, v1
    v_lshl_add_u32 v{bT+9}, v{bT+8}, 4, {s_t0}
    v_lshl_add_u32 v{bT+7}, v{bT+12}, 4, {s_t1}
    v_cmp_gt_u32 vcc, 32, v1
    s_lshl_b32 {s_t0}, {s_g}, 7
    s_add_u32 {s_t0}, {s_t0}, {HI}
    v_cndmask_b32 v{bT+9}, v{bT+9}, v{bT+7}, vcc
    v_lshl_add_u32 v{bT+10}, v{bT+12}, 2, {s_t0}
    v_lshlrev_b32 v{bT+8}, 2, v{bT+8}
    v_add_u32 v{bT+8}, {HI+512}, v{bT+8}
    v_cndmask_b32 v{bT+10}, v{bT+8}, v{bT+10}, vcc
    v_lshlrev_b32 v{bT+12}, 4, v{bT+12}
    v_lshl_or_b32 v{bT+12}, v{T+10}, 10, v{bT+12}
    v_lshlrev_b32 v{bT+13}, 5, v1
    v_add_u32 v{bT+13}, {HI}, v{bT+13}
    v_mov_b32 v{bT+4}, 0
    v_mov_b32 v{bT+5}, 0
    v_mov_b32 v{bHO}, v{T+14}
    v_lshl_add_u32 v{T+3}, v{T+10}, 4, v{T+9}
    v_lshl_add_u32 v{T+2}, v{T+3}, 7, v{vINU}
    v_lshrrev_b32 v{T+3}, 1, v{T+9}
    v_xor_b32 v{T+3}, {s_th}, v{T+3}
    v_lshl_add_u32 v{T+2}, v{T+3}, 6, v{T+2}
    v_add_u32 v{bR[0]}, {s_ring}, v{T+2}
    v_xor_b32 v{bR[1]}, 64, v{bR[0]}
    s_lshl_b32 {s_t2}, {s_nh}, 10
    v_add_u32 v{bH[0]}, {s_t2}, v{vLN16}
    v_xor_b32 v{bH[1]}, 0x400, v{bH[0]}
    s_mul_i32 {s_hld}, {s_rb2}, {WS_RB2}
    s_mul_i32 {s_t2}, {s_g}, {36*2048}
    s_add_u32 {s_hld}, {s_hld}, {s_t2}
    v_and_b32 v{T+3}, 31, v1
    v_lshlrev_b32 v{T+3}, 10, v{T+3}
    v_lshl_or_b32 v{T+3}, v{T+10}, 5, v{T+3}
    s_lshl_b32 {s_t2}, {s_rb2}, 16
    s_lshl_b32 {s_t1}, {s_nh}, 15
    s_add_u32 {s_t2}, {s_t2}, {s_t1}
    s_lshl_b32 {s_t1}, {s_cb}, 7
    s_add_u32 {s_t2}, {s_t2}, {s_t1}
    s_lshl_b32 {s_t0}, {s_th}, 6
    s_add_u32 {s_t2}, {s_t2}, {s_t0}
    v_add_u32 v{bO}, {s_t2}, v{T+3}
    s_lshl_b32 {s_fst}, {s_rb2}, 2
    s_add_u32 {s_fst}, {s_fst}, {s_g}
    s_lshl_b32 {s_fst}, {s_fst}, 9
    s_add_u32 {s_fst}, {s_fst}, {hex(WS_FLAGS)}
    v_mov_b32 v{bHI}, {HI}
    v_mov_b32 v{bHI+1}, 1
    v_lshlrev_b32 v{bT}, 2, v1
    v_add_u32 v{bT+11}, {HI}, v{bT}
    v_mov_b32 v{bT+2}, 0
    ds_write_b32 v{bT+11}, v{bT+2} offset:{MISCO+C_RDY}
    """)
    pieces = []
    for u in range(1, 8): pieces += [(u, f) for f in unit_pieces(a, vm, u)]
    def issue(n, s):
        for _ in range(n):
            if pieces and pieces[0][0] <= s + 2: pieces.pop(0)[1]()
    if not OPT["split0"]: issue(OPT.get("q0", 6), 0)
    a("s_waitcnt lgkmcnt(0)\ns_barrier")
    stamp(a, 2)
    if OPT["split0"]:
        issue(4, 0)
        a("s_barrier")
    def nonce_load():
        a(f"v_mov_b32 v{bT+8}, 0\nbuffer_load_dwordx2 {vr(bNM,2)}, v{bT+8}, {sDBG}, 0 offen sc1")
    def cs_read(s):
        for u in range(2):
            for b in range(2):
                a(f"ds_read_b64_tr_b16 {vr(bCF+4*u+2*b,2)}, v{bCR} offset:{s*SLOT + u*64 + 4*b*RS}"); lg.issue("C")
    def cs_ops(s):
        ops = [lambda: lg.wait("C")]
        for i in range(8):
            acc = bT + 4 + i // 4
            ops.append(f"v_lshlrev_b32 v{bT}, 16, v{bCF+i}\nv_and_b32 v{bT+1}, 0xffff0000, v{bCF+i}\n"
                       f"v_add_f32 v{bT}, v{bT}, v{bT+1}\nv_add_f32 v{acc}, v{acc}, v{bT}")
        return ops
    def cs_write():
        for u in range(2):
            a(f"ds_write_b32 v{bT+14}, v{bT+4+u} offset:{CSRO + u*1024}"); lg.issue("CW")
    def pub_stats_pre():
        a(f"ds_read_b32 v{bST}, v{bT+11} offset:{MISCO}"); lg.issue("P")
    def nonce_head():
        a(f"""
        s_cmp_eq_u32 {s_g}, 0
        s_cbranch_scc0 B_nnh
        s_mov_b32 {s_spin}, 0
        B_nchk:
        v_readfirstlane_b32 {s_n1}, v{bNM+1}
        s_cmp_lg_u32 {s_n1}, 0
        s_cbranch_scc1 B_nok
        s_add_u32 {s_spin}, {s_spin}, 1
        s_cmp_ge_u32 {s_spin}, {SPIN_MAX}
        s_cbranch_scc1 B_nok
        s_sleep 2
        """)
        nonce_load()
        a(f"s_waitcnt vmcnt(0)\ns_branch B_nchk\nB_nok:")
        if OPT["diag"]: a(f"s_mov_b32 s101, {s_spin}")
        a(f"""
        ds_write_b64 v{bHI}, {vr(bNM,2)} offset:{MISCO+64}
        v_mov_b32 v{bST+1}, v{bNM}
        v_mov_b32 v{bST+2}, v{bNM+1}
        v_mov_b32 v{bST+3}, 0
        B_nnh:
        """)
        lg.issue("P0")
    def pub_stats():
        lg.wait("P")
        a(f"""
        s_cmp_eq_u32 {s_g}, 0
        s_cbranch_scc0 B_npub
        s_mov_b64 exec, 0xff
        buffer_store_dwordx4 {vr(bST,4)}, v{vLN16}, {sWS}, {s_row} offen sc1
        s_mov_b64 exec, -1
        B_npub:
        """)
    def pub_cs_ops():
        def r():
            a(f"""
            ds_read_b128 {vr(bCF,4)}, v{bT+13} offset:{CSRO}
            ds_read_b128 {vr(bCF+4,4)}, v{bT+13} offset:{CSRO+16}
            ds_read_b64 {vr(bNM,2)}, v{bHI} offset:{MISCO+64}
            """)
            for _ in range(3): lg.issue("P")
        return [r, "s_nop 0", lambda: lg.wait("P"),
            f"v_add_f32 v{bCF}, v{bCF}, v{bCF+1}\nv_add_f32 v{bCF+2}, v{bCF+2}, v{bCF+3}\nv_add_f32 v{bCF+4}, v{bCF+4}, v{bCF+5}\nv_add_f32 v{bCF+6}, v{bCF+6}, v{bCF+7}",
            f"v_add_f32 v{bCF}, v{bCF}, v{bCF+2}\nv_add_f32 v{bCF+4}, v{bCF+4}, v{bCF+6}\nv_readfirstlane_b32 {s_n0}, v{bNM}\nv_add_f32 v{bCF}, v{bCF}, v{bCF+4}",
            f"v_cvt_pk_bf16_f32 v{bCF+2}, v{bCF}, v{bCF}\nv_and_b32 v{bCF+2}, 0xffff0000, v{bCF+2}\nv_readfirstlane_b32 {s_n1}, v{bNM+1}\nv_sub_f32 v{bCF+2}, v{bCF}, v{bCF+2}",
            f"""v_cvt_pk_bf16_f32 v{bCF}, v{bCF}, v{bCF+2}
            v_mov_b32 v{bCF+1}, v{bNM}
            s_cmp_eq_u32 {s_g}, 1
            s_cbranch_scc0 B_npc
            buffer_store_dwordx2 {vr(bCF,2)}, v{bT+12}, {sWS}, {s_csp} offen sc1
            B_npc:"""]
    def fetch():
        a(f"""
        s_mov_b32 {s_t0}, {hex(WS_STATS)}
        buffer_load_dwordx4 {vr(bST,4)}, v{bT+9}, {sWS}, {s_t0} offen sc1
        buffer_load_dwordx4 {vr(bCF,4)}, v{vLN16}, {sWS}, {s_csb} offen sc1
        buffer_load_dwordx4 {vr(bCF+4,4)}, v{vLN16}, {sWS}, {s_csb} offen offset:1024 sc1
        """)
        for _ in range(3): vm.issue("ST")
    def handover():
        vm.wait("ST")
        a(f"""
        s_mov_b32 {s_spin}, 0
        B_schk:
        v_cmp_ne_u32 vcc, {s_n0}, v{bST+1}
        """)
        for reg, n in [(bST+2, s_n1), (bCF+1, s_n0), (bCF+3, s_n0), (bCF+5, s_n0), (bCF+7, s_n0)]:
            a(f"v_cmp_ne_u32 s[4:5], {n}, v{reg}\ns_or_b64 vcc, vcc, s[4:5]")
        a(f"""
        s_cbranch_scc0 B_sok
        s_add_u32 {s_spin}, {s_spin}, 1
        s_cmp_ge_u32 {s_spin}, {SPIN_MAX}
        s_cbranch_scc1 B_sok
        s_sleep 2
        """)
        sv = list(vm.q); fetch(); vm.q = sv
        a(f"s_waitcnt vmcnt(0)\ns_branch B_schk\nB_sok:")
        if OPT["diag"]: a(f"s_lshl_b32 s3, {s_spin}, 8\ns_and_b32 s101, s101, 0xff\ns_or_b32 s101, s101, s3")
        a(f"""
        ds_write_b32 v{bT+10}, v{bST} offset:{MISCO+128}
        v_mov_b32 v{bCF+1}, 0
        v_mov_b32 v{bCF+3}, 0
        v_mov_b32 v{bCF+5}, 0
        v_mov_b32 v{bCF+7}, 0
        ds_write_b128 v{bT+15}, {vr(bCF,4)} offset:{CSO}
        s_cmp_eq_u32 {s_g}, 3
        s_cbranch_scc1 B_nu7
        ds_write_b128 v{bT+15}, {vr(bCF+4,4)} offset:{CSO+1024}
        B_nu7:
        """)
        lg.issue("SW")
    NRAW = OPT["nraw"]
    def rslot(b):
        if b < NRAW: return RHI + 2*4096
        if b <= 10: return RHI + ((b - NRAW) % 3)*4096
        if b <= 13: return (b - 11)*4096
        return rslot(b - 6)
    def woff(b, dst):
        if not OPT.get("perm"):
            sr, base, row0 = blk(b)
            a(f"s_add_u32 {dst}, {base}, {row0*1024}"); return sr
        if 12 <= b < 14:
            sr, base, row0 = blk(12)
            a(f"s_xor_b32 s3, {s_lam}, {b-12}\ns_and_b32 s3, s3, 1\ns_mul_i32 s3, s3, {224*1024}\ns_add_u32 s3, s3, {row0*1024}\ns_add_u32 {dst}, {base}, s3"); return sr
        b0 = (b & ~3) if b < 12 else 14
        k = b - b0
        sr, base, row0 = blk(b0)
        cs_ = 224 if b < 12 else 64
        a(f"""
        s_xor_b32 s3, {s_lam}, {k}
        s_lshr_b32 {dst}, s3, 1
        s_mul_i32 {dst}, {dst}, {cs_*1024}
        s_and_b32 s3, s3, 1
        s_lshl_b32 s3, s3, 15
        s_add_u32 {dst}, {dst}, s3
        s_add_u32 {dst}, {dst}, {base}
        s_add_u32 {dst}, {dst}, {row0*1024}
        """); return sr
    def Dp(b):
        if b >= 18: return []
        ps = []
        sr = blk(b)[0]
        for i in range(4):
            def f(i=i):
                if i == 0: woff(b, s_d0)
                else: a(f"s_add_u32 {s_d0}, {s_d0}, 8192")
                dma(a, vm, ("D", b), bD2, sr, s_d0, s_ring, rslot(b) + i*1024)
            ps.append(f)
        return ps
    def Trp(b):
        if b >= 18: return []
        ps = []
        for f in range(2):
            for nu in range(2):
                def g(f=f, nu=nu):
                    vm.wait(("D", b))
                    for b2 in range(2):
                        d = vWB + (b % WB)*16 + (f*2 + nu)*4 + 2*b2
                        a(f"ds_read_b64_tr_b16 {vr(d,2)}, v{bR[nu]} offset:{rslot(b) + (8*f+4*b2)*128}"); lg.issue(("T", b))
                ps.append(g)
        return ps
    def TD(b):
        return Trp(b) + [lambda: lg.wait(("T", b))] + Dp(b + 3)
    def raw(b):
        sr, base, row0 = blk(b)
        for i in range(4):
            a(f"s_add_u32 {s_t0}, {base}, {row0*1024 + i*8192}")
            a(f"buffer_load_dwordx4 {vr(vWB+16*b+4*i,4)}, v{bD2}, {sr}, {s_t0} offen"); vm.issue(("D", b))
    def convert(b):
        vm.wait(("D", b))
        for i in range(4): a(f"ds_write_b128 v{bCR}, {vr(vWB+16*b+4*i,4)} offset:{rslot(b) + i*1024}")
        for f in Trp(b): f()
        lg.wait(("T", b))
    def nonce0():
        a(f"s_cmp_eq_u32 {s_g}, 0\ns_cbranch_scc0 B_t0")
        nonce_load()
        a("B_t0:")
    def touch():
        a(f"""
        v_lshlrev_b32 v{bT+8}, 7, v1
        s_cmp_eq_u32 {s_g}, 1
        s_cbranch_scc0 B_t2
        s_mul_i32 {s_t1}, s2, {56*128}
        s_mov_b32 exec_hi, 0xffffff
        buffer_load_dword v{bT+6}, v{bT+8}, {sW2}, {s_t1} offen
        s_branch B_t3
        B_t2:
        s_cmp_eq_u32 {s_g}, 2
        s_cbranch_scc0 B_t3
        s_lshl_b32 {s_t0}, s2, 11
        s_mov_b64 exec, 0xffff
        buffer_load_dword v{bT+6}, v{bT+8}, {sWO}, {s_t0} offen
        B_t3:
        s_mov_b64 exec, -1
        """)
    nr = 0
    QUOTA = [14, 15, 15, 12, 12, 12]
    for s in range(7):
        ex = []
        if s == 2: cs_write(); nonce_head()
        if s == 6: handover()
        if s < 6:
            issue(1, s)
            if s < 2: cs_read(s); ex = cs_ops(s)
            if s == 3: pub_stats_pre(); ex = pub_cs_ops() + [pub_stats]
            for k in range(1, QUOTA[s]):
                issue(1, s)
                if (k >= 2 or s == 3) and ex: emit(a, ex.pop(0))
            assert not ex and (not pieces or pieces[0][0] > s + 1)
        else:
            assert not pieces
            for f in Dp(NRAW) + Dp(NRAW + 1) + ([] if NRAW else Dp(2)): f()
        if s == 0: nonce0()
        if s == OPT['w2touch']: touch()
        if s == 4: fetch()
        if s < 6 and s >= 6 - NRAW: raw(nr); nr += 1
        vm.wait(("U", s + 1))
        if lg.q: lg.wait_all()
        a("s_barrier")
        stamp(a, 3 + s, 1)
        if s == 3: stamp(a, 3)
        if s == 6: stamp(a, 4)
    if NRAW:
        a(f"v_add_u32 v{bCR}, {s_ring}, v{vLN16}")
        for b in range(NRAW): convert(b)
        for f in Dp(NRAW + 2): f()
    GR = {0: 0x00f0, 4: 0x0f00, 8: 0xf000, 14: 0x000f}
    s_ok, s_pend = s_t2, s_t3
    LD = (f"v_mov_b32 v{bF}, 0\nv_mov_b32 v{bF+1}, 0\ns_mov_b64 exec, 0xffff\n"
          f"buffer_atomic_or_x2 {vr(bF,2)}, v{bFA}, {sWS}, {s_fst} offen sc0 sc1\ns_mov_b64 exec, -1")
    issued = [0]; _iss = vm.issue
    def cnt_issue(tag): issued[0] += 1; _iss(tag)
    vm.issue = cnt_issue
    mark = {}
    def do_poll(b):
        if b not in GR: return
        if b == 0: a(f"s_mov_b32 {s_ok}, 0")
        a(f"""
        s_andn2_b32 s3, {hex(GR[b])}, {s_ok}
        s_cbranch_scc0 P2p{b}
        {LD}
        P2p{b}:
        """)
        mark[b] = issued[0]
    def ensure(b):
        a(f"""
        s_andn2_b32 s3, {hex(GR[b])}, {s_ok}
        s_cbranch_scc0 P2k{b}
        s_waitcnt vmcnt({issued[0] - mark[b]})
        s_mov_b32 {s_spin}, 0
        P2c{b}:
        v_cmp_eq_u32 vcc, {s_n0}, v{bF}
        v_cmp_eq_u32 s[4:5], {s_n1}, v{bF+1}
        s_and_b32 {s_ok}, vcc_lo, s4
        s_andn2_b32 s3, {hex(GR[b])}, {s_ok}
        s_cbranch_scc0 P2k{b}
        s_add_u32 {s_spin}, {s_spin}, 1
        """)
        if OPT["diag"]:
            sh = 16 if b == 0 else (20 if b < 8 else (24 if b < 14 else 28))
            a(f"s_bitset1_b32 s101, {sh}")
        a(f"""
        s_cmp_ge_u32 {s_spin}, {SPIN_MAX}
        s_cbranch_scc1 P2k{b}
        s_sleep 1
        s_nop 7
        {LD}
        s_waitcnt vmcnt(0)
        s_branch P2c{b}
        P2k{b}:
        """)
    def Hp(b):
        if b >= 18: return []
        ps = []
        for f in range(2):
            for tg in range(2):
                def g(f=f, tg=tg):
                    if f == 0 and tg == 0:
                        if b in GR: ensure(b)
                        if OPT.get("fakeh"): a(f"s_add_u32 {s_t1}, {s_hld}, {(b%3)*4096}")
                        elif OPT.get("perm"):
                            b0 = (b & ~3) if b < 12 else (12 if b < 14 else 14)
                            a(f"s_xor_b32 s3, {s_lam}, {b-b0}\n" + (f"s_and_b32 s3, s3, 1\n" if b0 == 12 else "") +
                              f"s_lshl_b32 s3, s3, 12\ns_add_u32 s3, s3, {b0*4096}\ns_add_u32 {s_t1}, {s_hld}, s3")
                        else: a(f"s_add_u32 {s_t1}, {s_hld}, {b*4096}")
                    d = vHB + (b % HB)*16 + (f*2 + tg)*4
                    a(f"buffer_load_dwordx4 {vr(d,4)}, v{bH[tg]}, {sWS}, {s_t1} offen offset:{f*2048} sc1"); vm.issue(("H", b, f, tg))
                ps.append(g)
        return ps
    def Mp(b):
        ps = []
        for f in range(2):
            for nu in range(2):
                for tg in range(2):
                    def g(f=f, nu=nu, tg=tg):
                        lg.wait(("T", b)); vm.wait(("H", b, f, tg))
                        acc = vA + (nu*2 + tg)*16
                        c = "0" if (b == 0 and f == 0 and (nu or tg)) else vr(acc, 16)
                        if not (OPT.get("nom2") and (nu or tg)): a(f"{MF} {vr(acc,16)}, {vr(vWB+(b%WB)*16+(f*2+nu)*4,4)}, {vr(vHB+(b%HB)*16+(f*2+tg)*4,4)}, {c}")
                    ps.append(g)
        return ps
    NPRE = max(min(NRAW + OPT.get("npre", 4), 8), NRAW)
    for b in range(NRAW, NPRE):
        for f in TD(b): f()
    stamp(a, 5)
    lds_spin(a, bHI, bT, C_FRE, "B_f9"); lg.q = []
    for f in Dp(11) + Dp(12) + Dp(13): f()
    xr = vA + 16
    a(f"buffer_load_dwordx4 {vr(xr,4)}, v{bO}, {sX}, 0 offen\nbuffer_load_dwordx4 {vr(xr+4,4)}, v{bO}, {sX}, 0 offen offset:16")
    vm.issue("X"); vm.issue("X")
    stamp(a, 6)
    if OPT["share"]:
        a(f"s_cmp_eq_u32 {s_type}, 0\ns_cbranch_scc1 B_att2")
        a(f"v_xor_b32 v{bT+11}, 0x80, v{bT+10}\nds_read_b32 v{bST+1}, v{bT+11} offset:{MISCO+128}")
        lds_spin(a, bHI, bT, C_HO, "B_ho")
        for i in range(3):
            for j in range(4):
                a(f"ds_read_b128 {vr(vA+16*i+4*j,4)}, v{bHO} offset:{i*4096 + j*1024}"); lg.issue(("A", i))
        S = [bST+2, bST+3]; C1 = [bST+4, bST+5]
        a(f"""
        v_and_b32 v{S[0]}, 0xffff0000, v{bST}
        v_and_b32 v{S[1]}, 0xffff0000, v{bST+1}
        v_rcp_f32 v{C1[0]}, v{S[0]}
        v_rcp_f32 v{C1[1]}, v{S[1]}
        v_mul_f32 v{C1[0]}, {f32(-LOG2E)}, v{C1[0]}
        v_mul_f32 v{C1[1]}, {f32(-LOG2E)}, v{C1[1]}
        """)
        for i, (x, base, off) in enumerate([(0, s_hst, POS["w2"]), (1, s_hs1, POS["w2"]), (0, s_hs6, POS["w3"])]):
            lg.wait(("A", i))
            for op in silu_ops(vA+16*i, C1[x], S[x], bT): a(op)
            a(f"s_add_u32 {s_so}, {base}, {off}")
            for h in range(2): a(hstore(vA+16*i+8*h, h))
        stamp(a, 7)
        a("B_att2:")
        for b in range(NPRE, 8):
            for f in Trp(b): f()
        a(f"s_cmp_eq_u32 {s_type}, 0\ns_cbranch_scc1 B_att3")
        a("s_waitcnt vmcnt(0)")
        for op in flag_store(2, bT+12): a(op)
        a(flag_store(4, bT+12)[-1])
        a("B_att3:")
        assert 8 - NPRE <= 3
        for b in range(NPRE, 8):
            lg.wait(("T", b))
            for f in Dp(b + 3): f()
    else:
        if OPT["quiet"] == 3:
            assert NPRE >= 5
            for b in range(NPRE, 8):
                for f in Trp(b): f()
            vm.wait("X")
            for i in range(8):
                a(f"v_lshlrev_b32 v{vA+2*i}, 16, v{xr+i}\nv_and_b32 v{vA+2*i+1}, 0xffff0000, v{xr+i}")
            lg.wait_all()
            if OPT.get("pe"): do_poll(0)
            if not OPT.get("nq"):
                a(f"s_cmp_eq_u32 {s_type}, 0\ns_cbranch_scc1 B_qk")
                lds_spin(a, bHI, bT, C_ST, "B_q")
            stamp(a, 7)
            deferred = list(range(NPRE + 3, 11))
        else:
            if OPT["quiet"]:
                a(f"s_cmp_eq_u32 {s_type}, 0\ns_cbranch_scc1 B_qk")
                lds_spin(a, bHI, bT, C_ST, "B_q")
                stamp(a, 7)
                if OPT["quiet"] == 2: do_poll(0)
            for b in range(NPRE, 8):
                for f in TD(b): f()
    if OPT['quiet'] != 2 and not OPT.get('pe'): do_poll(0)
    stamp(a, 10)
    if OPT["quiet"] == 3:
        for _ in range(OPT.get("nd", 2)):
            if deferred:
                for f in Dp(deferred.pop(0)): f()
    else:
        deferred = []
        vm.wait("X")
        for i in range(8):
            a(f"v_lshlrev_b32 v{vA+2*i}, 16, v{xr+i}\nv_and_b32 v{vA+2*i+1}, 0xffff0000, v{xr+i}")
    for f in Hp(0) + Hp(1) + Hp(2): f()
    stamp(a, 11)
    carry = []; nxt = 14
    for b in range(18):
        TL = OPT.get("tl", 7)
        tb = b + TL
        ms = Mp(b); ts = Trp(tb) if tb >= 8 else []
        dw = None
        if deferred: ds = Dp(deferred.pop(0))
        elif nxt < 18 and nxt - 6 < tb: ds = Dp(nxt); dw = nxt - 6; nxt += 1
        else: ds = []
        do_poll(b + 4)
        hs = Hp(b + 3)
        for i in range(8):
            ms[i]()
            if i < 2 and carry: carry.pop(0)()
            if i < 4:
                if ds:
                    if i == 0 and dw is not None: lg.wait(("T", dw))
                    ds[i]()
            else:
                if ts: ts[i-4]()
                if i < 6 and hs: hs[i-4]()
        carry = hs[2:]
        if b == 7: stamp(a, 12)
    stamp(a, 13)
    R = 2
    a(f"v_add_u32 v{R}, {s_ring}, v{vLN16}")
    for sg in range(1, 4):
        a(f"""
        s_xor_b32 {s_t0}, {s_g}, {sg}
        s_mul_i32 {s_t0}, {s_t0}, 12288
        s_add_u32 {s_t0}, {s_t0}, {L_RING}
        v_add_u32 v{R+sg}, {s_t0}, v{vLN16}
        """)
    for sg in range(1, 4):
        for j in range(4):
            a(f"ds_write_b128 v{R}, {vr(vA+16*sg+4*j,4)} offset:{(sg-1)*4096 + j*1024}")
    a("s_waitcnt lgkmcnt(0)\ns_barrier")
    lg.q = []
    for sg in range(1, 4):
        for j in range(4):
            a(f"ds_read_b128 {vr(vA+16*sg+4*j,4)}, v{R+sg} offset:{(sg-1)*4096 + j*1024}"); lg.issue(("F", sg))
    U = vHB
    OF = {0: '', 1: 'sc1', 2: 'nt', 3: 'sc0 sc1'}[OPT.get('of', 0)]
    for sg in range(1, 4):
        lg.wait(("F", sg))
        for j in range(16): a(f"v_add_f32 v{vA+j}, v{vA+j}, v{vA+16*sg+j}")
    for j in range(8): a(f"v_cvt_pk_bf16_f32 v{U+j}, v{vA+2*j}, v{vA+2*j+1}")
    a(f"buffer_store_dwordx4 {vr(U,4)}, v{bO}, {sOUT}, 0 offen {OF}\nbuffer_store_dwordx4 {vr(U+4,4)}, v{bO}, {sOUT}, 0 offen offset:16 {OF}")
    endpgm(a)

def build():
    a = Asm()
    prologue(a)
    waveA_setup(a)
    waveA(a, False, "M_")
    a("L_A_att:")
    waveA(a, True, "T_")
    waveB(a)
    a("L_done:\ns_endpgm\nL_codeend:")
    body = "\n".join(hazard.fix(a.lines)) + "\n"
    return single(body, 256, 512, 163840)

if __name__ == "__main__":
    out = sys.argv[1]
    for arg in sys.argv[2:]:
        if "=" in arg:
            k, v = arg.split("="); OPT[k] = int(v)
        else: OPT[arg] = True
    open(out, "w").write(build())
```

```python
import sys, struct
from asmlib import *
import hazard

def f32(x): return "0x%08x" % struct.unpack("<I", struct.pack("<f", x))[0]
LOG2E = 1.4426950408889634
OPT = dict(diag=False, prioA=0, prioB=0, pm=3, w2touch=3, share=0, xc=0, nraw=0, pk=1, seq=6, split0=1, f5=1, quiet=1, ep=1)

class Cnt:
    def __init__(self, a, name, mx): self.a, self.name, self.mx, self.q = a, name, mx, []
    def issue(self, tag): self.q.append(tag)
    def wait(self, tag):
        if tag not in self.q: return
        idx = max(i for i, t in enumerate(self.q) if t == tag)
        n = min(len(self.q) - idx - 1, self.mx)
        self.a(f"s_waitcnt {self.name}({n})")
        self.q = self.q[len(self.q) - n:] if n else []
    def wait_all(self):
        self.a(f"s_waitcnt {self.name}(0)"); self.q = []

WS_RB2 = 144 * 2048
WS_STATS = 0x900000
WS_FLAGS = 0x910000
WS_CS = 0x960000
WS_SIZE = 0x1000000
WS_DIAG = 0xA00000
SLOT = 45056
WOFF = 16384
RS = 448
L_KV = 0
KVS = 272
L_RING = 40960
RHI = 49152
L_CSR = 135168
L_HALO = 139264
L_CS = 155648
L_MISC = 162816
C_RDY, C_FRE, C_KV, C_HO, C_ST = 768, 800, 832, 836, 840
HI = 0x20000
CSO = L_CS - HI
CSRO = L_CSR - HI
MISCO = L_MISC - HI
sX, sW, sWS, sW2, sWO, sOUT, sDBG = "s[8:11]", "s[12:15]", "s[16:19]", "s[20:23]", "s[24:27]", "s[28:31]", "s[32:35]"
s_d0, s_d1, s_pfl, s_spin = "s0", "s1", "s6", "s7"
s_w, s_g, s_hs1, s_r, s_c, s_type = "s54", "s55", "s56", "s57", "s58", "s59"
s_stride, s_hs6, s_seq, s_str2, s_str64 = "s60", "s60", "s61", "s62", "s63"
s_wex = "s[64:65]"
s_g4k, s_t0, s_t1, s_t2, s_t3 = "s66", "s67", "s68", "s69", "s70"
s_hst, s_gw, s_th, s_nh = "s71", "s72", "s73", "s74"
s_selL, s_selH = "s75", "s76"
s_cls, s_fst = "s75", "s76"
s_rb2, s_cb, s_hld, s_wq, s_oq, s_ring = "s77", "s78", "s79", "s80", "s81", "s82"
s_row, s_wqp, s_wqm, s_cl, s_so = "s83", "s84", "s85", "s86", "s87"
s_csb, s_csp = "s58", "s86"
s_n0, s_n1 = "s88", "s89"
STAMP_REGS = [90, 92, 94, 96, 98, 36, 38, 40, 42, 44, 46, 48, 50, 52]
s_lam = "s75"
SPIN_MAX = 20000

def vr(b, n): return f"v[{b}:{b+n-1}]"
def stamp(a, i, grp=None):
    if OPT["diag"] and (i < 3 or OPT.get("grp") == grp): a(f"{'s_memrealtime' if OPT.get('rt') else 's_memtime'} s[{STAMP_REGS[i]}:{STAMP_REGS[i]+1}]")
def endpgm(a):
    if OPT["diag"]:
        a(f"""
        {'s_memrealtime' if OPT.get('rt') else 's_memtime'} s[4:5]
        s_waitcnt lgkmcnt(0)
        s_mov_b32 s3, s4
        s_memrealtime s[4:5]
        s_lshl_b32 {s_t0}, s2, 3
        s_add_u32 {s_t0}, {s_t0}, {s_w}
        s_lshl_b32 {s_t0}, {s_t0}, 7
        s_add_u32 {s_t0}, {s_t0}, {hex(WS_DIAG)}
        v_mov_b32 v2, 0
        s_mov_b64 exec, 1
        s_waitcnt lgkmcnt(0)
        """)
        for i, r in enumerate(STAMP_REGS + [3, 100, 4, 101]):
            a(f"v_mov_b32 v3, s{r}\nbuffer_store_dword v3, v2, {sWS}, {s_t0} offen offset:{4*i}")
    a("s_endpgm")
def srd(a, d, lo, hi, size):
    a(f"s_mov_b32 s{d}, s{lo}\ns_mov_b32 s{d+1}, s{hi}\ns_mov_b32 s{d+2}, {hex(size)}\ns_mov_b32 s{d+3}, 0x20000")
def emit(a, x):
    if callable(x): x()
    else: a(x)
MF = "v_mfma_f32_32x32x16_bf16"

vXD0, vXD1, vWD = 3, 4, 5
vLN16 = 6
vINU = 7
vP = 240
vSR = 224
aXR = [[8, 9, 10, 11], [12, 13, 14, 15]]; aWR = [16, 17, 18, 19]; aHR = [20, 21, 22, 23]
aCR = [24, 25, 26, 27]
aHO = 28
aSW = 5
aHI = 2; aRC = 4
aS = [29, 30]; aRS = [31, 32, 33]; aC1 = [34, 35]
aNM = [36, 40, 44]
aT = 48
aFR = 64
aACC = [112 + 16*i for i in range(7)]
bD2 = 2
bFA = 8
bH = [9, 13]; bF = 10; bR = [14, 15]; bO = 0
bT = 16
bST = 32
bNM = 40
bCF = 44

def dma(a, vm, tag, voff, srd_, soff, m0base, m0imm, ex=False):
    a(f"s_add_u32 m0, {m0base}, {m0imm}")
    if ex: a(f"s_mov_b64 exec, {s_wex}")
    a(f"buffer_load_dwordx4 v{voff}, {srd_}, {soff} offen lds")
    if ex: a("s_mov_b64 exec, -1")
    if vm is not None: vm.issue(tag)

def unit_pieces(a, vm, u):
    if u >= 8: return []
    def mk(pre, voff, srd_, soff, m0b, m0i, ex):
        def f():
            if pre: a(pre)
            dma(a, vm, ("U", u), voff, srd_, soff, m0b, m0i, ex)
        return f
    sl = (u % 3) * SLOT
    pre = f"s_bfe_u32 {s_d1}, {s_seq}, {hex(0x40000 + 4*u)}\ns_lshl_b32 {s_d0}, {s_d1}, 7\ns_mul_i32 {s_d1}, {s_d1}, {s_str64}"
    ps = []
    for i in range(4):
        p = pre if i == 0 else (f"s_add_u32 {s_d0}, {s_d0}, 0x4000" if i == 2 else None)
        ps.append(mk(p, (vXD0, vXD1)[i & 1], sX, s_d0, s_g4k, sl + i*1024, False))
        for j in (2*i, 2*i+1):
            p = None if j == 0 else f"s_add_u32 {s_d1}, {s_d1}, {s_str2}"
            ps.append(mk(p, vWD, sW, s_d1, s_gw, sl + WOFF + j*2*RS, True))
    return ps

def wave_reduce(a, v, sdst):
    for sh in (1, 2, 4, 8):
        a(f"v_add_f32_dpp {v}, {v}, {v} row_shr:{sh} row_mask:0xf bank_mask:0xf bound_ctrl:0")
    a(f"v_add_f32_dpp {v}, {v}, {v} row_bcast:15 row_mask:0xa bank_mask:0xf")
    a(f"v_add_f32_dpp {v}, {v}, {v} row_bcast:31 row_mask:0xc bank_mask:0xf")
    a(f"v_readlane_b32 {sdst}, {v}, 63")

def stats_ops(b, idx_off, st):
    t = Asm(); u = b + 4
    def red(v):
        for sh in (1, 2, 4, 8):
            t(f"v_add_f32_dpp {v}, {v}, {v} row_shr:{sh} row_mask:0xf bank_mask:0xf bound_ctrl:0")
        t(f"v_add_f32_dpp {v}, {v}, {v} row_bcast:15 row_mask:0xa bank_mask:0xf")
        t(f"v_add_f32_dpp {v}, {v}, {v} row_bcast:31 row_mask:0xc bank_mask:0xf")
        t(f"v_readlane_b32 {st}, {v}, 63")
    for i in range(4):
        t(f"v_lshlrev_b32 v{u+2*i}, 16, v{b+i}\nv_and_b32 v{u+2*i+1}, 0xffff0000, v{b+i}")
    t(f"""
    v_add_f32 v{b}, v{u}, v{u+1}
    v_add_f32 v{b+1}, v{u+2}, v{u+3}
    v_add_f32 v{b+2}, v{u+4}, v{u+5}
    v_add_f32 v{b+3}, v{u+6}, v{u+7}
    v_add_f32 v{b}, v{b}, v{b+1}
    v_add_f32 v{b+2}, v{b+2}, v{b+3}
    v_add_f32 v{b}, v{b}, v{b+2}
    """)
    red(f"v{b}")
    t(f"v_mov_b32 v{b+1}, {f32(1.0/512)}\nv_mul_f32 v{b+2}, {st}, v{b+1}")
    for i in range(8): t(f"v_sub_f32 v{u+i}, v{u+i}, v{b+2}")
    t(f"v_mul_f32 v{b}, v{u}, v{u}\nv_mul_f32 v{b+3}, v{u+1}, v{u+1}")
    for i in range(2, 8, 2): t(f"v_fmac_f32 v{b}, v{u+i}, v{u+i}\nv_fmac_f32 v{b+3}, v{u+i+1}, v{u+i+1}")
    t(f"v_add_f32 v{b}, v{b}, v{b+3}")
    red(f"v{b}")
    t(f"""
    v_mul_f32 v{b}, {st}, v{b+1}
    v_cvt_pk_bf16_f32 v{b}, v{b}, v{b}
    v_and_b32 v{b}, 0xffff0000, v{b}
    v_add_f32 v{b}, {f32(1e-5)}, v{b}
    v_cvt_pk_bf16_f32 v{b}, v{b}, v{b}
    v_and_b32 v{b}, 0xffff0000, v{b}
    v_sqrt_f32 v{b}, v{b}
    v_cvt_pk_bf16_f32 v{b}, v{b+2}, v{b}
    """)
    return [l.strip() for l in t.lines]

def nib(l): return sum(v << (4*i) for i, v in enumerate(l))
SEQT = {
 0: [[0,1,2,3,4,5,6,7]]*4,
 1: [[2,0,1,3,4,5,6,7], [0,3,1,2,4,5,6,7], [1,0,2,3,4,5,6,7], [0,1,2,3,4,5,6,7]],
 2: [[0,1,2,3,4,5,6,7], [1,2,3,0,5,6,7,4], [2,3,0,1,6,7,4,5], [3,0,1,2,7,4,5,6]],
 3: [[0,1,2,3,4,5,6,7], [0,2,1,3,4,5,6,7], [0,3,1,2,4,5,6,7], [0,1,3,2,4,5,6,7]],
 4: [[0,2,1,3,4,5,6,7], [1,3,0,2,4,5,6,7], [0,2,1,3,4,5,6,7], [1,3,0,2,4,5,6,7]],
 5: [[0,1,2,3,4,5,6,7], [1,0,3,2,5,4,7,6], [0,1,2,3,4,5,6,7], [1,0,3,2,5,4,7,6]],
 6: [[0,1,2,3,4,5,6,7], [1,2,3,0,4,5,6,7], [2,3,0,1,4,5,6,7], [3,0,1,2,4,5,6,7]],
 7: [[0,1,2,3,4,5,6,7], [1,2,3,0,5,4,7,6], [2,3,0,1,4,5,6,7], [3,0,1,2,5,4,7,6]],
}

def prologue(a):
    T = vP
    SQ = [nib(x) for x in SEQT[OPT["seq"]]]
    PF = f"s_mov_b64 exec, 15\nglobal_load_dword v{T+15}, v2, s[4:5]\ns_mov_b64 exec, -1"
    a(f"""
    s_cmp_ge_u32 s2, 256
    s_cbranch_scc1 L_done
    """)
    stamp(a, 0)
    if OPT["diag"]: a("s_memrealtime s[100:101]")
    a(f"""
    s_load_dwordx16 s[36:51], s[0:1], 0
    s_load_dwordx2 s[52:53], s[0:1], 64
    s_getpc_b64 s[4:5]
    L_pc:
    s_lshr_b32 s3, s2, 3
    s_lshl_b32 s3, s3, 5
    v_lshrrev_b32 v2, 4, v0
    v_and_b32 v1, 3, v0
    v_add3_u32 v2, v2, v1, s3
    v_and_b32 v2, 0x1ff, v2
    v_lshlrev_b32 v2, 7, v2
    v_min_u32 v2, L_codeend-L_pc-4, v2
    {PF if OPT.get("pf", 0) == 0 else f"v_mov_b32 v{T+15}, v2"}
    v_lshrrev_b32 v2, 6, v0
    v_and_b32 v1, 63, v0
    v_readfirstlane_b32 {s_w}, v2
    s_bfe_u32 {s_r}, s2, 0x10002
    s_lshl_b32 {s_r}, {s_r}, 3
    s_bfe_u32 s3, s2, 0x30003
    s_add_u32 {s_r}, {s_r}, s3
    s_and_b32 {s_c}, s2, 3
    s_lshl_b32 {s_t0}, {s_c}, 1
    s_bfe_u32 {s_cl}, s2, 0x10006
    s_add_u32 {s_c}, {s_t0}, {s_cl}
    s_lshr_b32 {s_type}, s2, 7
    s_and_b32 {s_g}, {s_w}, 3
    s_lshl_b32 {s_g4k}, {s_g}, 12
    s_mul_i32 {s_gw}, {s_g}, {16*RS}
    s_and_b32 {s_t1}, s2, 4
    {f"s_add_u32 {s_t1}, {s_t0}, {s_t1}" if OPT["xc"] else ""}
    s_and_b32 {s_t1}, {s_t1}, 7
    s_mul_i32 {s_t1}, {s_t1}, 0x11111111
    s_lshr_b32 {s_t2}, s2, 6
    s_add_u32 {s_t2}, {s_t2}, s3
    s_mov_b32 {s_seq}, {hex(SQ[0])}
    s_mov_b32 {s_t3}, {hex(SQ[2])}
    s_bitcmp1_b32 {s_t2}, 0
    s_cselect_b32 {s_seq}, {hex(SQ[1])}, {s_seq}
    s_cselect_b32 {s_t3}, {hex(SQ[3])}, {s_t3}
    s_bitcmp1_b32 {s_t2}, 1
    s_cselect_b32 {s_seq}, {s_t3}, {s_seq}
    s_add_u32 {s_seq}, {s_seq}, {s_t1}
    s_and_b32 {s_seq}, {s_seq}, 0x77777777
    v_lshrrev_b32 v{T}, 3, v1
    v_lshrrev_b32 v{T+1}, 4, v1
    v_and_b32 v{T+2}, 7, v1
    v_xor_b32 v{T+2}, v{T+2}, v{T+1}
    v_lshlrev_b32 v{T+2}, 4, v{T+2}
    v_lshl_or_b32 v{T+8}, v{T}, 10, v{T+2}
    s_lshl_b32 {s_t0}, {s_r}, 17
    s_lshl_b32 {s_t1}, {s_g}, 15
    s_add_u32 {s_t1}, {s_t1}, {s_t0}
    v_add_u32 v{vXD0}, {s_t1}, v{T+8}
    v_add_u32 v{vXD1}, 0x2000, v{vXD0}
    v_xor_b32 v{vXD1}, 64, v{vXD1}
    s_mul_i32 {s_t1}, {s_c}, 448
    s_lshl_b32 {s_t3}, {s_c}, 7
    s_movk_i32 {s_stride}, 3584
    s_mov_b32 s64, -1
    s_mov_b32 s65, 0x00ffffff
    s_cmp_eq_u32 {s_type}, 0
    s_cselect_b32 {s_stride}, 3072, {s_stride}
    s_cselect_b32 {s_t1}, {s_t3}, {s_t1}
    s_cselect_b32 {s_t2}, 10, 7
    s_cselect_b32 s64, 0xf0ffffff, s64
    s_cselect_b32 s65, 0x000fffff, s65
    s_lshl_b32 {s_str64}, {s_stride}, 6
    s_lshl_b32 {s_str2}, {s_stride}, 1
    v_cmp_lt_u32 vcc, 27, v1
    v_subrev_u32 v{T+3}, 28, v1
    s_lshl_b32 {s_t0}, {s_g}, 4
    s_mul_i32 {s_t0}, {s_t0}, {s_stride}
    s_add_u32 {s_t1}, {s_t1}, {s_t0}
    v_mov_b32 v{T+4}, {s_stride}
    v_cndmask_b32 v{T+3}, v1, v{T+3}, vcc
    v_cndmask_b32 v{T+4}, 0, v{T+4}, vcc
    v_lshrrev_b32 v{T+5}, 3, v{T+3}
    v_lshlrev_b32 v{T+5}, {s_t2}, v{T+5}
    v_and_b32 v{T+3}, 7, v{T+3}
    v_lshl_add_u32 v{T+3}, v{T+3}, 4, v{T+5}
    v_add3_u32 v{vWD}, v{T+3}, v{T+4}, {s_t1}
    v_lshlrev_b32 v{vLN16}, 4, v1
    s_lshl_b32 {s_row}, {s_r}, 1
    s_add_u32 {s_row}, {s_row}, {s_type}
    s_lshl_b32 {s_row}, {s_row}, 3
    s_add_u32 {s_row}, {s_row}, {s_c}
    s_lshl_b32 {s_row}, {s_row}, 3
    s_mul_i32 {s_t3}, {s_g}, {2*RS}
    s_mul_i32 {s_t0}, {s_g}, 14
    s_mul_i32 {s_t0}, {s_t0}, {s_stride}
    v_subrev_u32 v{T+6}, {s_t0}, v{vWD}
    s_lshl_b32 {s_t2}, {s_stride}, 3
    s_lshl_b32 {s_t0}, {s_r}, 17
    s_sub_u32 {s_t0}, {s_t0}, 0x4000
    s_and_b32 {s_t1}, {s_g}, 1
    s_lshl_b32 {s_so}, {s_t1}, 13
    s_add_u32 {s_t0}, {s_t0}, {s_so}
    s_lshl_b32 {s_t1}, {s_t1}, 6
    v_xor_b32 v{T+7}, {s_t1}, v{T+8}
    v_add_u32 v{T+7}, {s_t0}, v{T+7}
    s_and_b32 {s_so}, {s_g}, 2
    s_lshl_b32 {s_so}, {s_so}, 1
    s_lshr_b32 {s_so}, {s_seq}, {s_so}
    s_lshl_b32 {s_hld}, {s_g}, 10
    s_mov_b32 s10, 0x200000
    s_mov_b32 s11, 0x20000
    s_lshl_b32 s14, {s_stride}, 9
    s_mov_b32 s15, 0x20000
    s_cmp_eq_u32 {s_type}, 0
    s_waitcnt lgkmcnt(0)
    """)
    stamp(a, 1)
    a(f"""
    s_mov_b32 s8, s36
    s_mov_b32 s9, s37
    s_cselect_b32 s12, s38, s44
    s_cselect_b32 s13, s39, s45
    s_cmp_ge_u32 {s_w}, 4
    s_cbranch_scc1 L_b0
    s_and_b32 {s_d1}, {s_seq}, 15
    s_lshl_b32 {s_d0}, {s_d1}, 7
    s_mul_i32 {s_d1}, {s_d1}, {s_str64}
    """)
    for i in range(4):
        if i == 2: a(f"s_add_u32 {s_d0}, {s_d0}, 0x4000")
        dma(a, None, None, (vXD0, vXD1)[i & 1], sX, s_d0, s_g4k, i*1024)
        if i > 0: a(f"s_add_u32 {s_d1}, {s_d1}, {s_t2}")
        dma(a, None, None, T+6, sW, s_d1, s_t3, WOFF + i*8*RS, True)
    def halo(i):
        a(f"s_bfe_u32 {s_d0}, {s_so}, {hex(0x40000 + 8*i)}\ns_lshl_b32 {s_d0}, {s_d0}, 7")
        dma(a, None, None, T+7, sX, s_d0, s_hld, L_HALO + i*4096)
    a(f"s_cmp_eq_u32 {s_type}, 0\ns_cbranch_scc0 L_nh0")
    halo(0)
    a("L_nh0:")
    for j in range(4, 8):
        a(f"s_add_u32 {s_d1}, {s_d1}, {s_t2}")
        dma(a, None, None, T+6, sW, s_d1, s_t3, WOFF + j*8*RS, True)
    a("L_b0:")
    if OPT.get("pf") == 1: a(f"s_mov_b64 exec, 15\nglobal_load_dword v{T+15}, v{T+15}, s[4:5]\ns_mov_b64 exec, -1")
    global HALO_FN
    HALO_FN = halo
    srd(a, 32, 50, 51, 256)
    a(f"""
    s_cmp_eq_u32 s2, 0
    s_cselect_b32 s3, {s_w}, 0
    s_cmp_eq_u32 s3, 4
    s_cbranch_scc0 L_nonz
    s_memrealtime s[4:5]
    s_waitcnt lgkmcnt(0)
    s_bitset1_b32 s5, 31
    v_mov_b32 v{T+2}, s4
    v_mov_b32 v{T+3}, s5
    v_mov_b32 v{T+4}, 0
    s_mov_b64 exec, 1
    buffer_store_dwordx2 {vr(T+2,2)}, v{T+4}, {sDBG}, 0 offen sc1
    s_mov_b64 exec, -1
    L_nonz:
    """)
    srd(a, 16, 52, 53, WS_SIZE)
    srd(a, 20, 46, 47, 1792*512*2)
    srd(a, 24, 40, 41, 512*512*2)
    srd(a, 28, 48, 49, 2048*512*2)
    if OPT["diag"]: a("s_mov_b32 s101, 0")
    a(f"""
    v_bfe_u32 v{T+9}, v1, 2, 2
    v_lshrrev_b32 v{T+10}, 5, v1
    v_and_b32 v{vINU}, 1, v1
    v_lshlrev_b32 v{vINU}, 5, v{vINU}
    v_and_b32 v{T+2}, 16, v1
    v_or_b32 v{vINU}, v{vINU}, v{T+2}
    v_and_b32 v{T+2}, 2, v1
    v_lshl_or_b32 v{vINU}, v{T+2}, 2, v{vINU}
    v_lshl_add_u32 v{T+11}, v{T+10}, 3, v{T+9}
    v_mul_u32_u24 v{T+13}, {RS}, v{T+11}
    v_add_u32 v{T+13}, v{T+13}, v{vINU}
    v_add_u32 v{T+13}, {WOFF}, v{T+13}
    s_lshr_b32 {s_th}, {s_g}, 1
    s_and_b32 {s_nh}, {s_g}, 1
    s_lshl_b32 {s_t0}, {s_r}, 1
    s_add_u32 {s_t0}, {s_t0}, {s_th}
    s_mul_i32 {s_hst}, {s_t0}, {WS_RB2}
    s_lshr_b32 {s_t1}, {s_c}, 1
    s_mul_i32 {s_t2}, {s_t1}, {36*2048}
    s_add_u32 {s_hst}, {s_hst}, {s_t2}
    s_lshl_b32 {s_t3}, {s_nh}, 10
    s_add_u32 {s_hst}, {s_hst}, {s_t3}
    s_lshl_b32 {s_t2}, {s_cl}, 12
    s_add_u32 {s_hs6}, {s_hst}, {s_t2}
    s_lshl_b32 {s_t2}, {s_cl}, 1
    s_add_u32 {s_t2}, {s_t2}, {s_nh}
    s_lshl_b32 {s_t3}, {s_t2}, 12
    s_add_u32 {s_hst}, {s_hst}, {s_t3}
    s_xor_b32 {s_hs1}, {s_hst}, 0x400
    s_lshl_b32 {s_pfl}, {s_t0}, 2
    s_add_u32 {s_pfl}, {s_pfl}, {s_t1}
    s_lshl_b32 {s_pfl}, {s_pfl}, 6
    s_add_u32 {s_pfl}, {s_pfl}, {s_t2}
    s_lshl_b32 {s_pfl}, {s_pfl}, 3
    s_add_u32 {s_pfl}, {s_pfl}, {hex(WS_FLAGS)}
    s_mul_i32 {s_t0}, {s_g}, 12288
    s_cmp_eq_u32 {s_g}, 3
    s_cselect_b32 {s_t0}, {L_HALO}, {s_t0}
    v_add_u32 v{T+14}, {s_t0}, v{vLN16}
    s_cmp_ge_u32 {s_w}, 4
    s_cbranch_scc1 L_B
    """)

def flag_store(stage, t):
    return [f"v_mov_b32 v{t}, {s_n0}", f"v_mov_b32 v{t+1}, {s_n1}", f"v_mov_b32 v{t+2}, 0",
            "s_mov_b64 exec, 1\n" + f"buffer_store_dwordx2 {vr(t,2)}, v{t+2}, {sWS}, {s_pfl} offen offset:{stage*128} sc1\n" + "s_mov_b64 exec, -1"]
def derive(src, nm, sd):
    return [f"v_and_b32 v{sd}, 0xffff0000, v{src}", f"v_and_b32 v{nm}, 0xffff, v{src}", f"v_xor_b32 v{nm}, 0x8000, v{nm}",
            f"v_lshl_or_b32 v{nm}, v{nm}, 16, v{nm}", f"v_mov_b32 v{nm+1}, v{nm}", f"v_mov_b32 v{nm+2}, v{nm}", f"v_mov_b32 v{nm+3}, v{nm}"]
def lds_signal(vh, off):
    return f"s_mov_b64 exec, 1\nds_add_u32 v{vh}, v{vh+1} offset:{MISCO+off}\ns_mov_b64 exec, -1"
def lds_spin(a, vh, t, off, lbl, sleep=True):
    a(f"""
    s_mov_b32 {s_spin}, 0
    {lbl}:
    ds_read_b32 v{t}, v{vh} offset:{MISCO+off}
    s_waitcnt lgkmcnt(0)
    v_readfirstlane_b32 s3, v{t}
    s_cmp_ge_u32 s3, 4
    s_cbranch_scc1 {lbl}k
    s_add_u32 {s_spin}, {s_spin}, 1
    s_cmp_ge_u32 {s_spin}, 0x200000
    s_cbranch_scc1 {lbl}k
    {"s_sleep 1" if sleep else "s_nop 7"}
    s_nop 7
    s_branch {lbl}
    {lbl}k:
    """)
def silu_ops(acc, c1, sd, t, pk=None):
    ops = []
    if pk is None: pk = OPT['pk']
    for h in range(2):
        b = acc + 8*h
        if pk:
            def bc(r): return (vr(r & ~1, 2), r & 1)
            cp, cs = bc(c1); sp, ss = bc(sd)
            for j in range(0, 8, 2): ops.append(f"v_pk_mul_f32 {vr(t+j,2)}, {vr(b+j,2)}, {cp} op_sel:[0,{cs}] op_sel_hi:[1,{cs}]")
            for j in range(8): ops.append(f"v_exp_f32 v{t+j}, v{t+j}")
            for j in range(0, 8, 2): ops.append(f"v_pk_fma_f32 {vr(t+j,2)}, {vr(t+j,2)}, {sp}, {sp} op_sel:[0,{ss},{ss}] op_sel_hi:[1,{ss},{ss}]")
            for j in range(8): ops.append(f"v_rcp_f32 v{t+j}, v{t+j}")
            for j in range(0, 8, 2): ops.append(f"v_pk_mul_f32 {vr(b+j,2)}, {vr(b+j,2)}, {vr(t+j,2)}")
        else:
            for j in range(8): ops.append(f"v_mul_f32 v{t+j}, v{b+j}, v{c1}")
            for j in range(8): ops.append(f"v_exp_f32 v{t+j}, v{t+j}")
            for j in range(8): ops.append(f"v_fma_f32 v{t+j}, v{t+j}, v{sd}, v{sd}")
            for j in range(8): ops.append(f"v_rcp_f32 v{t+j}, v{t+j}")
            for j in range(8): ops.append(f"v_mul_f32 v{b+j}, v{b+j}, v{t+j}")
        for j in range(4): ops.append(f"v_cvt_pk_bf16_f32 v{b+j}, v{b+2*j}, v{b+2*j+1}")
    return ops
def hstore(b, h):
    if OPT.get('nost'): return 's_nop 0'
    return f"buffer_store_dwordx4 {vr(b,4)}, v{vLN16}, {sWS}, {s_so} offen offset:{h*2048} sc1"

POS = {"w1": 0, "w2": 16384, "w0": 32768, "w3": 49152, "att": 57344}
def blk(p):
    if p < 12:
        e, cl, nh = p >> 2, (p >> 1) & 1, p & 1
        base, tau = [(s_wqp, 2 + nh), (s_wqm, 4 + nh), (s_wq, nh)][e]
        return sW2, base, 224*cl + 32*tau
    if p < 14: return sW2, s_wq, 224*(p - 12) + 192
    cl, nh = ((p - 14) >> 1) & 1, p & 1
    return sWO, s_oq, 64*cl + 32*nh

def waveA_setup(a):
    T = vP
    if OPT["prioA"]: a(f"s_setprio {OPT['prioA']}")
    a(f"""
    v_bfe_u32 v{T+12}, v1, 1, 3
    v_xor_b32 v{T+12}, v{T+12}, v{T+10}
    v_and_b32 v{T+2}, 31, v1
    v_lshl_add_u32 v{T+4}, v{T+2}, 7, {s_g4k}
    v_and_b32 v{T+3}, 15, v1
    v_lshlrev_b32 v{T+3}, 7, v{T+3}
    v_add_u32 v{T+3}, {hex(L_HALO)}, v{T+3}
    """)
    for ks in range(4):
        a(f"""
        v_xor_b32 v{T+5}, {2*ks}, v{T+12}
        v_lshl_add_u32 v{aXR[0][ks]}, v{T+5}, 4, v{T+4}
        v_xor_b32 v{aXR[1][ks]}, 0x1000, v{aXR[0][ks]}
        v_lshl_add_u32 v{aHR[ks]}, v{T+5}, 4, v{T+3}
        """)
    a(f"""
    s_lshl_b32 {s_t0}, {s_nh}, 6
    s_lshl_b32 {s_t1}, {s_th}, 7
    v_add_u32 v{aWR[0]}, {s_t0}, v{T+13}
    s_add_u32 {s_t2}, {s_t1}, 128
    v_add_u32 v{aWR[1]}, {s_t2}, v{aWR[0]}
    s_sub_u32 {s_t3}, 256, {s_t1}
    v_add_u32 v{aWR[2]}, {s_t3}, v{aWR[0]}
    v_add_u32 v{aWR[3]}, 384, v{T+13}
    v_add_u32 v{aCR[3]}, {L_CS}, v{vLN16}
    s_lshl_b32 {s_t0}, {s_t0}, 4
    s_lshl_b32 {s_t2}, {s_t2}, 4
    s_lshl_b32 {s_t3}, {s_t3}, 4
    v_add_u32 v{aCR[0]}, {s_t0}, v{aCR[3]}
    v_add_u32 v{aCR[1]}, {s_t2}, v{aCR[0]}
    v_add_u32 v{aCR[2]}, {s_t3}, v{aCR[0]}
    v_add_u32 v{aCR[3]}, 6144, v{aCR[3]}
    v_mov_b32 v{aHO}, v{T+14}
    v_mov_b32 v{aHI}, {HI}
    v_mov_b32 v{aHI+1}, 1
    s_lshl_b32 {s_t0}, {s_g}, 3
    s_add_u32 {s_t0}, {s_t0}, {HI}
    v_mov_b32 v{aSW}, {s_t0}
    s_cmp_eq_u32 {s_type}, 0
    s_cbranch_scc0 L_nh1
    """)
    for i in range(1, 4): HALO_FN(i)
    a(f"""
    L_nh1:
    s_lshl_b32 {s_t0}, {s_g}, 1
    s_add_u32 {s_t0}, {s_t0}, {s_row}
    s_lshl_b32 {s_t0}, {s_t0}, 10
    buffer_load_dwordx4 {vr(vSR,4)}, v{vLN16}, {sX}, {s_t0} offen
    buffer_load_dwordx4 {vr(vSR+12,4)}, v{vLN16}, {sX}, {s_t0} offen offset:1024
    s_cmp_eq_u32 {s_type}, 0
    s_cbranch_scc1 L_A_att
    """)

def waveA(a, att, P):
    lg = Cnt(a, "lgkmcnt", 15)
    def fr(t, i): return aFR + (t % 2)*24 + 4*i
    def rd(txt, tag):
        def f(): a(txt); lg.issue(tag)
        return f
    def read_ops(t):
        if t == 32:
            order = [(3, 1), (4, 2), (2, 0), (5, 3)] if not att else [(3, 1), (4, 2), (2, 0)]
            return [rd(f"ds_read_b128 {vr(fr(t,i),4)}, v{aCR[m]}", (t, i)) for i, m in order]
        s, ks = divmod(t, 4)
        ops = []
        def wfrag(i, m):
            return [rd(f"ds_read_b64_tr_b16 {vr(fr(t,i)+2*b,2)}, v{aWR[m]} offset:{(16*ks+4*b)*RS}", (t, i)) for b in range(2)]
        ops.append(rd(f"ds_read_b128 {vr(fr(t,0),4)}, v{aXR[0][ks]}", (t, 0)))
        ops += wfrag(2, 0)
        ops.append(rd(f"ds_read_b128 {vr(fr(t,1),4)}, v{aXR[1][ks]}", (t, 1)))
        ops += wfrag(3, 1) + wfrag(4, 2)
        if att: ops.append(rd(f"ds_read_b128 {vr(fr(t,5),4)}, v{aHR[ks]} offset:{s*2048}", (t, 5)))
        else: ops += wfrag(5, 3)
        return ops
    def adv(regs, s):
        d = SLOT if (s + 1) % 3 else -2*SLOT
        return [f"v_add_u32 v{r}, {hex(d & 0xffffffff)}, v{r}" for r in regs]
    MM = [(2, 0), (2, 1), (3, 0), (3, 1), (4, 0), (4, 1), (3, 5) if att else (5, 0)]
    vKV = [aT+4, aT+5]; vTOK = [aT+6, aT+7]; vNEG = aT+3
    def kv_ops(acc, rs, addr, off):
        ops = [f"v_mul_f32 v{acc+j}, v{acc+j}, v{rs}" for j in range(16)]
        ops += [f"v_cvt_pk_bf16_f32 v{acc+j}, v{acc+2*j}, v{acc+2*j+1}" for j in range(8)]
        ops += [rd(f"ds_write_b128 v{addr}, {vr(acc,4)} offset:{off}", "KW"), rd(f"ds_write_b128 v{addr}, {vr(acc+4,4)} offset:{off+16}", "KW")]
        return ops
    def shadow_ops():
        if not att: return silu_ops(aACC[2], aC1[0], aS[0], aT, pk=0)
        txt = f"""
        v_and_b32 v{vTOK[0]}, 31, v1
        s_lshl_b32 {s_t0}, {s_g}, 5
        v_add_u32 v{vTOK[0]}, {s_t0}, v{vTOK[0]}
        v_xor_b32 v{vTOK[1]}, 32, v{vTOK[0]}
        v_and_b32 v{aT+2}, 32, v1
        s_lshl_b32 {s_t1}, {s_nh}, 6
        s_add_u32 {s_t1}, {s_t1}, {L_KV + 2*KVS}
        v_add_u32 v{aT+2}, {s_t1}, v{aT+2}
        v_mul_u32_u24 v{vKV[0]}, {KVS}, v{vTOK[0]}
        v_mul_u32_u24 v{vKV[1]}, {KVS}, v{vTOK[1]}
        v_add_u32 v{vKV[0]}, v{vKV[0]}, v{aT+2}
        v_add_u32 v{vKV[1]}, v{vKV[1]}, v{aT+2}
        s_lshl_b32 {s_t0}, {s_r}, 7
        v_add_u32 v{vTOK[0]}, {s_t0}, v{vTOK[0]}
        v_add_u32 v{vTOK[1]}, {s_t0}, v{vTOK[1]}
        s_lshl_b32 {s_t0}, {s_th}, 7
        s_xor_b32 {s_t1}, {s_t0}, 128
        v_add_u32 v8, {s_t0}, v{vKV[0]}
        v_add_u32 v9, {s_t0}, v{vKV[1]}
        v_add_u32 v10, {s_t1}, v{vKV[0]}
        v_add_u32 v11, {s_t1}, v{vKV[1]}
        v_and_b32 v12, 15, v1
        v_mul_u32_u24 v12, {KVS}, v12
        v_add3_u32 v12, v12, v{aT+2}, {s_t0}
        v_subrev_u32 v12, {2*KVS}, v12
        s_mov_b32 {s_selL}, 0x05040100
        s_mov_b32 {s_selH}, 0x07060302
        v_mov_b32 v{vNEG}, {f32(-1e30)}
        """
        ops = [l.strip() for l in txt.split("\n") if l.strip()]
        return (ops + kv_ops(aACC[2], aRS[0], 8, 14*KVS) + kv_ops(aACC[3], aRS[1], 9, 14*KVS) + kv_ops(aACC[6], aRS[2], 12, 0)
                + kv_ops(aACC[4], aRS[0], 10, 14*KVS) + kv_ops(aACC[5], aRS[1], 11, 14*KVS))
    yng = (5 if att else 2) + (1 if OPT.get('pf') == 1 else 0)
    a(f"s_waitcnt vmcnt({yng + 4 if OPT['split0'] else yng})\ns_barrier")
    stamp(a, 2)
    s0, s1 = stats_ops(vSR, 0, s_t2), stats_ops(vSR+12, 1, s_t3)
    sfill = []
    for x, y in zip(s0, s1): sfill += [x, y]
    sfill.append(f"v_mov_b32 v{vSR+1}, v{vSR+12}")
    sfill.append(rd(f"ds_write_b64 v{aSW}, {vr(vSR,2)} offset:{MISCO}", "SW"))
    X7 = lambda ks, x: 224 + (2*ks + x)*4
    R7 = []
    M7 = []
    pool = [0]
    def pslot(i): return aFR + (i % 12)*4
    def addw(m, ks):
        i = pool[0]; pool[0] += 1
        R7.append(([rd(f"ds_read_b64_tr_b16 {vr(pslot(i)+2*b,2)}, v{aWR[m]} offset:{(16*ks+4*b)*RS}", ("p", i)) for b in range(2)], i)); return i
    def addq(txt):
        i = pool[0]; pool[0] += 1
        R7.append(([rd(txt.format(d=vr(pslot(i),4)), ("p", i))], i)); return i
    R7.append(([rd(f"ds_read_b32 v{aT+1}, v{aT} offset:{MISCO+128}", "S"), rd(f"ds_read_b32 v{aT+2}, v{aT+6} offset:{MISCO+128}", "S"),
                rd(f"ds_read_b64 {vr(aT+4,2)}, v{aHI} offset:{MISCO+64}", "S")]
               + ([rd(f"ds_read_b32 v{aT+3}, v{aT+7} offset:{MISCO+128+512}", "S")] if att else []), None))
    groups = [(1, (2, 3)), (2, (4, 5)), (0, (0, 1))] + ([] if att else [(3, (6,))])
    for gi, (m, accs) in enumerate(groups):
        for ks in range(4):
            if gi == 0: R7.append(([rd(f"ds_read_b128 {vr(X7(ks,0),4)}, v{aXR[0][ks]}", ("x", ks, 0))], None))
            w = addw(m, ks)
            if gi == 0: R7.append(([rd(f"ds_read_b128 {vr(X7(ks,1),4)}, v{aXR[1][ks]}", ("x", ks, 1))], None))
            for x, acc in enumerate(accs): M7.append((acc, pslot(w), X7(ks, x), [("p", w), ("x", ks, x)], [w]))
            if gi == 0 and att:
                h = addq("ds_read_b128 {d}, " + f"v{aHR[ks]} offset:{7*2048}")
                M7.append((6, pslot(w), pslot(h), [("p", w), ("p", h)], [w, h]))
        c = addq("ds_read_b128 {d}, " + f"v{aCR[m]}")
        for x, acc in enumerate(accs): M7.append((acc, pslot(c), aNM[x], [("p", c)], [c]))
        if gi == 0 and att: M7.append((6, pslot(c), aNM[2], [("p", c)], [c]))
        if gi == 0: g1_end = len(M7)
    last_use = {}
    for k, mm in enumerate(M7):
        for i in mm[4]: last_use[i] = k
    R7f = []
    for ops, i in R7:
        for op in ops: R7f.append((op, i))
    def r7_issue(n, done):
        cnt = 0
        while R7f and cnt < n:
            op, i = R7f[0]
            if i is not None:
                if 6 <= i < 12 and done < 0: break
                if i >= 12 and last_use[i-12] >= done: break
            R7f.pop(0); op(); cnt += 1
        return cnt
    k1 = f32(0.25*LOG2E if att else -LOG2E)
    dv = [lambda: lg.wait("S")] + derive(aT+1, aNM[0], aS[0]) + derive(aT+2, aNM[1], aS[1])
    if att: dv += derive(aT+3, aNM[2], aRS[2]) + [f"v_rcp_f32 v{aRS[2]}, v{aRS[2]}"]
    dv += [f"v_rcp_f32 v{aRS[0]}, v{aS[0]}", f"v_rcp_f32 v{aRS[1]}, v{aS[1]}", f"v_readfirstlane_b32 {s_n0}, v{aT+4}", f"v_readfirstlane_b32 {s_n1}, v{aT+5}",
           f"v_mul_f32 v{aC1[0]}, {k1}, v{aRS[0]}", f"v_mul_f32 v{aC1[1]}, {k1}, v{aRS[1]}"]

    for f in read_ops(0): f()
    for t in range(28):
        s, ks = divmod(t, 4)
        rds = read_ops(t + 1) if t < 27 else []
        post = adv([aXR[0][(t+1) % 4], aXR[1][(t+1) % 4]], (t+1)//4) if t + 1 < 28 else []
        if ks == 2: post += adv(aWR[:3] if att else aWR, s)
        if t == 0: post += adv([aXR[0][0], aXR[1][0]], 0)
        if t == 3: post.append("s_waitcnt vmcnt(0)")
        if 3 <= t <= 10:
            k = 18 if t < 10 else 999
            post += sfill[:k]; sfill = sfill[k:]
        if t == 24:
            post += [f"v_and_b32 v{aT}, 31, v1", f"s_lshl_b32 {s_t0}, {s_g}, 7\ns_add_u32 {s_t0}, {s_t0}, {HI}",
                     f"v_lshl_add_u32 v{aT}, v{aT}, 2, {s_t0}", f"v_xor_b32 v{aT+6}, 0x80, v{aT}",
                     f"v_and_b32 v{aT+7}, 15, v1", f"v_lshl_add_u32 v{aT+7}, v{aT+7}, 2, v{aHI}"]
        for m, (wi, xi) in enumerate(MM):
            bar = (m == 0 and ks == 3)
            if bar: lg.wait_all()
            lg.wait((t, wi)); lg.wait((t, xi))
            c = "0" if t == 0 else vr(aACC[m], 16)
            a(f"{MF} {vr(aACC[m],16)}, {vr(fr(t,wi),4)}, {vr(fr(t,xi),4)}, {c}")
            if m == 0 and t == 1 and OPT["split0"]: a(f"s_waitcnt vmcnt({yng})\ns_barrier")
            if bar:
                a("s_barrier")
                stamp(a, 3 + s, 1)
                if s == 3: stamp(a, 3)
                if s == 6: stamp(a, 4)
            if t == 27:
                n = r7_issue(3, -1 if m < 6 else 0)
                if m >= 3:
                    for _ in range(5 - n):
                        if dv: emit(a, dv.pop(0))
                continue
            n = 0
            for _ in range(3):
                if rds: rds.pop(0)(); n += 1
            if not rds:
                for _ in range(5 - n if m < 6 else 99):
                    if post: emit(a, post.pop(0))
    fill = shadow_ops()
    signalled = False
    for k, (acc, ra, rb, tags, _u) in enumerate(M7):
        if rb in aNM:
            while dv: emit(a, dv.pop(0))
        for tg in tags: lg.wait(tg)
        a(f"{MF} {vr(aACC[acc],16)}, {vr(ra,4)}, {vr(rb,4)}, {vr(aACC[acc],16)}")
        n = r7_issue(2, k + 1)
        src = dv if dv else (fill if k >= g1_end + 1 else [])
        budget = 5 - n
        while budget > 0 and src:
            op = src.pop(0); emit(a, op)
            budget -= 2 if (isinstance(op, str) and op.startswith(("v_exp", "v_rcp"))) else 1
    assert not R7f
    a(lds_signal(aHI, C_FRE)); lg.issue("SG")
    stamp(a, 5)
    if not att:
        def act(m, x):
            for op in silu_ops(aACC[m], aC1[x], aS[x], aT): a(op)
        def put(m, base, off):
            a(f"s_add_u32 {s_so}, {base}, {off}")
            for h in range(2): a(hstore(aACC[m] + 8*h, h))
        def flag(st):
            a("s_waitcnt vmcnt(0)")
            for op in flag_store(st, aT+12): a(op)
        T7 = [(2, 0, s_hst, "w1"), (3, 1, s_hs1, "w1"), (4, 0, s_hst, "w2"), (5, 1, s_hs1, "w2"), (0, 0, s_hst, "w0"), (1, 1, s_hs1, "w0"), (6, 0, s_hs6, "w3")]
        def fl(st, n):
            a(f"s_waitcnt vmcnt({n})")
            for op in flag_store(st, aT+12): a(op)
        FL = {0: {4: (1, 4), 6: (2, 5)}, 1: {3: (1, 2), 5: (2, 2)}}[OPT.get("fe", 0)]
        for i, (m, x, base, pos) in enumerate(T7):
            if i == 0:
                for op in fill: emit(a, op)
            else: act(m, x)
            if i in FL: fl(*FL[i])
            put(m, base, POS[pos])
            if i == 1: stamp(a, 6)
            if i == 3: stamp(a, 7)
        stamp(a, 8)
        if OPT["quiet"]: a(lds_signal(aHI, C_ST))
        flag(3)
        endpgm(a)
        return
    for op in fill: emit(a, op)
    a(lds_signal(aHI, C_KV))
    for x in range(2):
        q = aACC[x]
        for j in range(8): a(f"v_cvt_pk_bf16_f32 v{q+j}, v{q+2*j}, v{q+2*j+1}")
    stamp(a, 6)
    lds_spin(a, aHI, aRC, C_KV, P + "c1", sleep=False)
    stamp(a, 7)
    lg.q = []
    K = 144; V0 = 64
    def Vr(j): return V0 + 8*j if j < 6 else 208 + 8*(j-6)
    L = 8; Pp = 16; TT = 20; O = 224
    for x in range(2):
        kv = vKV[x]
        for j in range(8):
            for hh in range(2):
                a(f"ds_read_b128 {vr(K+8*j+4*hh,4)}, v{kv} offset:{(14-2*j)*KVS + 16*hh}"); lg.issue(("K", j))
                if len(lg.q) > 14: lg.wait(lg.q[1])
        q = aACC[x]
        a(f"v_mov_b32 v{L}, 0")
        for j in range(1, 8):
            a(f"v_cmp_gt_u32 vcc, {2*j}, v{vTOK[x]}\nv_cndmask_b32 v{L+j}, 0, v{vNEG}, vcc")
        for j in range(8):
            lg.wait(("K", j))
            for hh in range(2):
                a(f"ds_read_b128 {vr(Vr(j)+4*hh,4)}, v{kv} offset:{(14-2*j)*KVS + 128 + 16*hh}"); lg.issue(("V", j))
                if len(lg.q) > 14: lg.wait(lg.q[1])
            for i in range(8): a(f"v_dot2c_f32_bf16 v{L+j}, v{q+i}, v{K+8*j+i}")
        a(f"""
        v_max3_f32 v{TT}, v{L}, v{L+1}, v{L+2}
        v_max3_f32 v{TT+1}, v{L+3}, v{L+4}, v{L+5}
        v_max3_f32 v{TT}, v{TT}, v{L+6}, v{L+7}
        v_max_f32 v{TT}, v{TT}, v{TT+1}
        v_mul_f32 v{TT}, v{TT}, v{aC1[x]}
        """)
        for j in range(8): a(f"v_fma_f32 v{L+j}, v{L+j}, v{aC1[x]}, -v{TT}")
        for j in range(8): a(f"v_exp_f32 v{L+j}, v{L+j}")
        a(f"""
        v_add_f32 v{TT}, v{L}, v{L+1}
        v_add_f32 v{TT+1}, v{L+2}, v{L+3}
        v_add_f32 v{TT+2}, v{L+4}, v{L+5}
        v_add_f32 v{TT+3}, v{L+6}, v{L+7}
        v_add_f32 v{TT}, v{TT}, v{TT+1}
        v_add_f32 v{TT+2}, v{TT+2}, v{TT+3}
        v_add_f32 v{TT}, v{TT}, v{TT+2}
        v_rcp_f32 v{TT}, v{TT}
        """)
        for j in range(8): a(f"v_mul_f32 v{L+j}, v{L+j}, v{TT}")
        for j in range(4): a(f"v_cvt_pk_bf16_f32 v{Pp+j}, v{L+2*j}, v{L+2*j+1}")
        for j in range(16): a(f"v_mov_b32 v{O+j}, 0")
        for jp in range(4):
            lg.wait(("V", 2*jp+1))
            va, vb = Vr(2*jp), Vr(2*jp+1)
            for i in range(8):
                a(f"v_perm_b32 v{K+2*i}, v{vb+i}, v{va+i}, {s_selL}\nv_perm_b32 v{K+2*i+1}, v{vb+i}, v{va+i}, {s_selH}")
            for i in range(16): a(f"v_dot2c_f32_bf16 v{O+i}, v{K+i}, v{Pp+jp}")
        for j in range(8): a(f"v_cvt_pk_bf16_f32 v{q+8+j}, v{O+2*j}, v{O+2*j+1}")
        a(f"s_add_u32 {s_so}, {(s_hst, s_hs1)[x]}, {POS['att']}")
        for h in range(2): a(hstore(q+8+4*h, h))
        if x == 0: stamp(a, 8)
    a("s_waitcnt vmcnt(0)")
    for op in flag_store(0, aT+12): a(op)
    endpgm(a)

def waveB(a):
    T = vP
    vm = Cnt(a, "vmcnt", 63); lg = Cnt(a, "lgkmcnt", 15)
    HB, WB = 3, 8
    vHB, vWB, vA = 16, 64, 192
    bCR, bHO = 11, 12
    a("L_B:")
    a(f"s_setprio {OPT['prioB']}")
    bHI = 62
    a(f"""
    s_and_b32 {s_rb2}, s2, 7
    s_lshl_b32 {s_rb2}, {s_rb2}, 2
    s_bfe_u32 s3, s2, 0x20003
    s_add_u32 {s_rb2}, {s_rb2}, s3
    s_lshr_b32 {s_cb}, s2, 5
    {f"s_and_b32 s3, s3, 1" if OPT.get("mix") else ""}
    {f"s_lshl_b32 s3, s3, 2" if OPT.get("mix") else ""}
    {f"s_xor_b32 {s_cb}, {s_cb}, s3" if OPT.get("mix") else ""}
    s_add_u32 {s_lam}, {s_rb2}, {s_cb}
    s_and_b32 {s_lam}, {s_lam}, 3
    v_lshrrev_b32 v{T+6}, 2, v1
    v_xor_b32 v{T+6}, v{T+6}, v{T+1}
    v_and_b32 v{T+6}, 1, v{T+6}
    v_and_b32 v{T+5}, 3, v1
    v_lshlrev_b32 v{bFA}, 3, v{T+5}
    v_lshl_or_b32 v{bFA}, v{T+9}, 7, v{bFA}
    v_lshlrev_b32 v{T+5}, 4, v{T+5}
    v_lshl_or_b32 v{T+6}, v{T+6}, 6, v{T+5}
    s_lshl_b32 {s_t3}, {s_cb}, 7
    v_lshl_or_b32 v{bD2}, v{T}, 10, v{T+6}
    v_add_u32 v{bD2}, {s_t3}, v{bD2}
    s_mul_i32 {s_wq}, {s_g}, {448*1024}
    s_and_b32 {s_t3}, {s_rb2}, 1
    s_lshl_b32 {s_t3}, {s_t3}, 16
    s_add_u32 {s_wqp}, {s_wq}, {s_t3}
    s_sub_u32 {s_wqm}, {s_wq}, {s_t3}
    s_lshl_b32 {s_oq}, {s_g}, 17
    s_mul_i32 {s_ring}, {s_g}, 12288
    s_add_u32 {s_ring}, {s_ring}, {L_RING}
    s_bfe_u32 {s_t2}, {s_r}, 0x10002
    s_lshl_b32 {s_t2}, {s_t2}, 1
    s_and_b32 {s_t3}, {s_r}, 1
    s_add_u32 {s_t2}, {s_t2}, {s_t3}
    s_lshl_b32 {s_t3}, {s_t2}, 7
    s_add_u32 {s_t3}, {s_t3}, {s_gw}
    v_add_u32 v{bCR}, {s_t3}, v{T+13}
    s_lshl_b32 {s_t1}, {s_type}, 3
    s_add_u32 {s_t1}, {s_t1}, {s_c}
    s_lshl_b32 {s_t1}, {s_t1}, 13
    s_add_u32 {s_csb}, {s_t1}, {hex(WS_CS)}
    s_lshl_b32 {s_t0}, {s_t2}, 11
    s_bfe_u32 {s_t1}, {s_r}, 0x10001
    s_lshl_b32 {s_t1}, {s_t1}, 3
    s_add_u32 {s_t0}, {s_t0}, {s_t1}
    s_lshr_b32 {s_t1}, {s_r}, 3
    s_lshl_b32 {s_t1}, {s_t1}, 9
    s_add_u32 {s_t0}, {s_t0}, {s_t1}
    s_add_u32 {s_csp}, {s_t0}, {s_csb}
    s_lshl_b32 {s_t0}, {s_g}, 11
    s_add_u32 {s_csb}, {s_csb}, {s_t0}
    s_lshl_b32 {s_row}, {s_row}, 4
    s_add_u32 {s_row}, {s_row}, {hex(WS_STATS)}
    v_and_b32 v{bT+12}, 31, v1
    v_lshlrev_b32 v{bT+13}, 5, v{bT+12}
    v_add_u32 v{bT+13}, {HI}, v{bT+13}
    v_lshl_or_b32 v{bT+14}, v{T+10}, 2, v{bT+13}
    s_lshl_b32 {s_t0}, {s_g}, 3
    v_add_u32 v{bT+14}, {s_t0}, v{bT+14}
    s_lshl_b32 {s_t0}, {s_g}, 11
    s_add_u32 {s_t0}, {s_t0}, {HI}
    v_add_u32 v{bT+15}, {s_t0}, v{vLN16}
    s_lshl_b32 {s_t0}, {s_r}, 11
    s_lshl_b32 {s_t1}, {s_g}, 9
    s_add_u32 {s_t1}, {s_t1}, {s_t0}
    s_max_u32 {s_t0}, {s_t0}, 256
    s_sub_u32 {s_t0}, {s_t0}, 256
    s_cmp_eq_u32 {s_type}, 0
    s_cselect_b32 {s_t0}, {s_t0}, {s_t1}
    v_and_b32 v{bT+8}, 15, v1
    v_lshl_add_u32 v{bT+9}, v{bT+8}, 4, {s_t0}
    v_lshl_add_u32 v{bT+7}, v{bT+12}, 4, {s_t1}
    v_cmp_gt_u32 vcc, 32, v1
    s_lshl_b32 {s_t0}, {s_g}, 7
    s_add_u32 {s_t0}, {s_t0}, {HI}
    v_cndmask_b32 v{bT+9}, v{bT+9}, v{bT+7}, vcc
    v_lshl_add_u32 v{bT+10}, v{bT+12}, 2, {s_t0}
    v_lshlrev_b32 v{bT+8}, 2, v{bT+8}
    v_add_u32 v{bT+8}, {HI+512}, v{bT+8}
    v_cndmask_b32 v{bT+10}, v{bT+8}, v{bT+10}, vcc
    v_lshlrev_b32 v{bT+12}, 4, v{bT+12}
    v_lshl_or_b32 v{bT+12}, v{T+10}, 10, v{bT+12}
    v_lshlrev_b32 v{bT+13}, 5, v1
    v_add_u32 v{bT+13}, {HI}, v{bT+13}
    v_mov_b32 v{bT+4}, 0
    v_mov_b32 v{bT+5}, 0
    v_mov_b32 v{bHO}, v{T+14}
    v_lshl_add_u32 v{T+3}, v{T+10}, 4, v{T+9}
    v_lshl_add_u32 v{T+2}, v{T+3}, 7, v{vINU}
    v_lshrrev_b32 v{T+3}, 1, v{T+9}
    v_xor_b32 v{T+3}, {s_th}, v{T+3}
    v_lshl_add_u32 v{T+2}, v{T+3}, 6, v{T+2}
    v_add_u32 v{bR[0]}, {s_ring}, v{T+2}
    v_xor_b32 v{bR[1]}, 64, v{bR[0]}
    s_lshl_b32 {s_t2}, {s_nh}, 10
    v_add_u32 v{bH[0]}, {s_t2}, v{vLN16}
    v_xor_b32 v{bH[1]}, 0x400, v{bH[0]}
    s_mul_i32 {s_hld}, {s_rb2}, {WS_RB2}
    s_mul_i32 {s_t2}, {s_g}, {36*2048}
    s_add_u32 {s_hld}, {s_hld}, {s_t2}
    v_and_b32 v{T+3}, 31, v1
    v_lshlrev_b32 v{T+3}, 10, v{T+3}
    v_lshl_or_b32 v{T+3}, v{T+10}, 5, v{T+3}
    s_lshl_b32 {s_t2}, {s_rb2}, 16
    s_lshl_b32 {s_t1}, {s_nh}, 15
    s_add_u32 {s_t2}, {s_t2}, {s_t1}
    s_lshl_b32 {s_t1}, {s_cb}, 7
    s_add_u32 {s_t2}, {s_t2}, {s_t1}
    s_lshl_b32 {s_t0}, {s_th}, 6
    s_add_u32 {s_t2}, {s_t2}, {s_t0}
    v_add_u32 v{bO}, {s_t2}, v{T+3}
    s_lshl_b32 {s_fst}, {s_rb2}, 2
    s_add_u32 {s_fst}, {s_fst}, {s_g}
    s_lshl_b32 {s_fst}, {s_fst}, 9
    s_add_u32 {s_fst}, {s_fst}, {hex(WS_FLAGS)}
    v_mov_b32 v{bHI}, {HI}
    v_mov_b32 v{bHI+1}, 1
    v_lshlrev_b32 v{bT}, 2, v1
    v_add_u32 v{bT+11}, {HI}, v{bT}
    v_mov_b32 v{bT+2}, 0
    ds_write_b32 v{bT+11}, v{bT+2} offset:{MISCO+C_RDY}
    """)
    pieces = []
    for u in range(1, 8): pieces += [(u, f) for f in unit_pieces(a, vm, u)]
    def issue(n, s):
        for _ in range(n):
            if pieces and pieces[0][0] <= s + 2: pieces.pop(0)[1]()
    if not OPT["split0"]: issue(OPT.get("q0", 6), 0)
    a("s_waitcnt lgkmcnt(0)\ns_barrier")
    stamp(a, 2)
    if OPT["split0"]:
        issue(4, 0)
        a("s_barrier")
    def nonce_load():
        a(f"v_mov_b32 v{bT+8}, 0\nbuffer_load_dwordx2 {vr(bNM,2)}, v{bT+8}, {sDBG}, 0 offen sc1")
    def cs_read(s):
        for u in range(2):
            for b in range(2):
                a(f"ds_read_b64_tr_b16 {vr(bCF+4*u+2*b,2)}, v{bCR} offset:{s*SLOT + u*64 + 4*b*RS}"); lg.issue("C")
    def cs_ops(s):
        ops = [lambda: lg.wait("C")]
        for i in range(8):
            acc = bT + 4 + i // 4
            ops.append(f"v_lshlrev_b32 v{bT}, 16, v{bCF+i}\nv_and_b32 v{bT+1}, 0xffff0000, v{bCF+i}\n"
                       f"v_add_f32 v{bT}, v{bT}, v{bT+1}\nv_add_f32 v{acc}, v{acc}, v{bT}")
        return ops
    def cs_write():
        for u in range(2):
            a(f"ds_write_b32 v{bT+14}, v{bT+4+u} offset:{CSRO + u*1024}"); lg.issue("CW")
    def pub_stats_pre():
        a(f"ds_read_b32 v{bST}, v{bT+11} offset:{MISCO}"); lg.issue("P")
    def nonce_head():
        a(f"""
        s_cmp_eq_u32 {s_g}, 0
        s_cbranch_scc0 B_nnh
        s_mov_b32 {s_spin}, 0
        B_nchk:
        v_readfirstlane_b32 {s_n1}, v{bNM+1}
        s_cmp_lg_u32 {s_n1}, 0
        s_cbranch_scc1 B_nok
        s_add_u32 {s_spin}, {s_spin}, 1
        s_cmp_ge_u32 {s_spin}, {SPIN_MAX}
        s_cbranch_scc1 B_nok
        s_sleep 2
        """)
        nonce_load()
        a(f"s_waitcnt vmcnt(0)\ns_branch B_nchk\nB_nok:")
        if OPT["diag"]: a(f"s_mov_b32 s101, {s_spin}")
        a(f"""
        ds_write_b64 v{bHI}, {vr(bNM,2)} offset:{MISCO+64}
        v_mov_b32 v{bST+1}, v{bNM}
        v_mov_b32 v{bST+2}, v{bNM+1}
        v_mov_b32 v{bST+3}, 0
        B_nnh:
        """)
        lg.issue("P0")
    def pub_stats():
        lg.wait("P")
        a(f"""
        s_cmp_eq_u32 {s_g}, 0
        s_cbranch_scc0 B_npub
        s_mov_b64 exec, 0xff
        buffer_store_dwordx4 {vr(bST,4)}, v{vLN16}, {sWS}, {s_row} offen sc1
        s_mov_b64 exec, -1
        B_npub:
        """)
    def pub_cs_ops():
        def r():
            a(f"""
            ds_read_b128 {vr(bCF,4)}, v{bT+13} offset:{CSRO}
            ds_read_b128 {vr(bCF+4,4)}, v{bT+13} offset:{CSRO+16}
            ds_read_b64 {vr(bNM,2)}, v{bHI} offset:{MISCO+64}
            """)
            for _ in range(3): lg.issue("P")
        return [r, "s_nop 0", lambda: lg.wait("P"),
            f"v_add_f32 v{bCF}, v{bCF}, v{bCF+1}\nv_add_f32 v{bCF+2}, v{bCF+2}, v{bCF+3}\nv_add_f32 v{bCF+4}, v{bCF+4}, v{bCF+5}\nv_add_f32 v{bCF+6}, v{bCF+6}, v{bCF+7}",
            f"v_add_f32 v{bCF}, v{bCF}, v{bCF+2}\nv_add_f32 v{bCF+4}, v{bCF+4}, v{bCF+6}\nv_readfirstlane_b32 {s_n0}, v{bNM}\nv_add_f32 v{bCF}, v{bCF}, v{bCF+4}",
            f"v_cvt_pk_bf16_f32 v{bCF+2}, v{bCF}, v{bCF}\nv_and_b32 v{bCF+2}, 0xffff0000, v{bCF+2}\nv_readfirstlane_b32 {s_n1}, v{bNM+1}\nv_sub_f32 v{bCF+2}, v{bCF}, v{bCF+2}",
            f"""v_cvt_pk_bf16_f32 v{bCF}, v{bCF}, v{bCF+2}
            v_mov_b32 v{bCF+1}, v{bNM}
            s_cmp_eq_u32 {s_g}, 1
            s_cbranch_scc0 B_npc
            buffer_store_dwordx2 {vr(bCF,2)}, v{bT+12}, {sWS}, {s_csp} offen sc1
            B_npc:"""]
    def fetch():
        a(f"""
        s_mov_b32 {s_t0}, {hex(WS_STATS)}
        buffer_load_dwordx4 {vr(bST,4)}, v{bT+9}, {sWS}, {s_t0} offen sc1
        buffer_load_dwordx4 {vr(bCF,4)}, v{vLN16}, {sWS}, {s_csb} offen sc1
        buffer_load_dwordx4 {vr(bCF+4,4)}, v{vLN16}, {sWS}, {s_csb} offen offset:1024 sc1
        """)
        for _ in range(3): vm.issue("ST")
    def handover():
        vm.wait("ST")
        a(f"""
        s_mov_b32 {s_spin}, 0
        B_schk:
        v_cmp_ne_u32 vcc, {s_n0}, v{bST+1}
        """)
        for reg, n in [(bST+2, s_n1), (bCF+1, s_n0), (bCF+3, s_n0), (bCF+5, s_n0), (bCF+7, s_n0)]:
            a(f"v_cmp_ne_u32 s[4:5], {n}, v{reg}\ns_or_b64 vcc, vcc, s[4:5]")
        a(f"""
        s_cbranch_scc0 B_sok
        s_add_u32 {s_spin}, {s_spin}, 1
        s_cmp_ge_u32 {s_spin}, {SPIN_MAX}
        s_cbranch_scc1 B_sok
        s_sleep 2
        """)
        sv = list(vm.q); fetch(); vm.q = sv
        a(f"s_waitcnt vmcnt(0)\ns_branch B_schk\nB_sok:")
        if OPT["diag"]: a(f"s_lshl_b32 s3, {s_spin}, 8\ns_and_b32 s101, s101, 0xff\ns_or_b32 s101, s101, s3")
        a(f"""
        ds_write_b32 v{bT+10}, v{bST} offset:{MISCO+128}
        v_mov_b32 v{bCF+1}, 0
        v_mov_b32 v{bCF+3}, 0
        v_mov_b32 v{bCF+5}, 0
        v_mov_b32 v{bCF+7}, 0
        ds_write_b128 v{bT+15}, {vr(bCF,4)} offset:{CSO}
        s_cmp_eq_u32 {s_g}, 3
        s_cbranch_scc1 B_nu7
        ds_write_b128 v{bT+15}, {vr(bCF+4,4)} offset:{CSO+1024}
        B_nu7:
        """)
        lg.issue("SW")
    NRAW = OPT["nraw"]
    def rslot(b):
        if b < NRAW: return RHI + 2*4096
        if b <= 10: return RHI + ((b - NRAW) % 3)*4096
        if b <= 13: return (b - 11)*4096
        return rslot(b - 6)
    def woff(b, dst):
        if OPT.get("fakew"):
            a(f"s_add_u32 {dst}, {s_oq}, {(b%2)*32768}"); return None
        if not OPT.get("perm"):
            sr, base, row0 = blk(b)
            a(f"s_add_u32 {dst}, {base}, {row0*1024}"); return sr
        if 12 <= b < 14:
            sr, base, row0 = blk(12)
            a(f"s_xor_b32 s3, {s_lam}, {b-12}\ns_and_b32 s3, s3, 1\ns_mul_i32 s3, s3, {224*1024}\ns_add_u32 s3, s3, {row0*1024}\ns_add_u32 {dst}, {base}, s3"); return sr
        b0 = (b & ~3) if b < 12 else 14
        k = b - b0
        sr, base, row0 = blk(b0)
        cs_ = 224 if b < 12 else 64
        a(f"""
        s_xor_b32 s3, {s_lam}, {k}
        s_lshr_b32 {dst}, s3, 1
        s_mul_i32 {dst}, {dst}, {cs_*1024}
        s_and_b32 s3, s3, 1
        s_lshl_b32 s3, s3, 15
        s_add_u32 {dst}, {dst}, s3
        s_add_u32 {dst}, {dst}, {base}
        s_add_u32 {dst}, {dst}, {row0*1024}
        """); return sr
    def Dp(b):
        if b >= 18: return []
        ps = []
        sr = blk(b)[0]
        for i in range(4):
            def f(i=i):
                if i == 0: woff(b, s_d0)
                else: a(f"s_add_u32 {s_d0}, {s_d0}, 8192")
                dma(a, vm, ("D", b), bD2, sr, s_d0, s_ring, rslot(b) + i*1024)
            ps.append(f)
        return ps
    def Trp(b):
        if b >= 18: return []
        ps = []
        for f in range(2):
            for nu in range(2):
                def g(f=f, nu=nu):
                    vm.wait(("D", b))
                    for b2 in range(2):
                        d = vWB + (b % WB)*16 + (f*2 + nu)*4 + 2*b2
                        a(f"ds_read_b64_tr_b16 {vr(d,2)}, v{bR[nu]} offset:{rslot(b) + (8*f+4*b2)*128}"); lg.issue(("T", b))
                ps.append(g)
        return ps
    def TD(b):
        return Trp(b) + [lambda: lg.wait(("T", b))] + Dp(b + 3)
    def raw(b):
        sr, base, row0 = blk(b)
        for i in range(4):
            a(f"s_add_u32 {s_t0}, {base}, {row0*1024 + i*8192}")
            a(f"buffer_load_dwordx4 {vr(vWB+16*b+4*i,4)}, v{bD2}, {sr}, {s_t0} offen"); vm.issue(("D", b))
    def convert(b):
        vm.wait(("D", b))
        for i in range(4): a(f"ds_write_b128 v{bCR}, {vr(vWB+16*b+4*i,4)} offset:{rslot(b) + i*1024}")
        for f in Trp(b): f()
        lg.wait(("T", b))
    def nonce0():
        a(f"s_cmp_eq_u32 {s_g}, 0\ns_cbranch_scc0 B_t0")
        nonce_load()
        a("B_t0:")
    def touch():
        a(f"""
        v_lshlrev_b32 v{bT+8}, 7, v1
        s_cmp_eq_u32 {s_g}, 1
        s_cbranch_scc0 B_t2
        s_mul_i32 {s_t1}, s2, {56*128}
        s_mov_b32 exec_hi, 0xffffff
        buffer_load_dword v{bT+6}, v{bT+8}, {sW2}, {s_t1} offen
        s_branch B_t3
        B_t2:
        s_cmp_eq_u32 {s_g}, 2
        s_cbranch_scc0 B_t3
        s_lshl_b32 {s_t0}, s2, 11
        s_mov_b64 exec, 0xffff
        buffer_load_dword v{bT+6}, v{bT+8}, {sWO}, {s_t0} offen
        B_t3:
        s_mov_b64 exec, -1
        """)
    nr = 0
    QUOTA = {0: [14, 15, 15, 12, 12, 12], 1: [14, 15, 12, 13, 13, 13], 2: [12, 14, 13, 14, 13, 14], 3: [16, 16, 12, 12, 12, 12]}[OPT.get('qt', 0)]
    for s in range(7):
        ex = []
        if s in {0: (), 1: (2, 6), 2: (6,)}[int(OPT.get("vw", 0))]: vm.wait_all()
        if s == 2: cs_write(); nonce_head()
        if s == 6: handover()
        if s < 6:
            issue(1, s)
            if s < 2: cs_read(s); ex = cs_ops(s)
            if s == 3: pub_stats_pre(); ex = pub_cs_ops() + [pub_stats]
            for k in range(1, QUOTA[s]):
                issue(1, s)
                if (k >= 2 or s == 3) and ex: emit(a, ex.pop(0))
            assert not ex and (not pieces or pieces[0][0] > s + 1)
        else:
            assert not pieces
            d6 = Dp(0) + Dp(1) + Dp(2)
            for f in d6[:OPT.get("n6", 12)]: f()
        if s == 0: nonce0()
        if s == OPT['w2touch']: touch()
        if s == 4: fetch()
        if s < 6 and s >= 6 - NRAW: raw(nr); nr += 1
        vm.wait(("U", s + 1))
        if lg.q: lg.wait_all()
        a("s_barrier")
        stamp(a, 3 + s, 1)
        if s == 3: stamp(a, 3)
        if s == 6: stamp(a, 4)
    for f in d6[OPT.get("n6", 12):]: f()
    if NRAW:
        a(f"v_add_u32 v{bCR}, {s_ring}, v{vLN16}")
        for b in range(NRAW): convert(b)
        for f in Dp(NRAW + 2): f()
    GR = {0: 0x00f0, 4: 0x0f00, 8: 0xf000, 14: 0x000f}
    s_ok, s_pend = s_t2, s_t3
    LD = (f"v_mov_b32 v{bF}, 0\nv_mov_b32 v{bF+1}, 0\ns_mov_b64 exec, 0xffff\n"
          f"buffer_atomic_or_x2 {vr(bF,2)}, v{bFA}, {sWS}, {s_fst} offen sc0 sc1\ns_mov_b64 exec, -1")
    issued = [0]; _iss = vm.issue
    def cnt_issue(tag): issued[0] += 1; _iss(tag)
    vm.issue = cnt_issue
    mark = {}
    def do_poll(b):
        if b not in GR: return
        if b == 0: a(f"s_mov_b32 {s_ok}, 0")
        a(f"""
        s_andn2_b32 s3, {hex(GR[b])}, {s_ok}
        s_cbranch_scc0 P2p{b}
        {LD}
        P2p{b}:
        """)
        mark[b] = issued[0]
    def ensure(b):
        a(f"""
        s_andn2_b32 s3, {hex(GR[b])}, {s_ok}
        s_cbranch_scc0 P2k{b}
        s_waitcnt vmcnt({issued[0] - mark[b]})
        s_mov_b32 {s_spin}, 0
        P2c{b}:
        v_cmp_eq_u32 vcc, {s_n0}, v{bF}
        v_cmp_eq_u32 s[4:5], {s_n1}, v{bF+1}
        s_and_b32 {s_ok}, vcc_lo, s4
        s_andn2_b32 s3, {hex(GR[b])}, {s_ok}
        s_cbranch_scc0 P2k{b}
        s_add_u32 {s_spin}, {s_spin}, 1
        """)
        if OPT["diag"]:
            sh = 16 if b == 0 else (20 if b < 8 else (24 if b < 14 else 28))
            a(f"s_bitset1_b32 s101, {sh}")
        a(f"""
        s_cmp_ge_u32 {s_spin}, {SPIN_MAX}
        s_cbranch_scc1 P2k{b}
        s_sleep 1
        s_nop 7
        {LD}
        s_waitcnt vmcnt(0)
        s_branch P2c{b}
        P2k{b}:
        """)
    def Hp(b):
        if b >= 18: return []
        ps = []
        for f in range(2):
            for tg in range(2):
                def g(f=f, tg=tg):
                    if f == 0 and tg == 0:
                        if b in GR: ensure(b)
                        if OPT.get("fakeh"): a(f"s_add_u32 {s_t1}, {s_hld}, {(b%3)*4096}")
                        elif OPT.get("perm"):
                            b0 = (b & ~3) if b < 12 else (12 if b < 14 else 14)
                            a(f"s_xor_b32 s3, {s_lam}, {b-b0}\n" + (f"s_and_b32 s3, s3, 1\n" if b0 == 12 else "") +
                              f"s_lshl_b32 s3, s3, 12\ns_add_u32 s3, s3, {b0*4096}\ns_add_u32 {s_t1}, {s_hld}, s3")
                        else: a(f"s_add_u32 {s_t1}, {s_hld}, {b*4096}")
                    d = vHB + (b % HB)*16 + (f*2 + tg)*4
                    a(f"buffer_load_dwordx4 {vr(d,4)}, v{bH[tg]}, {sWS}, {s_t1} offen offset:{f*2048} sc1"); vm.issue(("H", b, f, tg))
                ps.append(g)
        return ps
    def Mp(b):
        ps = []
        for f in range(2):
            for nu in range(2):
                for tg in range(2):
                    def g(f=f, nu=nu, tg=tg):
                        lg.wait(("T", b)); vm.wait(("H", b, f, tg))
                        acc = vA + (nu*2 + tg)*16
                        c = "0" if (b == 0 and f == 0 and (nu or tg)) else vr(acc, 16)
                        if not (OPT.get("nom2") and (nu or tg)): a(f"{MF} {vr(acc,16)}, {vr(vWB+(b%WB)*16+(f*2+nu)*4,4)}, {vr(vHB+(b%HB)*16+(f*2+tg)*4,4)}, {c}")
                    ps.append(g)
        return ps
    NPRE = max(min(NRAW + OPT.get("npre", 4), 8), NRAW)
    for b in range(NRAW, NPRE):
        for f in TD(b): f()
    stamp(a, 5)
    lds_spin(a, bHI, bT, C_FRE, "B_f9"); lg.q = []
    for f in Dp(11) + Dp(12) + Dp(13): f()
    xr = vA + 16
    a(f"buffer_load_dwordx4 {vr(xr,4)}, v{bO}, {sX}, 0 offen\nbuffer_load_dwordx4 {vr(xr+4,4)}, v{bO}, {sX}, 0 offen offset:16")
    vm.issue("X"); vm.issue("X")
    stamp(a, 6)
    if OPT["share"]:
        a(f"s_cmp_eq_u32 {s_type}, 0\ns_cbranch_scc1 B_att2")
        a(f"v_xor_b32 v{bT+11}, 0x80, v{bT+10}\nds_read_b32 v{bST+1}, v{bT+11} offset:{MISCO+128}")
        lds_spin(a, bHI, bT, C_HO, "B_ho")
        for i in range(3):
            for j in range(4):
                a(f"ds_read_b128 {vr(vA+16*i+4*j,4)}, v{bHO} offset:{i*4096 + j*1024}"); lg.issue(("A", i))
        S = [bST+2, bST+3]; C1 = [bST+4, bST+5]
        a(f"""
        v_and_b32 v{S[0]}, 0xffff0000, v{bST}
        v_and_b32 v{S[1]}, 0xffff0000, v{bST+1}
        v_rcp_f32 v{C1[0]}, v{S[0]}
        v_rcp_f32 v{C1[1]}, v{S[1]}
        v_mul_f32 v{C1[0]}, {f32(-LOG2E)}, v{C1[0]}
        v_mul_f32 v{C1[1]}, {f32(-LOG2E)}, v{C1[1]}
        """)
        for i, (x, base, off) in enumerate([(0, s_hst, POS["w2"]), (1, s_hs1, POS["w2"]), (0, s_hs6, POS["w3"])]):
            lg.wait(("A", i))
            for op in silu_ops(vA+16*i, C1[x], S[x], bT): a(op)
            a(f"s_add_u32 {s_so}, {base}, {off}")
            for h in range(2): a(hstore(vA+16*i+8*h, h))
        stamp(a, 7)
        a("B_att2:")
        for b in range(NPRE, 8):
            for f in Trp(b): f()
        a(f"s_cmp_eq_u32 {s_type}, 0\ns_cbranch_scc1 B_att3")
        a("s_waitcnt vmcnt(0)")
        for op in flag_store(2, bT+12): a(op)
        a(flag_store(4, bT+12)[-1])
        a("B_att3:")
        assert 8 - NPRE <= 3
        for b in range(NPRE, 8):
            lg.wait(("T", b))
            for f in Dp(b + 3): f()
    else:
        if OPT["quiet"] == 3:
            assert NPRE >= 5
            for b in range(NPRE, 8):
                for f in Trp(b): f()
            vm.wait("X")
            for i in range(8):
                a(f"v_lshlrev_b32 v{vA+2*i}, 16, v{xr+i}\nv_and_b32 v{vA+2*i+1}, 0xffff0000, v{xr+i}")
            lg.wait_all()
            if OPT.get("pe"): do_poll(0)
            if not OPT.get("nq"):
                a(f"s_cmp_eq_u32 {s_type}, 0\ns_cbranch_scc1 B_qk")
                lds_spin(a, bHI, bT, C_ST, "B_q")
            stamp(a, 7)
            deferred = list(range(NPRE + 3, 11))
        else:
            if OPT["quiet"]:
                a(f"s_cmp_eq_u32 {s_type}, 0\ns_cbranch_scc1 B_qk")
                lds_spin(a, bHI, bT, C_ST, "B_q")
                stamp(a, 7)
                if OPT["quiet"] == 2: do_poll(0)
            for b in range(NPRE, 8):
                for f in TD(b): f()
    if OPT['quiet'] != 2 and not OPT.get('pe'): do_poll(0)
    stamp(a, 10)
    if OPT["quiet"] == 3:
        for _ in range(OPT.get("nd", 2)):
            if deferred:
                for f in Dp(deferred.pop(0)): f()
    else:
        deferred = []
        vm.wait("X")
        for i in range(8):
            a(f"v_lshlrev_b32 v{vA+2*i}, 16, v{xr+i}\nv_and_b32 v{vA+2*i+1}, 0xffff0000, v{xr+i}")
    for f in Hp(0) + Hp(1) + Hp(2): f()
    stamp(a, 11)
    carry = []; nxt = 14
    for b in range(18):
        TL = OPT.get("tl", 7)
        tb = b + TL
        ms = Mp(b); ts = Trp(tb) if tb >= 8 else []
        dw = None
        if deferred: ds = Dp(deferred.pop(0))
        elif nxt < 18 and nxt - 6 < tb: ds = Dp(nxt); dw = nxt - 6; nxt += 1
        else: ds = []
        do_poll(b + 4)
        hs = Hp(b + 3)
        for i in range(8):
            ms[i]()
            if i < 2 and carry: carry.pop(0)()
            if i < 4:
                if ds:
                    if i == 0 and dw is not None: lg.wait(("T", dw))
                    ds[i]()
            else:
                if ts: ts[i-4]()
                if i < 6 and hs: hs[i-4]()
        carry = hs[2:]
        if b == 7: stamp(a, 12)
    stamp(a, 13)
    R = 2
    a(f"v_add_u32 v{R}, {s_ring}, v{vLN16}")
    for sg in range(1, 4):
        a(f"""
        s_xor_b32 {s_t0}, {s_g}, {sg}
        s_mul_i32 {s_t0}, {s_t0}, 12288
        s_add_u32 {s_t0}, {s_t0}, {L_RING}
        v_add_u32 v{R+sg}, {s_t0}, v{vLN16}
        """)
    for sg in range(1, 4):
        for j in range(4):
            a(f"ds_write_b128 v{R}, {vr(vA+16*sg+4*j,4)} offset:{(sg-1)*4096 + j*1024}")
    a("s_waitcnt lgkmcnt(0)\ns_barrier")
    lg.q = []
    for sg in range(1, 4):
        for j in range(4):
            a(f"ds_read_b128 {vr(vA+16*sg+4*j,4)}, v{R+sg} offset:{(sg-1)*4096 + j*1024}"); lg.issue(("F", sg))
    U = vHB
    OF = {0: '', 1: 'sc1', 2: 'nt', 3: 'sc0 sc1'}[OPT.get('of', 0)]
    for sg in range(1, 4):
        lg.wait(("F", sg))
        for j in range(16): a(f"v_add_f32 v{vA+j}, v{vA+j}, v{vA+16*sg+j}")
    for j in range(8): a(f"v_cvt_pk_bf16_f32 v{U+j}, v{vA+2*j}, v{vA+2*j+1}")
    a(f"buffer_store_dwordx4 {vr(U,4)}, v{bO}, {sOUT}, 0 offen {OF}\nbuffer_store_dwordx4 {vr(U+4,4)}, v{bO}, {sOUT}, 0 offen offset:16 {OF}")
    endpgm(a)

def build():
    a = Asm()
    prologue(a)
    waveA_setup(a)
    waveA(a, False, "M_")
    a("L_A_att:")
    waveA(a, True, "T_")
    waveB(a)
    a("L_done:\ns_endpgm\nL_codeend:")
    body = "\n".join(hazard.fix(a.lines)) + "\n"
    return single(body, 256, 512, 163840)

if __name__ == "__main__":
    out = sys.argv[1]
    for arg in sys.argv[2:]:
        if "=" in arg:
            k, v = arg.split("="); OPT[k] = int(v)
        else: OPT[arg] = True
    open(out, "w").write(build())
```

```python
import sys, struct
from asmlib import *
import hazard

def f32(x): return "0x%08x" % struct.unpack("<I", struct.pack("<f", x))[0]
LOG2E = 1.4426950408889634
OPT = dict(diag=False, prioA=0, prioB=0, pm=3, w2touch=3, share=0, xc=0, nraw=0, pk=1, seq=6, split0=1, f5=1, quiet=1, ep=1)

class Cnt:
    def __init__(self, a, name, mx): self.a, self.name, self.mx, self.q = a, name, mx, []
    def issue(self, tag): self.q.append(tag)
    def wait(self, tag):
        if tag not in self.q: return
        idx = max(i for i, t in enumerate(self.q) if t == tag)
        n = min(len(self.q) - idx - 1, self.mx)
        self.a(f"s_waitcnt {self.name}({n})")
        self.q = self.q[len(self.q) - n:] if n else []
    def wait_all(self):
        self.a(f"s_waitcnt {self.name}(0)"); self.q = []

WS_RB2 = 144 * 2048
WS_STATS = 0x900000
WS_FLAGS = 0x910000
WS_CS = 0x960000
WS_SIZE = 0x1000000
WS_DIAG = 0xA00000
SLOT = 45056
WOFF = 16384
RS = 448
L_KV = 0
KVS = 272
L_RING = 40960
RHI = 49152
L_CSR = 135168
L_HALO = 139264
L_CS = 155648
L_MISC = 162816
C_RDY, C_FRE, C_KV, C_HO, C_ST = 768, 800, 832, 836, 840
HI = 0x20000
CSO = L_CS - HI
CSRO = L_CSR - HI
MISCO = L_MISC - HI
sX, sW, sWS, sW2, sWO, sOUT, sDBG = "s[8:11]", "s[12:15]", "s[16:19]", "s[20:23]", "s[24:27]", "s[28:31]", "s[32:35]"
s_d0, s_d1, s_pfl, s_spin = "s0", "s1", "s6", "s7"
s_w, s_g, s_hs1, s_r, s_c, s_type = "s54", "s55", "s56", "s57", "s58", "s59"
s_stride, s_hs6, s_seq, s_str2, s_str64 = "s60", "s60", "s61", "s62", "s63"
s_wex = "s[64:65]"
s_g4k, s_t0, s_t1, s_t2, s_t3 = "s66", "s67", "s68", "s69", "s70"
s_hst, s_gw, s_th, s_nh = "s71", "s72", "s73", "s74"
s_selL, s_selH = "s75", "s76"
s_cls, s_fst = "s75", "s76"
s_rb2, s_cb, s_hld, s_wq, s_oq, s_ring = "s77", "s78", "s79", "s80", "s81", "s82"
s_row, s_wqp, s_wqm, s_cl, s_so = "s83", "s84", "s85", "s86", "s87"
s_csb, s_csp = "s58", "s86"
s_n0, s_n1 = "s88", "s89"
STAMP_REGS = [90, 92, 94, 96, 98, 36, 38, 40, 42, 44, 46, 48, 50, 52]
s_lam = "s75"
SPIN_MAX = 20000

def vr(b, n): return f"v[{b}:{b+n-1}]"
def stamp(a, i, grp=None):
    if OPT["diag"] and (i < 3 or OPT.get("grp") == grp): a(f"{'s_memrealtime' if OPT.get('rt') else 's_memtime'} s[{STAMP_REGS[i]}:{STAMP_REGS[i]+1}]")
def endpgm(a):
    if OPT["diag"]:
        a(f"""
        {'s_memrealtime' if OPT.get('rt') else 's_memtime'} s[4:5]
        s_waitcnt lgkmcnt(0)
        s_mov_b32 s3, s4
        s_memrealtime s[4:5]
        s_lshl_b32 {s_t0}, s2, 3
        s_add_u32 {s_t0}, {s_t0}, {s_w}
        s_lshl_b32 {s_t0}, {s_t0}, 7
        s_add_u32 {s_t0}, {s_t0}, {hex(WS_DIAG)}
        v_mov_b32 v2, 0
        s_mov_b64 exec, 1
        s_waitcnt lgkmcnt(0)
        """)
        for i, r in enumerate(STAMP_REGS + [3, 100, 4, 101]):
            a(f"v_mov_b32 v3, s{r}\nbuffer_store_dword v3, v2, {sWS}, {s_t0} offen offset:{4*i}")
    a("s_endpgm")
def srd(a, d, lo, hi, size):
    a(f"s_mov_b32 s{d}, s{lo}\ns_mov_b32 s{d+1}, s{hi}\ns_mov_b32 s{d+2}, {hex(size)}\ns_mov_b32 s{d+3}, 0x20000")
def emit(a, x):
    if callable(x): x()
    else: a(x)
MF = "v_mfma_f32_32x32x16_bf16"

vXD0, vXD1, vWD = 3, 4, 5
vLN16 = 6
vINU = 7
vP = 240
vSR = 224
aXR = [[8, 9, 10, 11], [12, 13, 14, 15]]; aWR = [16, 17, 18, 19]; aHR = [20, 21, 22, 23]
aCR = [24, 25, 26, 27]
aHO = 28
aSW = 5
aHI = 2; aRC = 4
aS = [29, 30]; aRS = [31, 32, 33]; aC1 = [34, 35]
aNM = [36, 40, 44]
aT = 48
aFR = 64
aACC = [112 + 16*i for i in range(7)]
bD2 = 2
bFA = 8
bH = [9, 13]; bF = 10; bR = [14, 15]; bO = 0
bT = 16
bST = 32
bNM = 40
bCF = 44

def dma(a, vm, tag, voff, srd_, soff, m0base, m0imm, ex=False):
    a(f"s_add_u32 m0, {m0base}, {m0imm}")
    if ex: a(f"s_mov_b64 exec, {s_wex}")
    a(f"buffer_load_dwordx4 v{voff}, {srd_}, {soff} offen lds")
    if ex: a("s_mov_b64 exec, -1")
    if vm is not None: vm.issue(tag)

def unit_pieces(a, vm, u):
    if u >= 8: return []
    def mk(pre, voff, srd_, soff, m0b, m0i, ex):
        def f():
            if pre: a(pre)
            dma(a, vm, ("U", u), voff, srd_, soff, m0b, m0i, ex)
        return f
    sl = (u % 3) * SLOT
    pre = f"s_bfe_u32 {s_d1}, {s_seq}, {hex(0x40000 + 4*u)}\ns_lshl_b32 {s_d0}, {s_d1}, 7\ns_mul_i32 {s_d1}, {s_d1}, {s_str64}"
    ps = []
    for i in range(4):
        p = pre if i == 0 else (f"s_add_u32 {s_d0}, {s_d0}, 0x4000" if i == 2 else None)
        ps.append(mk(p, (vXD0, vXD1)[i & 1], sX, s_d0, s_g4k, sl + i*1024, False))
        for j in (2*i, 2*i+1):
            p = None if j == 0 else f"s_add_u32 {s_d1}, {s_d1}, {s_str2}"
            ps.append(mk(p, vWD, sW, s_d1, s_gw, sl + WOFF + j*2*RS, True))
    return ps

def wave_reduce(a, v, sdst):
    for sh in (1, 2, 4, 8):
        a(f"v_add_f32_dpp {v}, {v}, {v} row_shr:{sh} row_mask:0xf bank_mask:0xf bound_ctrl:0")
    a(f"v_add_f32_dpp {v}, {v}, {v} row_bcast:15 row_mask:0xa bank_mask:0xf")
    a(f"v_add_f32_dpp {v}, {v}, {v} row_bcast:31 row_mask:0xc bank_mask:0xf")
    a(f"v_readlane_b32 {sdst}, {v}, 63")

def stats_ops(b, idx_off, st):
    t = Asm(); u = b + 4
    def red(v):
        for sh in (1, 2, 4, 8):
            t(f"v_add_f32_dpp {v}, {v}, {v} row_shr:{sh} row_mask:0xf bank_mask:0xf bound_ctrl:0")
        t(f"v_add_f32_dpp {v}, {v}, {v} row_bcast:15 row_mask:0xa bank_mask:0xf")
        t(f"v_add_f32_dpp {v}, {v}, {v} row_bcast:31 row_mask:0xc bank_mask:0xf")
        t(f"v_readlane_b32 {st}, {v}, 63")
    for i in range(4):
        t(f"v_lshlrev_b32 v{u+2*i}, 16, v{b+i}\nv_and_b32 v{u+2*i+1}, 0xffff0000, v{b+i}")
    t(f"""
    v_add_f32 v{b}, v{u}, v{u+1}
    v_add_f32 v{b+1}, v{u+2}, v{u+3}
    v_add_f32 v{b+2}, v{u+4}, v{u+5}
    v_add_f32 v{b+3}, v{u+6}, v{u+7}
    v_add_f32 v{b}, v{b}, v{b+1}
    v_add_f32 v{b+2}, v{b+2}, v{b+3}
    v_add_f32 v{b}, v{b}, v{b+2}
    """)
    red(f"v{b}")
    t(f"v_mov_b32 v{b+1}, {f32(1.0/512)}\nv_mul_f32 v{b+2}, {st}, v{b+1}")
    for i in range(8): t(f"v_sub_f32 v{u+i}, v{u+i}, v{b+2}")
    t(f"v_mul_f32 v{b}, v{u}, v{u}\nv_mul_f32 v{b+3}, v{u+1}, v{u+1}")
    for i in range(2, 8, 2): t(f"v_fmac_f32 v{b}, v{u+i}, v{u+i}\nv_fmac_f32 v{b+3}, v{u+i+1}, v{u+i+1}")
    t(f"v_add_f32 v{b}, v{b}, v{b+3}")
    red(f"v{b}")
    t(f"""
    v_mul_f32 v{b}, {st}, v{b+1}
    v_cvt_pk_bf16_f32 v{b}, v{b}, v{b}
    v_and_b32 v{b}, 0xffff0000, v{b}
    v_add_f32 v{b}, {f32(1e-5)}, v{b}
    v_cvt_pk_bf16_f32 v{b}, v{b}, v{b}
    v_and_b32 v{b}, 0xffff0000, v{b}
    v_sqrt_f32 v{b}, v{b}
    v_cvt_pk_bf16_f32 v{b}, v{b+2}, v{b}
    """)
    return [l.strip() for l in t.lines]

def nib(l): return sum(v << (4*i) for i, v in enumerate(l))
SEQT = {
 0: [[0,1,2,3,4,5,6,7]]*4,
 1: [[2,0,1,3,4,5,6,7], [0,3,1,2,4,5,6,7], [1,0,2,3,4,5,6,7], [0,1,2,3,4,5,6,7]],
 2: [[0,1,2,3,4,5,6,7], [1,2,3,0,5,6,7,4], [2,3,0,1,6,7,4,5], [3,0,1,2,7,4,5,6]],
 3: [[0,1,2,3,4,5,6,7], [0,2,1,3,4,5,6,7], [0,3,1,2,4,5,6,7], [0,1,3,2,4,5,6,7]],
 4: [[0,2,1,3,4,5,6,7], [1,3,0,2,4,5,6,7], [0,2,1,3,4,5,6,7], [1,3,0,2,4,5,6,7]],
 5: [[0,1,2,3,4,5,6,7], [1,0,3,2,5,4,7,6], [0,1,2,3,4,5,6,7], [1,0,3,2,5,4,7,6]],
 6: [[0,1,2,3,4,5,6,7], [1,2,3,0,4,5,6,7], [2,3,0,1,4,5,6,7], [3,0,1,2,4,5,6,7]],
 7: [[0,1,2,3,4,5,6,7], [1,2,3,0,5,4,7,6], [2,3,0,1,4,5,6,7], [3,0,1,2,5,4,7,6]],
}

def prologue(a):
    T = vP
    SQ = [nib(x) for x in SEQT[OPT["seq"]]]
    PF = f"s_mov_b64 exec, 15\nglobal_load_dword v{T+15}, v2, s[4:5]\ns_mov_b64 exec, -1"
    a(f"""
    s_cmp_ge_u32 s2, 256
    s_cbranch_scc1 L_done
    """)
    stamp(a, 0)
    if OPT["diag"]: a("s_memrealtime s[100:101]")
    a(f"""
    s_load_dwordx16 s[36:51], s[0:1], 0
    s_load_dwordx2 s[52:53], s[0:1], 64
    s_getpc_b64 s[4:5]
    L_pc:
    s_lshr_b32 s3, s2, 3
    s_lshl_b32 s3, s3, 5
    v_lshrrev_b32 v2, 4, v0
    v_and_b32 v1, 3, v0
    v_add3_u32 v2, v2, v1, s3
    v_and_b32 v2, 0x1ff, v2
    v_lshlrev_b32 v2, 7, v2
    v_min_u32 v2, L_codeend-L_pc-4, v2
    {PF if OPT.get("pf", 0) == 0 else f"v_mov_b32 v{T+15}, v2"}
    v_lshrrev_b32 v2, 6, v0
    v_and_b32 v1, 63, v0
    v_readfirstlane_b32 {s_w}, v2
    s_bfe_u32 {s_r}, s2, 0x10002
    s_lshl_b32 {s_r}, {s_r}, 3
    s_bfe_u32 s3, s2, 0x30003
    s_add_u32 {s_r}, {s_r}, s3
    s_and_b32 {s_c}, s2, 3
    s_lshl_b32 {s_t0}, {s_c}, 1
    s_bfe_u32 {s_cl}, s2, 0x10006
    s_add_u32 {s_c}, {s_t0}, {s_cl}
    s_lshr_b32 {s_type}, s2, 7
    {f"s_xor_b32 {s_type}, {s_type}, 1" if OPT.get("swap") else ""}
    s_and_b32 {s_g}, {s_w}, 3
    s_lshl_b32 {s_g4k}, {s_g}, 12
    s_mul_i32 {s_gw}, {s_g}, {16*RS}
    s_and_b32 {s_t1}, s2, 4
    {f"s_add_u32 {s_t1}, {s_t0}, {s_t1}" if OPT["xc"] else ""}
    s_and_b32 {s_t1}, {s_t1}, 7
    s_mul_i32 {s_t1}, {s_t1}, 0x11111111
    s_lshr_b32 {s_t2}, s2, 6
    s_add_u32 {s_t2}, {s_t2}, s3
    s_mov_b32 {s_seq}, {hex(SQ[0])}
    s_mov_b32 {s_t3}, {hex(SQ[2])}
    s_bitcmp1_b32 {s_t2}, 0
    s_cselect_b32 {s_seq}, {hex(SQ[1])}, {s_seq}
    s_cselect_b32 {s_t3}, {hex(SQ[3])}, {s_t3}
    s_bitcmp1_b32 {s_t2}, 1
    s_cselect_b32 {s_seq}, {s_t3}, {s_seq}
    s_add_u32 {s_seq}, {s_seq}, {s_t1}
    s_and_b32 {s_seq}, {s_seq}, 0x77777777
    v_lshrrev_b32 v{T}, 3, v1
    v_lshrrev_b32 v{T+1}, 4, v1
    v_and_b32 v{T+2}, 7, v1
    v_xor_b32 v{T+2}, v{T+2}, v{T+1}
    v_lshlrev_b32 v{T+2}, 4, v{T+2}
    v_lshl_or_b32 v{T+8}, v{T}, 10, v{T+2}
    s_lshl_b32 {s_t0}, {s_r}, 17
    s_lshl_b32 {s_t1}, {s_g}, 15
    s_add_u32 {s_t1}, {s_t1}, {s_t0}
    v_add_u32 v{vXD0}, {s_t1}, v{T+8}
    v_add_u32 v{vXD1}, 0x2000, v{vXD0}
    v_xor_b32 v{vXD1}, 64, v{vXD1}
    s_mul_i32 {s_t1}, {s_c}, 448
    s_lshl_b32 {s_t3}, {s_c}, 7
    s_movk_i32 {s_stride}, 3584
    s_mov_b32 s64, -1
    s_mov_b32 s65, 0x00ffffff
    s_cmp_eq_u32 {s_type}, 0
    s_cselect_b32 {s_stride}, 3072, {s_stride}
    s_cselect_b32 {s_t1}, {s_t3}, {s_t1}
    s_cselect_b32 {s_t2}, 10, 7
    s_cselect_b32 s64, 0xf0ffffff, s64
    s_cselect_b32 s65, 0x000fffff, s65
    s_lshl_b32 {s_str64}, {s_stride}, 6
    s_lshl_b32 {s_str2}, {s_stride}, 1
    v_cmp_lt_u32 vcc, 27, v1
    v_subrev_u32 v{T+3}, 28, v1
    s_lshl_b32 {s_t0}, {s_g}, 4
    s_mul_i32 {s_t0}, {s_t0}, {s_stride}
    s_add_u32 {s_t1}, {s_t1}, {s_t0}
    v_mov_b32 v{T+4}, {s_stride}
    v_cndmask_b32 v{T+3}, v1, v{T+3}, vcc
    v_cndmask_b32 v{T+4}, 0, v{T+4}, vcc
    v_lshrrev_b32 v{T+5}, 3, v{T+3}
    v_lshlrev_b32 v{T+5}, {s_t2}, v{T+5}
    v_and_b32 v{T+3}, 7, v{T+3}
    v_lshl_add_u32 v{T+3}, v{T+3}, 4, v{T+5}
    v_add3_u32 v{vWD}, v{T+3}, v{T+4}, {s_t1}
    v_lshlrev_b32 v{vLN16}, 4, v1
    s_lshl_b32 {s_row}, {s_r}, 1
    s_add_u32 {s_row}, {s_row}, {s_type}
    s_lshl_b32 {s_row}, {s_row}, 3
    s_add_u32 {s_row}, {s_row}, {s_c}
    s_lshl_b32 {s_row}, {s_row}, 3
    s_mul_i32 {s_t3}, {s_g}, {2*RS}
    s_mul_i32 {s_t0}, {s_g}, 14
    s_mul_i32 {s_t0}, {s_t0}, {s_stride}
    v_subrev_u32 v{T+6}, {s_t0}, v{vWD}
    s_lshl_b32 {s_t2}, {s_stride}, 3
    s_lshl_b32 {s_t0}, {s_r}, 17
    s_sub_u32 {s_t0}, {s_t0}, 0x4000
    s_and_b32 {s_t1}, {s_g}, 1
    s_lshl_b32 {s_so}, {s_t1}, 13
    s_add_u32 {s_t0}, {s_t0}, {s_so}
    s_lshl_b32 {s_t1}, {s_t1}, 6
    v_xor_b32 v{T+7}, {s_t1}, v{T+8}
    v_add_u32 v{T+7}, {s_t0}, v{T+7}
    s_and_b32 {s_so}, {s_g}, 2
    s_lshl_b32 {s_so}, {s_so}, 1
    s_lshr_b32 {s_so}, {s_seq}, {s_so}
    s_lshl_b32 {s_hld}, {s_g}, 10
    s_mov_b32 s10, 0x200000
    s_mov_b32 s11, 0x20000
    s_lshl_b32 s14, {s_stride}, 9
    s_mov_b32 s15, 0x20000
    s_cmp_eq_u32 {s_type}, 0
    s_waitcnt lgkmcnt(0)
    """)
    stamp(a, 1)
    a(f"""
    s_mov_b32 s8, s36
    s_mov_b32 s9, s37
    s_cselect_b32 s12, s38, s44
    s_cselect_b32 s13, s39, s45
    s_cmp_ge_u32 {s_w}, 4
    s_cbranch_scc1 L_b0
    s_and_b32 {s_d1}, {s_seq}, 15
    s_lshl_b32 {s_d0}, {s_d1}, 7
    s_mul_i32 {s_d1}, {s_d1}, {s_str64}
    """)
    for i in range(4):
        if i == 2: a(f"s_add_u32 {s_d0}, {s_d0}, 0x4000")
        dma(a, None, None, (vXD0, vXD1)[i & 1], sX, s_d0, s_g4k, i*1024)
        if i > 0: a(f"s_add_u32 {s_d1}, {s_d1}, {s_t2}")
        dma(a, None, None, T+6, sW, s_d1, s_t3, WOFF + i*8*RS, True)
    def halo(i):
        a(f"s_bfe_u32 {s_d0}, {s_so}, {hex(0x40000 + 8*i)}\ns_lshl_b32 {s_d0}, {s_d0}, 7")
        dma(a, None, None, T+7, sX, s_d0, s_hld, L_HALO + i*4096)
    a(f"s_cmp_eq_u32 {s_type}, 0\ns_cbranch_scc0 L_nh0")
    halo(0)
    a("L_nh0:")
    for j in range(4, 8):
        a(f"s_add_u32 {s_d1}, {s_d1}, {s_t2}")
        dma(a, None, None, T+6, sW, s_d1, s_t3, WOFF + j*8*RS, True)
    a("L_b0:")
    if OPT.get("pf") == 1: a(f"s_mov_b64 exec, 15\nglobal_load_dword v{T+15}, v{T+15}, s[4:5]\ns_mov_b64 exec, -1")
    global HALO_FN
    HALO_FN = halo
    srd(a, 32, 50, 51, 256)
    a(f"""
    s_cmp_eq_u32 s2, 0
    s_cselect_b32 s3, {s_w}, 0
    s_cmp_eq_u32 s3, 4
    s_cbranch_scc0 L_nonz
    s_memrealtime s[4:5]
    s_waitcnt lgkmcnt(0)
    s_bitset1_b32 s5, 31
    v_mov_b32 v{T+2}, s4
    v_mov_b32 v{T+3}, s5
    v_mov_b32 v{T+4}, 0
    s_mov_b64 exec, 1
    buffer_store_dwordx2 {vr(T+2,2)}, v{T+4}, {sDBG}, 0 offen sc1
    s_mov_b64 exec, -1
    L_nonz:
    """)
    srd(a, 16, 52, 53, WS_SIZE)
    srd(a, 20, 46, 47, 1792*512*2)
    srd(a, 24, 40, 41, 512*512*2)
    srd(a, 28, 48, 49, 2048*512*2)
    if OPT["diag"]: a("s_mov_b32 s101, 0")
    a(f"""
    v_bfe_u32 v{T+9}, v1, 2, 2
    v_lshrrev_b32 v{T+10}, 5, v1
    v_and_b32 v{vINU}, 1, v1
    v_lshlrev_b32 v{vINU}, 5, v{vINU}
    v_and_b32 v{T+2}, 16, v1
    v_or_b32 v{vINU}, v{vINU}, v{T+2}
    v_and_b32 v{T+2}, 2, v1
    v_lshl_or_b32 v{vINU}, v{T+2}, 2, v{vINU}
    v_lshl_add_u32 v{T+11}, v{T+10}, 3, v{T+9}
    v_mul_u32_u24 v{T+13}, {RS}, v{T+11}
    v_add_u32 v{T+13}, v{T+13}, v{vINU}
    v_add_u32 v{T+13}, {WOFF}, v{T+13}
    s_lshr_b32 {s_th}, {s_g}, 1
    s_and_b32 {s_nh}, {s_g}, 1
    s_lshl_b32 {s_t0}, {s_r}, 1
    s_add_u32 {s_t0}, {s_t0}, {s_th}
    s_mul_i32 {s_hst}, {s_t0}, {WS_RB2}
    s_lshr_b32 {s_t1}, {s_c}, 1
    s_mul_i32 {s_t2}, {s_t1}, {36*2048}
    s_add_u32 {s_hst}, {s_hst}, {s_t2}
    s_lshl_b32 {s_t3}, {s_nh}, 10
    s_add_u32 {s_hst}, {s_hst}, {s_t3}
    s_lshl_b32 {s_t2}, {s_cl}, 12
    s_add_u32 {s_hs6}, {s_hst}, {s_t2}
    s_lshl_b32 {s_t2}, {s_cl}, 1
    s_add_u32 {s_t2}, {s_t2}, {s_nh}
    s_lshl_b32 {s_t3}, {s_t2}, 12
    s_add_u32 {s_hst}, {s_hst}, {s_t3}
    s_xor_b32 {s_hs1}, {s_hst}, 0x400
    s_lshl_b32 {s_pfl}, {s_t0}, 2
    s_add_u32 {s_pfl}, {s_pfl}, {s_t1}
    s_lshl_b32 {s_pfl}, {s_pfl}, 6
    s_add_u32 {s_pfl}, {s_pfl}, {s_t2}
    s_lshl_b32 {s_pfl}, {s_pfl}, 3
    s_add_u32 {s_pfl}, {s_pfl}, {hex(WS_FLAGS)}
    s_mul_i32 {s_t0}, {s_g}, 12288
    s_cmp_eq_u32 {s_g}, 3
    s_cselect_b32 {s_t0}, {L_HALO}, {s_t0}
    v_add_u32 v{T+14}, {s_t0}, v{vLN16}
    s_cmp_ge_u32 {s_w}, 4
    s_cbranch_scc1 L_B
    """)

def flag_store(stage, t):
    return [f"v_mov_b32 v{t}, {s_n0}", f"v_mov_b32 v{t+1}, {s_n1}", f"v_mov_b32 v{t+2}, 0",
            "s_mov_b64 exec, 1\n" + f"buffer_store_dwordx2 {vr(t,2)}, v{t+2}, {sWS}, {s_pfl} offen offset:{stage*128} sc1\n" + "s_mov_b64 exec, -1"]
def derive(src, nm, sd):
    return [f"v_and_b32 v{sd}, 0xffff0000, v{src}", f"v_and_b32 v{nm}, 0xffff, v{src}", f"v_xor_b32 v{nm}, 0x8000, v{nm}",
            f"v_lshl_or_b32 v{nm}, v{nm}, 16, v{nm}", f"v_mov_b32 v{nm+1}, v{nm}", f"v_mov_b32 v{nm+2}, v{nm}", f"v_mov_b32 v{nm+3}, v{nm}"]
def lds_signal(vh, off):
    return f"s_mov_b64 exec, 1\nds_add_u32 v{vh}, v{vh+1} offset:{MISCO+off}\ns_mov_b64 exec, -1"
def lds_spin(a, vh, t, off, lbl, sleep=True):
    a(f"""
    s_mov_b32 {s_spin}, 0
    {lbl}:
    ds_read_b32 v{t}, v{vh} offset:{MISCO+off}
    s_waitcnt lgkmcnt(0)
    v_readfirstlane_b32 s3, v{t}
    s_cmp_ge_u32 s3, 4
    s_cbranch_scc1 {lbl}k
    s_add_u32 {s_spin}, {s_spin}, 1
    s_cmp_ge_u32 {s_spin}, 0x200000
    s_cbranch_scc1 {lbl}k
    {"s_sleep 1" if sleep else "s_nop 7"}
    s_nop 7
    s_branch {lbl}
    {lbl}k:
    """)
def silu_ops(acc, c1, sd, t, pk=None):
    ops = []
    if pk is None: pk = OPT['pk']
    for h in range(2):
        b = acc + 8*h
        if pk:
            def bc(r): return (vr(r & ~1, 2), r & 1)
            cp, cs = bc(c1); sp, ss = bc(sd)
            for j in range(0, 8, 2): ops.append(f"v_pk_mul_f32 {vr(t+j,2)}, {vr(b+j,2)}, {cp} op_sel:[0,{cs}] op_sel_hi:[1,{cs}]")
            for j in range(8): ops.append(f"v_exp_f32 v{t+j}, v{t+j}")
            for j in range(0, 8, 2): ops.append(f"v_pk_fma_f32 {vr(t+j,2)}, {vr(t+j,2)}, {sp}, {sp} op_sel:[0,{ss},{ss}] op_sel_hi:[1,{ss},{ss}]")
            for j in range(8): ops.append(f"v_rcp_f32 v{t+j}, v{t+j}")
            for j in range(0, 8, 2): ops.append(f"v_pk_mul_f32 {vr(b+j,2)}, {vr(b+j,2)}, {vr(t+j,2)}")
        else:
            for j in range(8): ops.append(f"v_mul_f32 v{t+j}, v{b+j}, v{c1}")
            for j in range(8): ops.append(f"v_exp_f32 v{t+j}, v{t+j}")
            for j in range(8): ops.append(f"v_fma_f32 v{t+j}, v{t+j}, v{sd}, v{sd}")
            for j in range(8): ops.append(f"v_rcp_f32 v{t+j}, v{t+j}")
            for j in range(8): ops.append(f"v_mul_f32 v{b+j}, v{b+j}, v{t+j}")
        for j in range(4): ops.append(f"v_cvt_pk_bf16_f32 v{b+j}, v{b+2*j}, v{b+2*j+1}")
    return ops
def hstore(b, h):
    if OPT.get('nost'): return 's_nop 0'
    return f"buffer_store_dwordx4 {vr(b,4)}, v{vLN16}, {sWS}, {s_so} offen offset:{h*2048} sc1"

POS = {"w1": 0, "w2": 16384, "w0": 32768, "w3": 49152, "att": 57344}
def blk(p):
    if p < 12:
        e, cl, nh = p >> 2, (p >> 1) & 1, p & 1
        base, tau = [(s_wqp, 2 + nh), (s_wqm, 4 + nh), (s_wq, nh)][e]
        return sW2, base, 224*cl + 32*tau
    if p < 14: return sW2, s_wq, 224*(p - 12) + 192
    cl, nh = ((p - 14) >> 1) & 1, p & 1
    return sWO, s_oq, 64*cl + 32*nh

def waveA_setup(a):
    T = vP
    if OPT["prioA"]: a(f"s_setprio {OPT['prioA']}")
    a(f"""
    v_bfe_u32 v{T+12}, v1, 1, 3
    v_xor_b32 v{T+12}, v{T+12}, v{T+10}
    v_and_b32 v{T+2}, 31, v1
    v_lshl_add_u32 v{T+4}, v{T+2}, 7, {s_g4k}
    v_and_b32 v{T+3}, 15, v1
    v_lshlrev_b32 v{T+3}, 7, v{T+3}
    v_add_u32 v{T+3}, {hex(L_HALO)}, v{T+3}
    """)
    for ks in range(4):
        a(f"""
        v_xor_b32 v{T+5}, {2*ks}, v{T+12}
        v_lshl_add_u32 v{aXR[0][ks]}, v{T+5}, 4, v{T+4}
        v_xor_b32 v{aXR[1][ks]}, 0x1000, v{aXR[0][ks]}
        v_lshl_add_u32 v{aHR[ks]}, v{T+5}, 4, v{T+3}
        """)
    a(f"""
    s_lshl_b32 {s_t0}, {s_nh}, 6
    s_lshl_b32 {s_t1}, {s_th}, 7
    v_add_u32 v{aWR[0]}, {s_t0}, v{T+13}
    s_add_u32 {s_t2}, {s_t1}, 128
    v_add_u32 v{aWR[1]}, {s_t2}, v{aWR[0]}
    s_sub_u32 {s_t3}, 256, {s_t1}
    v_add_u32 v{aWR[2]}, {s_t3}, v{aWR[0]}
    v_add_u32 v{aWR[3]}, 384, v{T+13}
    v_add_u32 v{aCR[3]}, {L_CS}, v{vLN16}
    s_lshl_b32 {s_t0}, {s_t0}, 4
    s_lshl_b32 {s_t2}, {s_t2}, 4
    s_lshl_b32 {s_t3}, {s_t3}, 4
    v_add_u32 v{aCR[0]}, {s_t0}, v{aCR[3]}
    v_add_u32 v{aCR[1]}, {s_t2}, v{aCR[0]}
    v_add_u32 v{aCR[2]}, {s_t3}, v{aCR[0]}
    v_add_u32 v{aCR[3]}, 6144, v{aCR[3]}
    v_mov_b32 v{aHO}, v{T+14}
    v_mov_b32 v{aHI}, {HI}
    v_mov_b32 v{aHI+1}, 1
    s_lshl_b32 {s_t0}, {s_g}, 3
    s_add_u32 {s_t0}, {s_t0}, {HI}
    v_mov_b32 v{aSW}, {s_t0}
    s_cmp_eq_u32 {s_type}, 0
    s_cbranch_scc0 L_nh1
    """)
    for i in range(1, 4): HALO_FN(i)
    a(f"""
    L_nh1:
    s_lshl_b32 {s_t0}, {s_g}, 1
    s_add_u32 {s_t0}, {s_t0}, {s_row}
    s_lshl_b32 {s_t0}, {s_t0}, 10
    buffer_load_dwordx4 {vr(vSR,4)}, v{vLN16}, {sX}, {s_t0} offen
    buffer_load_dwordx4 {vr(vSR+12,4)}, v{vLN16}, {sX}, {s_t0} offen offset:1024
    s_cmp_eq_u32 {s_type}, 0
    s_cbranch_scc1 L_A_att
    """)

def waveA(a, att, P):
    lg = Cnt(a, "lgkmcnt", 15)
    def fr(t, i): return aFR + (t % 2)*24 + 4*i
    def rd(txt, tag):
        def f(): a(txt); lg.issue(tag)
        return f
    def read_ops(t):
        if t == 32:
            order = [(3, 1), (4, 2), (2, 0), (5, 3)] if not att else [(3, 1), (4, 2), (2, 0)]
            return [rd(f"ds_read_b128 {vr(fr(t,i),4)}, v{aCR[m]}", (t, i)) for i, m in order]
        s, ks = divmod(t, 4)
        ops = []
        def wfrag(i, m):
            return [rd(f"ds_read_b64_tr_b16 {vr(fr(t,i)+2*b,2)}, v{aWR[m]} offset:{(16*ks+4*b)*RS}", (t, i)) for b in range(2)]
        ops.append(rd(f"ds_read_b128 {vr(fr(t,0),4)}, v{aXR[0][ks]}", (t, 0)))
        ops += wfrag(2, 0)
        ops.append(rd(f"ds_read_b128 {vr(fr(t,1),4)}, v{aXR[1][ks]}", (t, 1)))
        ops += wfrag(3, 1) + wfrag(4, 2)
        if att: ops.append(rd(f"ds_read_b128 {vr(fr(t,5),4)}, v{aHR[ks]} offset:{s*2048}", (t, 5)))
        else: ops += wfrag(5, 3)
        return ops
    def adv(regs, s):
        d = SLOT if (s + 1) % 3 else -2*SLOT
        return [f"v_add_u32 v{r}, {hex(d & 0xffffffff)}, v{r}" for r in regs]
    MM = [(2, 0), (2, 1), (3, 0), (3, 1), (4, 0), (4, 1), (3, 5) if att else (5, 0)]
    vKV = [aT+4, aT+5]; vTOK = [aT+6, aT+7]; vNEG = aT+3
    def kv_ops(acc, rs, addr, off):
        ops = [f"v_mul_f32 v{acc+j}, v{acc+j}, v{rs}" for j in range(16)]
        ops += [f"v_cvt_pk_bf16_f32 v{acc+j}, v{acc+2*j}, v{acc+2*j+1}" for j in range(8)]
        ops += [rd(f"ds_write_b128 v{addr}, {vr(acc,4)} offset:{off}", "KW"), rd(f"ds_write_b128 v{addr}, {vr(acc+4,4)} offset:{off+16}", "KW")]
        return ops
    def shadow_ops():
        if not att: return silu_ops(aACC[2], aC1[0], aS[0], aT, pk=0)
        txt = f"""
        v_and_b32 v{vTOK[0]}, 31, v1
        s_lshl_b32 {s_t0}, {s_g}, 5
        v_add_u32 v{vTOK[0]}, {s_t0}, v{vTOK[0]}
        v_xor_b32 v{vTOK[1]}, 32, v{vTOK[0]}
        v_and_b32 v{aT+2}, 32, v1
        s_lshl_b32 {s_t1}, {s_nh}, 6
        s_add_u32 {s_t1}, {s_t1}, {L_KV + 2*KVS}
        v_add_u32 v{aT+2}, {s_t1}, v{aT+2}
        v_mul_u32_u24 v{vKV[0]}, {KVS}, v{vTOK[0]}
        v_mul_u32_u24 v{vKV[1]}, {KVS}, v{vTOK[1]}
        v_add_u32 v{vKV[0]}, v{vKV[0]}, v{aT+2}
        v_add_u32 v{vKV[1]}, v{vKV[1]}, v{aT+2}
        s_lshl_b32 {s_t0}, {s_r}, 7
        v_add_u32 v{vTOK[0]}, {s_t0}, v{vTOK[0]}
        v_add_u32 v{vTOK[1]}, {s_t0}, v{vTOK[1]}
        s_lshl_b32 {s_t0}, {s_th}, 7
        s_xor_b32 {s_t1}, {s_t0}, 128
        v_add_u32 v8, {s_t0}, v{vKV[0]}
        v_add_u32 v9, {s_t0}, v{vKV[1]}
        v_add_u32 v10, {s_t1}, v{vKV[0]}
        v_add_u32 v11, {s_t1}, v{vKV[1]}
        v_and_b32 v12, 15, v1
        v_mul_u32_u24 v12, {KVS}, v12
        v_add3_u32 v12, v12, v{aT+2}, {s_t0}
        v_subrev_u32 v12, {2*KVS}, v12
        s_mov_b32 {s_selL}, 0x05040100
        s_mov_b32 {s_selH}, 0x07060302
        v_mov_b32 v{vNEG}, {f32(-1e30)}
        """
        ops = [l.strip() for l in txt.split("\n") if l.strip()]
        return (ops + kv_ops(aACC[2], aRS[0], 8, 14*KVS) + kv_ops(aACC[3], aRS[1], 9, 14*KVS) + kv_ops(aACC[6], aRS[2], 12, 0)
                + kv_ops(aACC[4], aRS[0], 10, 14*KVS) + kv_ops(aACC[5], aRS[1], 11, 14*KVS))
    yng = (5 if att else 2) + (1 if OPT.get('pf') == 1 else 0)
    a(f"s_waitcnt vmcnt({yng + 4 if OPT['split0'] else yng})\ns_barrier")
    stamp(a, 2)
    s0, s1 = stats_ops(vSR, 0, s_t2), stats_ops(vSR+12, 1, s_t3)
    sfill = []
    for x, y in zip(s0, s1): sfill += [x, y]
    sfill.append(f"v_mov_b32 v{vSR+1}, v{vSR+12}")
    sfill.append(rd(f"ds_write_b64 v{aSW}, {vr(vSR,2)} offset:{MISCO}", "SW"))
    X7 = lambda ks, x: 224 + (2*ks + x)*4
    R7 = []
    M7 = []
    pool = [0]
    def pslot(i): return aFR + (i % 12)*4
    def addw(m, ks):
        i = pool[0]; pool[0] += 1
        R7.append(([rd(f"ds_read_b64_tr_b16 {vr(pslot(i)+2*b,2)}, v{aWR[m]} offset:{(16*ks+4*b)*RS}", ("p", i)) for b in range(2)], i)); return i
    def addq(txt):
        i = pool[0]; pool[0] += 1
        R7.append(([rd(txt.format(d=vr(pslot(i),4)), ("p", i))], i)); return i
    R7.append(([rd(f"ds_read_b32 v{aT+1}, v{aT} offset:{MISCO+128}", "S"), rd(f"ds_read_b32 v{aT+2}, v{aT+6} offset:{MISCO+128}", "S"),
                rd(f"ds_read_b64 {vr(aT+4,2)}, v{aHI} offset:{MISCO+64}", "S")]
               + ([rd(f"ds_read_b32 v{aT+3}, v{aT+7} offset:{MISCO+128+512}", "S")] if att else []), None))
    groups = [(1, (2, 3)), (2, (4, 5)), (0, (0, 1))] + ([] if att else [(3, (6,))])
    for gi, (m, accs) in enumerate(groups):
        for ks in range(4):
            if gi == 0: R7.append(([rd(f"ds_read_b128 {vr(X7(ks,0),4)}, v{aXR[0][ks]}", ("x", ks, 0))], None))
            w = addw(m, ks)
            if gi == 0: R7.append(([rd(f"ds_read_b128 {vr(X7(ks,1),4)}, v{aXR[1][ks]}", ("x", ks, 1))], None))
            for x, acc in enumerate(accs): M7.append((acc, pslot(w), X7(ks, x), [("p", w), ("x", ks, x)], [w]))
            if gi == 0 and att:
                h = addq("ds_read_b128 {d}, " + f"v{aHR[ks]} offset:{7*2048}")
                M7.append((6, pslot(w), pslot(h), [("p", w), ("p", h)], [w, h]))
        c = addq("ds_read_b128 {d}, " + f"v{aCR[m]}")
        for x, acc in enumerate(accs): M7.append((acc, pslot(c), aNM[x], [("p", c)], [c]))
        if gi == 0 and att: M7.append((6, pslot(c), aNM[2], [("p", c)], [c]))
        if gi == 0: g1_end = len(M7)
    last_use = {}
    for k, mm in enumerate(M7):
        for i in mm[4]: last_use[i] = k
    R7f = []
    for ops, i in R7:
        for op in ops: R7f.append((op, i))
    def r7_issue(n, done):
        cnt = 0
        while R7f and cnt < n:
            op, i = R7f[0]
            if i is not None:
                if 6 <= i < 12 and done < 0: break
                if i >= 12 and last_use[i-12] >= done: break
            R7f.pop(0); op(); cnt += 1
        return cnt
    k1 = f32(0.25*LOG2E if att else -LOG2E)
    dv = [lambda: lg.wait("S")] + derive(aT+1, aNM[0], aS[0]) + derive(aT+2, aNM[1], aS[1])
    if att: dv += derive(aT+3, aNM[2], aRS[2]) + [f"v_rcp_f32 v{aRS[2]}, v{aRS[2]}"]
    dv += [f"v_rcp_f32 v{aRS[0]}, v{aS[0]}", f"v_rcp_f32 v{aRS[1]}, v{aS[1]}", f"v_readfirstlane_b32 {s_n0}, v{aT+4}", f"v_readfirstlane_b32 {s_n1}, v{aT+5}",
           f"v_mul_f32 v{aC1[0]}, {k1}, v{aRS[0]}", f"v_mul_f32 v{aC1[1]}, {k1}, v{aRS[1]}"]

    for f in read_ops(0): f()
    for t in range(28):
        s, ks = divmod(t, 4)
        rds = read_ops(t + 1) if t < 27 else []
        post = adv([aXR[0][(t+1) % 4], aXR[1][(t+1) % 4]], (t+1)//4) if t + 1 < 28 else []
        if ks == 2: post += adv(aWR[:3] if att else aWR, s)
        if t == 0: post += adv([aXR[0][0], aXR[1][0]], 0)
        if t == 3: post.append("s_waitcnt vmcnt(0)")
        if 3 <= t <= 10:
            k = 18 if t < 10 else 999
            post += sfill[:k]; sfill = sfill[k:]
        if t == 24:
            post += [f"v_and_b32 v{aT}, 31, v1", f"s_lshl_b32 {s_t0}, {s_g}, 7\ns_add_u32 {s_t0}, {s_t0}, {HI}",
                     f"v_lshl_add_u32 v{aT}, v{aT}, 2, {s_t0}", f"v_xor_b32 v{aT+6}, 0x80, v{aT}",
                     f"v_and_b32 v{aT+7}, 15, v1", f"v_lshl_add_u32 v{aT+7}, v{aT+7}, 2, v{aHI}"]
        for m, (wi, xi) in enumerate(MM):
            bar = (m == 0 and ks == 3)
            if bar: lg.wait_all()
            lg.wait((t, wi)); lg.wait((t, xi))
            c = "0" if t == 0 else vr(aACC[m], 16)
            a(f"{MF} {vr(aACC[m],16)}, {vr(fr(t,wi),4)}, {vr(fr(t,xi),4)}, {c}")
            if m == 0 and t == 1 and OPT["split0"]: a(f"s_waitcnt vmcnt({yng})\ns_barrier")
            if bar:
                a("s_barrier")
                stamp(a, 3 + s, 1)
                if s == 3: stamp(a, 3)
                if s == 6: stamp(a, 4)
            if t == 27:
                n = r7_issue(3, -1 if m < 6 else 0)
                if m >= 3:
                    for _ in range(5 - n):
                        if dv: emit(a, dv.pop(0))
                continue
            n = 0
            for _ in range(3):
                if rds: rds.pop(0)(); n += 1
            if not rds:
                for _ in range(5 - n if m < 6 else 99):
                    if post: emit(a, post.pop(0))
    fill = shadow_ops()
    signalled = False
    for k, (acc, ra, rb, tags, _u) in enumerate(M7):
        if rb in aNM:
            while dv: emit(a, dv.pop(0))
        for tg in tags: lg.wait(tg)
        a(f"{MF} {vr(aACC[acc],16)}, {vr(ra,4)}, {vr(rb,4)}, {vr(aACC[acc],16)}")
        n = r7_issue(2, k + 1)
        src = dv if dv else (fill if k >= g1_end + 1 else [])
        budget = 5 - n
        while budget > 0 and src:
            op = src.pop(0); emit(a, op)
            budget -= 2 if (isinstance(op, str) and op.startswith(("v_exp", "v_rcp"))) else 1
    assert not R7f
    a(lds_signal(aHI, C_FRE)); lg.issue("SG")
    stamp(a, 5)
    if not att:
        def act(m, x):
            for op in silu_ops(aACC[m], aC1[x], aS[x], aT): a(op)
        def put(m, base, off):
            a(f"s_add_u32 {s_so}, {base}, {off}")
            for h in range(2): a(hstore(aACC[m] + 8*h, h))
        def flag(st):
            a("s_waitcnt vmcnt(0)")
            for op in flag_store(st, aT+12): a(op)
        T7 = [(2, 0, s_hst, "w1"), (3, 1, s_hs1, "w1"), (4, 0, s_hst, "w2"), (5, 1, s_hs1, "w2"), (0, 0, s_hst, "w0"), (1, 1, s_hs1, "w0"), (6, 0, s_hs6, "w3")]
        def fl(st, n):
            a(f"s_waitcnt vmcnt({n})")
            for op in flag_store(st, aT+12): a(op)
        FL = {0: {4: (1, 4), 6: (2, 5)}, 1: {3: (1, 2), 5: (2, 2)}}[OPT.get("fe", 0)]
        HOLD = OPT.get("hold", 0)
        for i, (m, x, base, pos) in enumerate(T7):
            if i == 0:
                for op in fill: emit(a, op)
            else: act(m, x)
            if not HOLD:
                if i in FL: fl(*FL[i])
                put(m, base, POS[pos])
            elif i == HOLD - 1:
                for (m2, x2, b2, p2) in T7[:HOLD]: put(m2, b2, POS[p2])
            elif i >= HOLD: put(m, base, POS[pos])
            if i == 1: stamp(a, 6)
            if i == 3: stamp(a, 7)
        stamp(a, 8)
        if OPT["quiet"]: a(lds_signal(aHI, C_ST))
        if HOLD:
            fl(1, 10); a("s_waitcnt vmcnt(7)"); a(flag_store(2, aT+12)[-1]); a("s_waitcnt vmcnt(2)"); a(flag_store(3, aT+12)[-1])
        else: flag(3)
        endpgm(a)
        return
    for op in fill: emit(a, op)
    a(lds_signal(aHI, C_KV))
    for x in range(2):
        q = aACC[x]
        for j in range(8): a(f"v_cvt_pk_bf16_f32 v{q+j}, v{q+2*j}, v{q+2*j+1}")
    stamp(a, 6)
    lds_spin(a, aHI, aRC, C_KV, P + "c1", sleep=False)
    stamp(a, 7)
    lg.q = []
    K = 144; V0 = 64
    def Vr(j): return V0 + 8*j if j < 6 else 208 + 8*(j-6)
    L = 8; Pp = 16; TT = 20; O = 224
    for x in range(2):
        kv = vKV[x]
        for j in range(8):
            for hh in range(2):
                a(f"ds_read_b128 {vr(K+8*j+4*hh,4)}, v{kv} offset:{(14-2*j)*KVS + 16*hh}"); lg.issue(("K", j))
                if len(lg.q) > 14: lg.wait(lg.q[1])
        q = aACC[x]
        a(f"v_mov_b32 v{L}, 0")
        for j in range(1, 8):
            a(f"v_cmp_gt_u32 vcc, {2*j}, v{vTOK[x]}\nv_cndmask_b32 v{L+j}, 0, v{vNEG}, vcc")
        for j in range(8):
            lg.wait(("K", j))
            for hh in range(2):
                a(f"ds_read_b128 {vr(Vr(j)+4*hh,4)}, v{kv} offset:{(14-2*j)*KVS + 128 + 16*hh}"); lg.issue(("V", j))
                if len(lg.q) > 14: lg.wait(lg.q[1])
            for i in range(8): a(f"v_dot2c_f32_bf16 v{L+j}, v{q+i}, v{K+8*j+i}")
        a(f"""
        v_max3_f32 v{TT}, v{L}, v{L+1}, v{L+2}
        v_max3_f32 v{TT+1}, v{L+3}, v{L+4}, v{L+5}
        v_max3_f32 v{TT}, v{TT}, v{L+6}, v{L+7}
        v_max_f32 v{TT}, v{TT}, v{TT+1}
        v_mul_f32 v{TT}, v{TT}, v{aC1[x]}
        """)
        for j in range(8): a(f"v_fma_f32 v{L+j}, v{L+j}, v{aC1[x]}, -v{TT}")
        for j in range(8): a(f"v_exp_f32 v{L+j}, v{L+j}")
        a(f"""
        v_add_f32 v{TT}, v{L}, v{L+1}
        v_add_f32 v{TT+1}, v{L+2}, v{L+3}
        v_add_f32 v{TT+2}, v{L+4}, v{L+5}
        v_add_f32 v{TT+3}, v{L+6}, v{L+7}
        v_add_f32 v{TT}, v{TT}, v{TT+1}
        v_add_f32 v{TT+2}, v{TT+2}, v{TT+3}
        v_add_f32 v{TT}, v{TT}, v{TT+2}
        v_rcp_f32 v{TT}, v{TT}
        """)
        for j in range(8): a(f"v_mul_f32 v{L+j}, v{L+j}, v{TT}")
        for j in range(4): a(f"v_cvt_pk_bf16_f32 v{Pp+j}, v{L+2*j}, v{L+2*j+1}")
        for j in range(16): a(f"v_mov_b32 v{O+j}, 0")
        for jp in range(4):
            lg.wait(("V", 2*jp+1))
            va, vb = Vr(2*jp), Vr(2*jp+1)
            for i in range(8):
                a(f"v_perm_b32 v{K+2*i}, v{vb+i}, v{va+i}, {s_selL}\nv_perm_b32 v{K+2*i+1}, v{vb+i}, v{va+i}, {s_selH}")
            for i in range(16): a(f"v_dot2c_f32_bf16 v{O+i}, v{K+i}, v{Pp+jp}")
        for j in range(8): a(f"v_cvt_pk_bf16_f32 v{q+8+j}, v{O+2*j}, v{O+2*j+1}")
        a(f"s_add_u32 {s_so}, {(s_hst, s_hs1)[x]}, {POS['att']}")
        for h in range(2): a(hstore(q+8+4*h, h))
        if x == 0: stamp(a, 8)
    a("s_waitcnt vmcnt(0)")
    for op in flag_store(0, aT+12): a(op)
    endpgm(a)

def waveB(a):
    T = vP
    vm = Cnt(a, "vmcnt", 63); lg = Cnt(a, "lgkmcnt", 15)
    HB, WB = 3, 8
    vHB, vWB, vA = 16, 64, 192
    bCR, bHO = 11, 12
    a("L_B:")
    a(f"s_setprio {OPT['prioB']}")
    bHI = 62
    MAP2 = f"""s_bfe_u32 {s_rb2}, s2, 0x20001
    s_lshl_b32 {s_rb2}, {s_rb2}, 3
    s_bfe_u32 s3, s2, 0x30003
    s_add_u32 {s_rb2}, {s_rb2}, s3
    s_and_b32 {s_cb}, s2, 1
    s_lshl_b32 {s_cb}, {s_cb}, 2
    s_lshr_b32 s3, s2, 6
    s_add_u32 {s_cb}, {s_cb}, s3"""
    a(f"""
    s_and_b32 {s_rb2}, s2, 7
    s_lshl_b32 {s_rb2}, {s_rb2}, 2
    s_bfe_u32 s3, s2, 0x20003
    s_add_u32 {s_rb2}, {s_rb2}, s3
    s_lshr_b32 {s_cb}, s2, 5
    {f"s_and_b32 s3, s3, 1" if OPT.get("mix") else ""}
    {f"s_lshl_b32 s3, s3, 2" if OPT.get("mix") else ""}
    {f"s_xor_b32 {s_cb}, {s_cb}, s3" if OPT.get("mix") else ""}
    {MAP2 if OPT.get("map2") else ""}
    s_add_u32 {s_lam}, {s_rb2}, {s_cb}
    s_and_b32 {s_lam}, {s_lam}, 3
    v_lshrrev_b32 v{T+6}, 2, v1
    v_xor_b32 v{T+6}, v{T+6}, v{T+1}
    v_and_b32 v{T+6}, 1, v{T+6}
    v_and_b32 v{T+5}, 3, v1
    v_lshlrev_b32 v{bFA}, 3, v{T+5}
    v_lshl_or_b32 v{bFA}, v{T+9}, 7, v{bFA}
    v_lshlrev_b32 v{T+5}, 4, v{T+5}
    v_lshl_or_b32 v{T+6}, v{T+6}, 6, v{T+5}
    s_lshl_b32 {s_t3}, {s_cb}, 7
    v_lshl_or_b32 v{bD2}, v{T}, 10, v{T+6}
    v_add_u32 v{bD2}, {s_t3}, v{bD2}
    s_mul_i32 {s_wq}, {s_g}, {448*1024}
    s_and_b32 {s_t3}, {s_rb2}, 1
    s_lshl_b32 {s_t3}, {s_t3}, 16
    s_add_u32 {s_wqp}, {s_wq}, {s_t3}
    s_sub_u32 {s_wqm}, {s_wq}, {s_t3}
    s_lshl_b32 {s_oq}, {s_g}, 17
    s_mul_i32 {s_ring}, {s_g}, 12288
    s_add_u32 {s_ring}, {s_ring}, {L_RING}
    s_bfe_u32 {s_t2}, {s_r}, 0x10002
    s_lshl_b32 {s_t2}, {s_t2}, 1
    s_and_b32 {s_t3}, {s_r}, 1
    s_add_u32 {s_t2}, {s_t2}, {s_t3}
    s_lshl_b32 {s_t3}, {s_t2}, 7
    s_add_u32 {s_t3}, {s_t3}, {s_gw}
    v_add_u32 v{bCR}, {s_t3}, v{T+13}
    s_lshl_b32 {s_t1}, {s_type}, 3
    s_add_u32 {s_t1}, {s_t1}, {s_c}
    s_lshl_b32 {s_t1}, {s_t1}, 13
    s_add_u32 {s_csb}, {s_t1}, {hex(WS_CS)}
    s_lshl_b32 {s_t0}, {s_t2}, 11
    s_bfe_u32 {s_t1}, {s_r}, 0x10001
    s_lshl_b32 {s_t1}, {s_t1}, 3
    s_add_u32 {s_t0}, {s_t0}, {s_t1}
    s_lshr_b32 {s_t1}, {s_r}, 3
    s_lshl_b32 {s_t1}, {s_t1}, 9
    s_add_u32 {s_t0}, {s_t0}, {s_t1}
    s_add_u32 {s_csp}, {s_t0}, {s_csb}
    s_lshl_b32 {s_t0}, {s_g}, 11
    s_add_u32 {s_csb}, {s_csb}, {s_t0}
    s_lshl_b32 {s_row}, {s_row}, 4
    s_add_u32 {s_row}, {s_row}, {hex(WS_STATS)}
    v_and_b32 v{bT+12}, 31, v1
    v_lshlrev_b32 v{bT+13}, 5, v{bT+12}
    v_add_u32 v{bT+13}, {HI}, v{bT+13}
    v_lshl_or_b32 v{bT+14}, v{T+10}, 2, v{bT+13}
    s_lshl_b32 {s_t0}, {s_g}, 3
    v_add_u32 v{bT+14}, {s_t0}, v{bT+14}
    s_lshl_b32 {s_t0}, {s_g}, 11
    s_add_u32 {s_t0}, {s_t0}, {HI}
    v_add_u32 v{bT+15}, {s_t0}, v{vLN16}
    s_lshl_b32 {s_t0}, {s_r}, 11
    s_lshl_b32 {s_t1}, {s_g}, 9
    s_add_u32 {s_t1}, {s_t1}, {s_t0}
    s_max_u32 {s_t0}, {s_t0}, 256
    s_sub_u32 {s_t0}, {s_t0}, 256
    s_cmp_eq_u32 {s_type}, 0
    s_cselect_b32 {s_t0}, {s_t0}, {s_t1}
    v_and_b32 v{bT+8}, 15, v1
    v_lshl_add_u32 v{bT+9}, v{bT+8}, 4, {s_t0}
    v_lshl_add_u32 v{bT+7}, v{bT+12}, 4, {s_t1}
    v_cmp_gt_u32 vcc, 32, v1
    s_lshl_b32 {s_t0}, {s_g}, 7
    s_add_u32 {s_t0}, {s_t0}, {HI}
    v_cndmask_b32 v{bT+9}, v{bT+9}, v{bT+7}, vcc
    v_lshl_add_u32 v{bT+10}, v{bT+12}, 2, {s_t0}
    v_lshlrev_b32 v{bT+8}, 2, v{bT+8}
    v_add_u32 v{bT+8}, {HI+512}, v{bT+8}
    v_cndmask_b32 v{bT+10}, v{bT+8}, v{bT+10}, vcc
    v_lshlrev_b32 v{bT+12}, 4, v{bT+12}
    v_lshl_or_b32 v{bT+12}, v{T+10}, 10, v{bT+12}
    v_lshlrev_b32 v{bT+13}, 5, v1
    v_add_u32 v{bT+13}, {HI}, v{bT+13}
    v_mov_b32 v{bT+4}, 0
    v_mov_b32 v{bT+5}, 0
    v_mov_b32 v{bHO}, v{T+14}
    v_lshl_add_u32 v{T+3}, v{T+10}, 4, v{T+9}
    v_lshl_add_u32 v{T+2}, v{T+3}, 7, v{vINU}
    v_lshrrev_b32 v{T+3}, 1, v{T+9}
    v_xor_b32 v{T+3}, {s_th}, v{T+3}
    v_lshl_add_u32 v{T+2}, v{T+3}, 6, v{T+2}
    v_add_u32 v{bR[0]}, {s_ring}, v{T+2}
    v_xor_b32 v{bR[1]}, 64, v{bR[0]}
    s_lshl_b32 {s_t2}, {s_nh}, 10
    v_add_u32 v{bH[0]}, {s_t2}, v{vLN16}
    v_xor_b32 v{bH[1]}, 0x400, v{bH[0]}
    s_mul_i32 {s_hld}, {s_rb2}, {WS_RB2}
    s_mul_i32 {s_t2}, {s_g}, {36*2048}
    s_add_u32 {s_hld}, {s_hld}, {s_t2}
    v_and_b32 v{T+3}, 31, v1
    v_lshlrev_b32 v{T+3}, 10, v{T+3}
    v_lshl_or_b32 v{T+3}, v{T+10}, 5, v{T+3}
    s_lshl_b32 {s_t2}, {s_rb2}, 16
    s_lshl_b32 {s_t1}, {s_nh}, 15
    s_add_u32 {s_t2}, {s_t2}, {s_t1}
    s_lshl_b32 {s_t1}, {s_cb}, 7
    s_add_u32 {s_t2}, {s_t2}, {s_t1}
    s_lshl_b32 {s_t0}, {s_th}, 6
    s_add_u32 {s_t2}, {s_t2}, {s_t0}
    v_add_u32 v{bO}, {s_t2}, v{T+3}
    s_lshl_b32 {s_fst}, {s_rb2}, 2
    s_add_u32 {s_fst}, {s_fst}, {s_g}
    s_lshl_b32 {s_fst}, {s_fst}, 9
    s_add_u32 {s_fst}, {s_fst}, {hex(WS_FLAGS)}
    v_mov_b32 v{bHI}, {HI}
    v_mov_b32 v{bHI+1}, 1
    v_lshlrev_b32 v{bT}, 2, v1
    v_add_u32 v{bT+11}, {HI}, v{bT}
    v_mov_b32 v{bT+2}, 0
    ds_write_b32 v{bT+11}, v{bT+2} offset:{MISCO+C_RDY}
    """)
    pieces = []
    for u in range(1, 8): pieces += [(u, f) for f in unit_pieces(a, vm, u)]
    def issue(n, s):
        for _ in range(n):
            if pieces and pieces[0][0] <= s + 2: pieces.pop(0)[1]()
    if not OPT["split0"]: issue(OPT.get("q0", 6), 0)
    a("s_waitcnt lgkmcnt(0)\ns_barrier")
    stamp(a, 2)
    if OPT["split0"]:
        issue(4, 0)
        a("s_barrier")
    def nonce_load():
        a(f"v_mov_b32 v{bT+8}, 0\nbuffer_load_dwordx2 {vr(bNM,2)}, v{bT+8}, {sDBG}, 0 offen sc1")
    def cs_read(s):
        for u in range(2):
            for b in range(2):
                a(f"ds_read_b64_tr_b16 {vr(bCF+4*u+2*b,2)}, v{bCR} offset:{s*SLOT + u*64 + 4*b*RS}"); lg.issue("C")
    def cs_ops(s):
        ops = [lambda: lg.wait("C")]
        for i in range(8):
            acc = bT + 4 + i // 4
            ops.append(f"v_lshlrev_b32 v{bT}, 16, v{bCF+i}\nv_and_b32 v{bT+1}, 0xffff0000, v{bCF+i}\n"
                       f"v_add_f32 v{bT}, v{bT}, v{bT+1}\nv_add_f32 v{acc}, v{acc}, v{bT}")
        return ops
    def cs_write():
        for u in range(2):
            a(f"ds_write_b32 v{bT+14}, v{bT+4+u} offset:{CSRO + u*1024}"); lg.issue("CW")
    def pub_stats_pre():
        a(f"ds_read_b32 v{bST}, v{bT+11} offset:{MISCO}"); lg.issue("P")
    def nonce_head():
        a(f"""
        s_cmp_eq_u32 {s_g}, 0
        s_cbranch_scc0 B_nnh
        s_mov_b32 {s_spin}, 0
        B_nchk:
        v_readfirstlane_b32 {s_n1}, v{bNM+1}
        s_cmp_lg_u32 {s_n1}, 0
        s_cbranch_scc1 B_nok
        s_add_u32 {s_spin}, {s_spin}, 1
        s_cmp_ge_u32 {s_spin}, {SPIN_MAX}
        s_cbranch_scc1 B_nok
        s_sleep 2
        """)
        nonce_load()
        a(f"s_waitcnt vmcnt(0)\ns_branch B_nchk\nB_nok:")
        if OPT["diag"]: a(f"s_mov_b32 s101, {s_spin}")
        a(f"""
        ds_write_b64 v{bHI}, {vr(bNM,2)} offset:{MISCO+64}
        v_mov_b32 v{bST+1}, v{bNM}
        v_mov_b32 v{bST+2}, v{bNM+1}
        v_mov_b32 v{bST+3}, 0
        B_nnh:
        """)
        lg.issue("P0")
    def pub_stats():
        lg.wait("P")
        a(f"""
        s_cmp_eq_u32 {s_g}, 0
        s_cbranch_scc0 B_npub
        s_mov_b64 exec, 0xff
        buffer_store_dwordx4 {vr(bST,4)}, v{vLN16}, {sWS}, {s_row} offen sc1
        s_mov_b64 exec, -1
        B_npub:
        """)
    def pub_cs_ops():
        def r():
            a(f"""
            ds_read_b128 {vr(bCF,4)}, v{bT+13} offset:{CSRO}
            ds_read_b128 {vr(bCF+4,4)}, v{bT+13} offset:{CSRO+16}
            ds_read_b64 {vr(bNM,2)}, v{bHI} offset:{MISCO+64}
            """)
            for _ in range(3): lg.issue("P")
        return [r, "s_nop 0", lambda: lg.wait("P"),
            f"v_add_f32 v{bCF}, v{bCF}, v{bCF+1}\nv_add_f32 v{bCF+2}, v{bCF+2}, v{bCF+3}\nv_add_f32 v{bCF+4}, v{bCF+4}, v{bCF+5}\nv_add_f32 v{bCF+6}, v{bCF+6}, v{bCF+7}",
            f"v_add_f32 v{bCF}, v{bCF}, v{bCF+2}\nv_add_f32 v{bCF+4}, v{bCF+4}, v{bCF+6}\nv_readfirstlane_b32 {s_n0}, v{bNM}\nv_add_f32 v{bCF}, v{bCF}, v{bCF+4}",
            f"v_cvt_pk_bf16_f32 v{bCF+2}, v{bCF}, v{bCF}\nv_and_b32 v{bCF+2}, 0xffff0000, v{bCF+2}\nv_readfirstlane_b32 {s_n1}, v{bNM+1}\nv_sub_f32 v{bCF+2}, v{bCF}, v{bCF+2}",
            f"""v_cvt_pk_bf16_f32 v{bCF}, v{bCF}, v{bCF+2}
            v_mov_b32 v{bCF+1}, v{bNM}
            s_cmp_eq_u32 {s_g}, 1
            s_cbranch_scc0 B_npc
            buffer_store_dwordx2 {vr(bCF,2)}, v{bT+12}, {sWS}, {s_csp} offen sc1
            B_npc:"""]
    def fetch():
        a(f"""
        s_mov_b32 {s_t0}, {hex(WS_STATS)}
        buffer_load_dwordx4 {vr(bST,4)}, v{bT+9}, {sWS}, {s_t0} offen sc1
        buffer_load_dwordx4 {vr(bCF,4)}, v{vLN16}, {sWS}, {s_csb} offen sc1
        buffer_load_dwordx4 {vr(bCF+4,4)}, v{vLN16}, {sWS}, {s_csb} offen offset:1024 sc1
        """)
        for _ in range(3): vm.issue("ST")
    def handover():
        vm.wait("ST")
        a(f"""
        s_mov_b32 {s_spin}, 0
        B_schk:
        v_cmp_ne_u32 vcc, {s_n0}, v{bST+1}
        """)
        for reg, n in [(bST+2, s_n1), (bCF+1, s_n0), (bCF+3, s_n0), (bCF+5, s_n0), (bCF+7, s_n0)]:
            a(f"v_cmp_ne_u32 s[4:5], {n}, v{reg}\ns_or_b64 vcc, vcc, s[4:5]")
        a(f"""
        s_cbranch_scc0 B_sok
        s_add_u32 {s_spin}, {s_spin}, 1
        s_cmp_ge_u32 {s_spin}, {SPIN_MAX}
        s_cbranch_scc1 B_sok
        s_sleep 2
        """)
        sv = list(vm.q); fetch(); vm.q = sv
        a(f"s_waitcnt vmcnt(0)\ns_branch B_schk\nB_sok:")
        if OPT["diag"]: a(f"s_lshl_b32 s3, {s_spin}, 8\ns_and_b32 s101, s101, 0xff\ns_or_b32 s101, s101, s3")
        a(f"""
        ds_write_b32 v{bT+10}, v{bST} offset:{MISCO+128}
        v_mov_b32 v{bCF+1}, 0
        v_mov_b32 v{bCF+3}, 0
        v_mov_b32 v{bCF+5}, 0
        v_mov_b32 v{bCF+7}, 0
        ds_write_b128 v{bT+15}, {vr(bCF,4)} offset:{CSO}
        s_cmp_eq_u32 {s_g}, 3
        s_cbranch_scc1 B_nu7
        ds_write_b128 v{bT+15}, {vr(bCF+4,4)} offset:{CSO+1024}
        B_nu7:
        """)
        lg.issue("SW")
    NRAW = OPT["nraw"]
    slot_of = {}; free = [RHI, RHI + 4096, RHI + 8192]
    def rslot(b):
        if b not in slot_of: slot_of[b] = free.pop(0)
        return slot_of[b]
    def woff(b, dst):
        if OPT.get("fakew"):
            a(f"s_add_u32 {dst}, {s_oq}, {(b%2)*32768}"); return None
        if not OPT.get("perm"):
            sr, base, row0 = blk(b)
            a(f"s_add_u32 {dst}, {base}, {row0*1024}"); return sr
        if 12 <= b < 14:
            sr, base, row0 = blk(12)
            a(f"s_xor_b32 s3, {s_lam}, {b-12}\ns_and_b32 s3, s3, 1\ns_mul_i32 s3, s3, {224*1024}\ns_add_u32 s3, s3, {row0*1024}\ns_add_u32 {dst}, {base}, s3"); return sr
        b0 = (b & ~3) if b < 12 else 14
        k = b - b0
        sr, base, row0 = blk(b0)
        cs_ = 224 if b < 12 else 64
        a(f"""
        s_xor_b32 s3, {s_lam}, {k}
        s_lshr_b32 {dst}, s3, 1
        s_mul_i32 {dst}, {dst}, {cs_*1024}
        s_and_b32 s3, s3, 1
        s_lshl_b32 s3, s3, 15
        s_add_u32 {dst}, {dst}, s3
        s_add_u32 {dst}, {dst}, {base}
        s_add_u32 {dst}, {dst}, {row0*1024}
        """); return sr
    def Dp(b):
        if b >= 18: return []
        ps = []
        sr = blk(b)[0]
        for i in range(4):
            def f(i=i):
                if i == 0: woff(b, s_d0)
                else: a(f"s_add_u32 {s_d0}, {s_d0}, 8192")
                dma(a, vm, ("D", b), bD2, sr, s_d0, s_ring, rslot(b) + i*1024)
            ps.append(f)
        return ps
    def Trp(b):
        if b >= 18: return []
        ps = []
        for f in range(2):
            for nu in range(2):
                def g(f=f, nu=nu):
                    vm.wait(("D", b))
                    for b2 in range(2):
                        d = vWB + (b % WB)*16 + (f*2 + nu)*4 + 2*b2
                        a(f"ds_read_b64_tr_b16 {vr(d,2)}, v{bR[nu]} offset:{rslot(b) + (8*f+4*b2)*128}"); lg.issue(("T", b))
                ps.append(g)
        return ps
    def TD(b):
        return Trp(b) + [lambda: lg.wait(("T", b))] + Dp(b + 3)
    def raw(b):
        sr, base, row0 = blk(b)
        for i in range(4):
            a(f"s_add_u32 {s_t0}, {base}, {row0*1024 + i*8192}")
            a(f"buffer_load_dwordx4 {vr(vWB+16*b+4*i,4)}, v{bD2}, {sr}, {s_t0} offen"); vm.issue(("D", b))
    def convert(b):
        vm.wait(("D", b))
        for i in range(4): a(f"ds_write_b128 v{bCR}, {vr(vWB+16*b+4*i,4)} offset:{rslot(b) + i*1024}")
        for f in Trp(b): f()
        lg.wait(("T", b))
    def nonce0():
        a(f"s_cmp_eq_u32 {s_g}, 0\ns_cbranch_scc0 B_t0")
        nonce_load()
        a("B_t0:")
    def touch():
        a(f"""
        v_lshlrev_b32 v{bT+8}, 7, v1
        s_cmp_eq_u32 {s_g}, 1
        s_cbranch_scc0 B_t2
        s_mul_i32 {s_t1}, s2, {56*128}
        s_mov_b32 exec_hi, 0xffffff
        buffer_load_dword v{bT+6}, v{bT+8}, {sW2}, {s_t1} offen
        s_branch B_t3
        B_t2:
        s_cmp_eq_u32 {s_g}, 2
        s_cbranch_scc0 B_t3
        s_lshl_b32 {s_t0}, s2, 11
        s_mov_b64 exec, 0xffff
        buffer_load_dword v{bT+6}, v{bT+8}, {sWO}, {s_t0} offen
        B_t3:
        s_mov_b64 exec, -1
        """)
    nr = 0
    QUOTA = {0: [14, 15, 15, 12, 12, 12], 1: [14, 15, 12, 13, 13, 13], 2: [12, 14, 13, 14, 13, 14], 3: [16, 16, 12, 12, 12, 12]}[OPT.get('qt', 0)]
    for s in range(7):
        ex = []
        if s in {0: (), 1: (2, 6), 2: (6,)}[int(OPT.get("vw", 0))]: vm.wait_all()
        if s == 2: cs_write(); nonce_head()
        if s == 6: handover()
        if s < 6:
            issue(1, s)
            if s < 2: cs_read(s); ex = cs_ops(s)
            if s == 3: pub_stats_pre(); ex = pub_cs_ops() + [pub_stats]
            for k in range(1, QUOTA[s]):
                issue(1, s)
                if (k >= 2 or s == 3) and ex: emit(a, ex.pop(0))
            assert not ex and (not pieces or pieces[0][0] > s + 1)
        else:
            assert not pieces
            d6 = Dp(0) + Dp(1) + Dp(2)
            for f in d6[:OPT.get("n6", 12)]: f()
        if s == 0: nonce0()
        if s == OPT['w2touch']: touch()
        if s == 4: fetch()
        if s < 6 and s >= 6 - NRAW: raw(nr); nr += 1
        vm.wait(("U", s + 1))
        if lg.q: lg.wait_all()
        a("s_barrier")
        stamp(a, 3 + s, 1)
        if s == 3: stamp(a, 3)
        if s == 6: stamp(a, 4)
    for f in d6[OPT.get("n6", 12):]: f()
    if NRAW:
        a(f"v_add_u32 v{bCR}, {s_ring}, v{vLN16}")
        for b in range(NRAW): convert(b)
        for f in Dp(NRAW + 2): f()
    GR = {0: 0x00f0, 4: 0x0f00, 8: 0xf000, 14: 0x000f}
    s_ok, s_pend = s_t2, s_t3
    LD = (f"v_mov_b32 v{bF}, 0\nv_mov_b32 v{bF+1}, 0\ns_mov_b64 exec, 0xffff\n"
          f"buffer_atomic_or_x2 {vr(bF,2)}, v{bFA}, {sWS}, {s_fst} offen sc0 sc1\ns_mov_b64 exec, -1")
    issued = [0]; _iss = vm.issue
    def cnt_issue(tag): issued[0] += 1; _iss(tag)
    vm.issue = cnt_issue
    mark = {}
    def do_poll(b):
        if b not in GR: return
        if b == 0: a(f"s_mov_b32 {s_ok}, 0")
        if b == 0 and OPT.get("pl"):
            a(f"""
            s_cmp_eq_u32 {s_type}, 0
            s_cbranch_scc1 P2a0
            buffer_load_dwordx2 {vr(bF,2)}, v{bFA}, {sWS}, {s_fst} offen sc1
            s_branch P2p0
            P2a0:
            """)
        a(f"""
        s_andn2_b32 s3, {hex(GR[b])}, {s_ok}
        s_cbranch_scc0 P2p{b}
        {LD}
        P2p{b}:
        """)
        mark[b] = issued[0]
    def ensure(b):
        a(f"""
        s_andn2_b32 s3, {hex(GR[b])}, {s_ok}
        s_cbranch_scc0 P2k{b}
        s_waitcnt vmcnt({issued[0] - mark[b]})
        s_mov_b32 {s_spin}, 0
        P2c{b}:
        v_cmp_eq_u32 vcc, {s_n0}, v{bF}
        v_cmp_eq_u32 s[4:5], {s_n1}, v{bF+1}
        s_and_b32 {s_ok}, vcc_lo, s4
        s_andn2_b32 s3, {hex(GR[b])}, {s_ok}
        s_cbranch_scc0 P2k{b}
        s_add_u32 {s_spin}, {s_spin}, 1
        """)
        if OPT["diag"]:
            sh = 16 if b == 0 else (20 if b < 8 else (24 if b < 14 else 28))
            a(f"s_bitset1_b32 s101, {sh}")
        a(f"""
        s_cmp_ge_u32 {s_spin}, {SPIN_MAX}
        s_cbranch_scc1 P2k{b}
        s_sleep 1
        s_nop 7
        {LD}
        s_waitcnt vmcnt(0)
        s_branch P2c{b}
        P2k{b}:
        """)
    def Hp(b):
        if b >= 18: return []
        ps = []
        for f in range(2):
            for tg in range(2):
                def g(f=f, tg=tg):
                    if f == 0 and tg == 0:
                        if b in GR: ensure(b)
                        if OPT.get("fakeh"): a(f"s_add_u32 {s_t1}, {s_hld}, {(b%3)*4096}")
                        elif OPT.get("perm"):
                            b0 = (b & ~3) if b < 12 else (12 if b < 14 else 14)
                            a(f"s_xor_b32 s3, {s_lam}, {b-b0}\n" + (f"s_and_b32 s3, s3, 1\n" if b0 == 12 else "") +
                              f"s_lshl_b32 s3, s3, 12\ns_add_u32 s3, s3, {b0*4096}\ns_add_u32 {s_t1}, {s_hld}, s3")
                        else: a(f"s_add_u32 {s_t1}, {s_hld}, {b*4096}")
                    d = vHB + (b % HB)*16 + (f*2 + tg)*4
                    a(f"buffer_load_dwordx4 {vr(d,4)}, v{bH[tg]}, {sWS}, {s_t1} offen offset:{f*2048} sc1"); vm.issue(("H", b, f, tg))
                ps.append(g)
        return ps
    def Mp(b):
        ps = []
        for f in range(2):
            for nu in range(2):
                for tg in range(2):
                    def g(f=f, nu=nu, tg=tg):
                        lg.wait(("T", b)); vm.wait(("H", b, f, tg))
                        acc = vA + (nu*2 + tg)*16
                        c = "0" if (b == 0 and f == 0 and (nu or tg)) else vr(acc, 16)
                        if not (OPT.get("nom2") and (nu or tg)): a(f"{MF} {vr(acc,16)}, {vr(vWB+(b%WB)*16+(f*2+nu)*4,4)}, {vr(vHB+(b%HB)*16+(f*2+tg)*4,4)}, {c}")
                    ps.append(g)
        return ps
    st = dict(d=3, t=0)
    def Dn():
        b = st["d"]; st["d"] += 1; rslot(b); return Dp(b)
    def Tn():
        b = st["t"]; st["t"] += 1; assert b < st["d"]; return b, Trp(b)
    def release(b):
        lg.wait(("T", b)); free.append(slot_of[b])
    def round_():
        b, ts = Tn()
        for f in ts: f()
        release(b)
        for f in Dn(): f()
    for _ in range(OPT.get("npre", 4)): round_()
    stamp(a, 5)
    lds_spin(a, bHI, bT, C_FRE, "B_f9"); lg.q = []
    free.extend([0, 4096, 8192])
    for _ in range(OPT.get("nlow", 3)):
        for f in Dn(): f()
    xr = vA + 16
    a(f"buffer_load_dwordx4 {vr(xr,4)}, v{bO}, {sX}, 0 offen\nbuffer_load_dwordx4 {vr(xr+4,4)}, v{bO}, {sX}, 0 offen offset:16")
    vm.issue("X"); vm.issue("X")
    stamp(a, 6)
    done = []
    while st["t"] < min(8, st["d"]):
        b, ts = Tn(); done.append(b)
        for f in ts: f()
    vm.wait("X")
    for i in range(8):
        a(f"v_lshlrev_b32 v{vA+2*i}, 16, v{xr+i}\nv_and_b32 v{vA+2*i+1}, 0xffff0000, v{xr+i}")
    for b in done: release(b)
    PO = OPT.get("po", 0)
    if OPT["quiet"]:
        a(f"s_cmp_eq_u32 {s_type}, 0\ns_cbranch_scc1 B_qk")
        lds_spin(a, bHI, bT, C_ST, "B_q")
    stamp(a, 7)
    for k in range(OPT.get("npost", 2)):
        if k == PO: do_poll(0)
        for f in Dn(): f()
    if PO >= OPT.get("npost", 2): do_poll(0)
    stamp(a, 10)
    for f in Hp(0) + Hp(1) + Hp(2): f()
    stamp(a, 11)
    carry = []; dit = {b: -9 for b in range(st["d"])}; pend = None
    for b in range(18):
        ms = Mp(b)
        assert st["t"] > b
        rel = pend; pend = None
        ds = []
        if st["d"] < 18 and (free or rel is not None):
            ds = "go"
        ts = []
        if st["t"] < 18 and st["t"] <= b + 7 and st["t"] < st["d"] and dit[st["t"]] <= b - OPT.get("dlag", 3):
            tb, ts = Tn(); pend = tb
        do_poll(b + 4)
        hs = Hp(b + 3)
        for i in range(8):
            ms[i]()
            if i < 2 and carry: carry.pop(0)()
            if i == 0:
                if rel is not None: release(rel)
                if ds: dit[st["d"]] = b; ds = Dn()
            if i < 4:
                if ds: ds[i]()
            else:
                if ts: ts[i-4]()
                if i < 6 and hs: hs[i-4]()
        carry = hs[2:]
        if b == 7: stamp(a, 12)
    assert st["t"] == 18 and st["d"] == 18
    stamp(a, 13); stamp(a, 3, 6)
    R = 2
    a(f"v_add_u32 v{R}, {s_ring}, v{vLN16}")
    for sg in range(1, 4):
        a(f"""
        s_xor_b32 {s_t0}, {s_g}, {sg}
        s_mul_i32 {s_t0}, {s_t0}, 12288
        s_add_u32 {s_t0}, {s_t0}, {L_RING}
        v_add_u32 v{R+sg}, {s_t0}, v{vLN16}
        """)
    for sg in range(1, 4):
        for j in range(4):
            a(f"ds_write_b128 v{R}, {vr(vA+16*sg+4*j,4)} offset:{(sg-1)*4096 + j*1024}")
    stamp(a, 4, 6)
    a("s_waitcnt lgkmcnt(0)")
    stamp(a, 5, 6)
    a("s_barrier")
    stamp(a, 6, 6)
    lg.q = []
    for sg in range(1, 4):
        for j in range(4):
            a(f"ds_read_b128 {vr(vA+16*sg+4*j,4)}, v{R+sg} offset:{(sg-1)*4096 + j*1024}"); lg.issue(("F", sg))
    U = vHB
    OF = {0: '', 1: 'sc1', 2: 'nt', 3: 'sc0 sc1'}[OPT.get('of', 0)]
    for sg in range(1, 4):
        lg.wait(("F", sg))
        if OPT.get("pa"):
            for j in range(0, 16, 2): a(f"v_pk_add_f32 {vr(vA+j,2)}, {vr(vA+j,2)}, {vr(vA+16*sg+j,2)}")
        else:
            for j in range(16): a(f"v_add_f32 v{vA+j}, v{vA+j}, v{vA+16*sg+j}")
    for j in range(8): a(f"v_cvt_pk_bf16_f32 v{U+j}, v{vA+2*j}, v{vA+2*j+1}")
    stamp(a, 7, 6)
    a(f"buffer_store_dwordx4 {vr(U,4)}, v{bO}, {sOUT}, 0 offen {OF}\nbuffer_store_dwordx4 {vr(U+4,4)}, v{bO}, {sOUT}, 0 offen offset:16 {OF}")
    stamp(a, 8, 6)
    if OPT.get("grp") == 6: a("s_waitcnt vmcnt(0)")
    stamp(a, 9, 6)
    endpgm(a)

def build():
    a = Asm()
    prologue(a)
    waveA_setup(a)
    waveA(a, False, "M_")
    a("L_A_att:")
    waveA(a, True, "T_")
    waveB(a)
    a("L_done:\ns_endpgm\nL_codeend:")
    body = "\n".join(hazard.fix(a.lines)) + "\n"
    return single(body, 256, 512, 163840)

if __name__ == "__main__":
    out = sys.argv[1]
    for arg in sys.argv[2:]:
        if "=" in arg:
            k, v = arg.split("="); OPT[k] = int(v)
        else: OPT[arg] = True
    open(out, "w").write(build())
```

```python
import sys, struct
from asmlib import *
import hazard

def f32(x): return "0x%08x" % struct.unpack("<I", struct.pack("<f", x))[0]
LOG2E = 1.4426950408889634
OPT = dict(diag=False, prioA=0, prioB=0, pm=3, w2touch=3, share=0, xc=0, nraw=0, pk=1, seq=6, split0=1, f5=1, quiet=1, ep=1, npost=4, po=2, ah=1)

class Cnt:
    def __init__(self, a, name, mx): self.a, self.name, self.mx, self.q = a, name, mx, []
    def issue(self, tag): self.q.append(tag)
    def wait(self, tag):
        if tag not in self.q: return
        idx = max(i for i, t in enumerate(self.q) if t == tag)
        n = min(len(self.q) - idx - 1, self.mx)
        self.a(f"s_waitcnt {self.name}({n})")
        self.q = self.q[len(self.q) - n:] if n else []
    def wait_all(self):
        self.a(f"s_waitcnt {self.name}(0)"); self.q = []

WS_RB2 = 144 * 2048
WS_STATS = 0x900000
WS_FLAGS = 0x910000
WS_CS = 0x960000
WS_SIZE = 0x1000000
WS_DIAG = 0xA00000
SLOT = 45056
WOFF = 16384
RS = 448
L_KV = 0
KVS = 272
L_RING = 40960
RHI = 49152
L_CSR = 135168
L_HALO = 139264
L_CS = 155648
L_MISC = 162816
C_RDY, C_FRE, C_KV, C_HO, C_ST = 768, 800, 832, 836, 840
HI = 0x20000
CSO = L_CS - HI
CSRO = L_CSR - HI
MISCO = L_MISC - HI
sX, sW, sWS, sW2, sWO, sOUT, sDBG = "s[8:11]", "s[12:15]", "s[16:19]", "s[20:23]", "s[24:27]", "s[28:31]", "s[32:35]"
s_d0, s_d1, s_pfl, s_spin = "s0", "s1", "s6", "s7"
s_w, s_g, s_hs1, s_r, s_c, s_type = "s54", "s55", "s56", "s57", "s58", "s59"
s_stride, s_hs6, s_seq, s_str2, s_str64 = "s60", "s60", "s61", "s62", "s63"
s_wex = "s[64:65]"
s_g4k, s_t0, s_t1, s_t2, s_t3 = "s66", "s67", "s68", "s69", "s70"
s_hst, s_gw, s_th, s_nh = "s71", "s72", "s73", "s74"
s_selL, s_selH = "s75", "s76"
s_cls, s_fst = "s75", "s76"
s_rb2, s_cb, s_hld, s_wq, s_oq, s_ring = "s77", "s78", "s79", "s80", "s81", "s82"
s_row, s_wqp, s_wqm, s_cl, s_so = "s83", "s84", "s85", "s86", "s87"
s_csb, s_csp = "s58", "s86"
s_n0, s_n1 = "s88", "s89"
STAMP_REGS = [90, 92, 94, 96, 98, 36, 38, 40, 42, 44, 46, 48, 50, 52]
s_lam = "s75"
SPB = 40
SPIN_MAX = 20000

def vr(b, n): return f"v[{b}:{b+n-1}]"
def stamp(a, i, grp=None):
    if OPT["diag"] and (i < 3 or OPT.get("grp") == grp): a(f"{'s_memrealtime' if OPT.get('rt') else 's_memtime'} s[{STAMP_REGS[i]}:{STAMP_REGS[i]+1}]")
def endpgm(a):
    if OPT["diag"]:
        a(f"""
        {'s_memrealtime' if OPT.get('rt') else 's_memtime'} s[4:5]
        s_waitcnt lgkmcnt(0)
        s_mov_b32 s3, s4
        s_memrealtime s[4:5]
        s_lshl_b32 {s_t0}, s2, 3
        s_add_u32 {s_t0}, {s_t0}, {s_w}
        s_lshl_b32 {s_t0}, {s_t0}, 7
        s_add_u32 {s_t0}, {s_t0}, {hex(WS_DIAG)}
        v_mov_b32 v2, 0
        s_mov_b64 exec, 1
        s_waitcnt lgkmcnt(0)
        """)
        for i, r in enumerate(STAMP_REGS + [3, 100, 4, 101]):
            a(f"v_mov_b32 v3, s{r}\nbuffer_store_dword v3, v2, {sWS}, {s_t0} offen offset:{4*i}")
    a("s_endpgm")
def srd(a, d, lo, hi, size):
    a(f"s_mov_b32 s{d}, s{lo}\ns_mov_b32 s{d+1}, s{hi}\ns_mov_b32 s{d+2}, {hex(size)}\ns_mov_b32 s{d+3}, 0x20000")
def emit(a, x):
    if callable(x): x()
    else: a(x)
MF = "v_mfma_f32_32x32x16_bf16"

vXD0, vXD1, vWD = 3, 4, 5
vLN16 = 6
vINU = 7
vP = 240
vSR = 224
aXR = [[8, 9, 10, 11], [12, 13, 14, 15]]; aWR = [16, 17, 18, 19]; aHR = [20, 21, 22, 23]
aCR = [24, 25, 26, 27]
aHO = 28
aSW = 5
aHI = 2; aRC = 4
aS = [29, 30]; aRS = [31, 32, 33]; aC1 = [34, 35]
aNM = [36, 40, 44]
aT = 48
aFR = 64
aACC = [112 + 16*i for i in range(7)]
bD2 = 2
bFA = 8
bH = [9, 13]; bF = 10; bR = [14, 15]; bO = 0
bT = 16
bST = 32
bNM = 40
bCF = 44

def dma(a, vm, tag, voff, srd_, soff, m0base, m0imm, ex=False):
    a(f"s_add_u32 m0, {m0base}, {m0imm}")
    if ex: a(f"s_mov_b64 exec, {s_wex}")
    a(f"buffer_load_dwordx4 v{voff}, {srd_}, {soff} offen lds")
    if ex: a("s_mov_b64 exec, -1")
    if vm is not None: vm.issue(tag)

def unit_pieces(a, vm, u):
    if u >= 8: return []
    def mk(pre, voff, srd_, soff, m0b, m0i, ex):
        def f():
            if pre: a(pre)
            dma(a, vm, ("U", u), voff, srd_, soff, m0b, m0i, ex)
        return f
    sl = (u % 3) * SLOT
    pre = f"s_bfe_u32 {s_d1}, {s_seq}, {hex(0x40000 + 4*u)}\ns_lshl_b32 {s_d0}, {s_d1}, 7\ns_mul_i32 {s_d1}, {s_d1}, {s_str64}"
    ps = []
    for i in range(4):
        p = pre if i == 0 else (f"s_add_u32 {s_d0}, {s_d0}, 0x4000" if i == 2 else None)
        ps.append(mk(p, (vXD0, vXD1)[i & 1], sX, s_d0, s_g4k, sl + i*1024, False))
        for j in (2*i, 2*i+1):
            p = None if j == 0 else f"s_add_u32 {s_d1}, {s_d1}, {s_str2}"
            ps.append(mk(p, vWD, sW, s_d1, s_gw, sl + WOFF + j*2*RS, True))
    return ps

def wave_reduce(a, v, sdst):
    for sh in (1, 2, 4, 8):
        a(f"v_add_f32_dpp {v}, {v}, {v} row_shr:{sh} row_mask:0xf bank_mask:0xf bound_ctrl:0")
    a(f"v_add_f32_dpp {v}, {v}, {v} row_bcast:15 row_mask:0xa bank_mask:0xf")
    a(f"v_add_f32_dpp {v}, {v}, {v} row_bcast:31 row_mask:0xc bank_mask:0xf")
    a(f"v_readlane_b32 {sdst}, {v}, 63")

def stats_ops(b, idx_off, st):
    t = Asm(); u = b + 4
    def red(v):
        for sh in (1, 2, 4, 8):
            t(f"v_add_f32_dpp {v}, {v}, {v} row_shr:{sh} row_mask:0xf bank_mask:0xf bound_ctrl:0")
        t(f"v_add_f32_dpp {v}, {v}, {v} row_bcast:15 row_mask:0xa bank_mask:0xf")
        t(f"v_add_f32_dpp {v}, {v}, {v} row_bcast:31 row_mask:0xc bank_mask:0xf")
        t(f"v_readlane_b32 {st}, {v}, 63")
    for i in range(4):
        t(f"v_lshlrev_b32 v{u+2*i}, 16, v{b+i}\nv_and_b32 v{u+2*i+1}, 0xffff0000, v{b+i}")
    t(f"""
    v_add_f32 v{b}, v{u}, v{u+1}
    v_add_f32 v{b+1}, v{u+2}, v{u+3}
    v_add_f32 v{b+2}, v{u+4}, v{u+5}
    v_add_f32 v{b+3}, v{u+6}, v{u+7}
    v_add_f32 v{b}, v{b}, v{b+1}
    v_add_f32 v{b+2}, v{b+2}, v{b+3}
    v_add_f32 v{b}, v{b}, v{b+2}
    """)
    red(f"v{b}")
    t(f"v_mov_b32 v{b+1}, {f32(1.0/512)}\nv_mul_f32 v{b+2}, {st}, v{b+1}")
    for i in range(8): t(f"v_sub_f32 v{u+i}, v{u+i}, v{b+2}")
    t(f"v_mul_f32 v{b}, v{u}, v{u}\nv_mul_f32 v{b+3}, v{u+1}, v{u+1}")
    for i in range(2, 8, 2): t(f"v_fmac_f32 v{b}, v{u+i}, v{u+i}\nv_fmac_f32 v{b+3}, v{u+i+1}, v{u+i+1}")
    t(f"v_add_f32 v{b}, v{b}, v{b+3}")
    red(f"v{b}")
    t(f"""
    v_mul_f32 v{b}, {st}, v{b+1}
    v_cvt_pk_bf16_f32 v{b}, v{b}, v{b}
    v_and_b32 v{b}, 0xffff0000, v{b}
    v_add_f32 v{b}, {f32(1e-5)}, v{b}
    v_cvt_pk_bf16_f32 v{b}, v{b}, v{b}
    v_and_b32 v{b}, 0xffff0000, v{b}
    v_sqrt_f32 v{b}, v{b}
    v_cvt_pk_bf16_f32 v{b}, v{b+2}, v{b}
    """)
    return [l.strip() for l in t.lines]

def nib(l): return sum(v << (4*i) for i, v in enumerate(l))
SEQT = {
 0: [[0,1,2,3,4,5,6,7]]*4,
 1: [[2,0,1,3,4,5,6,7], [0,3,1,2,4,5,6,7], [1,0,2,3,4,5,6,7], [0,1,2,3,4,5,6,7]],
 2: [[0,1,2,3,4,5,6,7], [1,2,3,0,5,6,7,4], [2,3,0,1,6,7,4,5], [3,0,1,2,7,4,5,6]],
 3: [[0,1,2,3,4,5,6,7], [0,2,1,3,4,5,6,7], [0,3,1,2,4,5,6,7], [0,1,3,2,4,5,6,7]],
 4: [[0,2,1,3,4,5,6,7], [1,3,0,2,4,5,6,7], [0,2,1,3,4,5,6,7], [1,3,0,2,4,5,6,7]],
 5: [[0,1,2,3,4,5,6,7], [1,0,3,2,5,4,7,6], [0,1,2,3,4,5,6,7], [1,0,3,2,5,4,7,6]],
 6: [[0,1,2,3,4,5,6,7], [1,2,3,0,4,5,6,7], [2,3,0,1,4,5,6,7], [3,0,1,2,4,5,6,7]],
 7: [[0,1,2,3,4,5,6,7], [1,2,3,0,5,4,7,6], [2,3,0,1,4,5,6,7], [3,0,1,2,5,4,7,6]],
}

def prologue(a):
    T = vP
    SQ = [nib(x) for x in SEQT[OPT["seq"]]]
    PF = f"s_mov_b64 exec, 15\nglobal_load_dword v{T+15}, v2, s[4:5]\ns_mov_b64 exec, -1"
    a(f"""
    s_cmp_ge_u32 s2, 256
    s_cbranch_scc1 L_done
    """)
    stamp(a, 0)
    if OPT["diag"]: a("s_memrealtime s[100:101]")
    a(f"""
    s_load_dwordx16 s[36:51], s[0:1], 0
    s_load_dwordx2 s[52:53], s[0:1], 64
    s_getpc_b64 s[4:5]
    L_pc:
    s_lshr_b32 s3, s2, 3
    s_lshl_b32 s3, s3, 5
    v_lshrrev_b32 v2, 4, v0
    v_and_b32 v1, 3, v0
    v_add3_u32 v2, v2, v1, s3
    v_and_b32 v2, 0x1ff, v2
    v_lshlrev_b32 v2, 7, v2
    v_min_u32 v2, L_codeend-L_pc-4, v2
    {PF if OPT.get("pf", 0) == 0 else f"v_mov_b32 v{T+15}, v2"}
    v_lshrrev_b32 v2, 6, v0
    v_and_b32 v1, 63, v0
    v_readfirstlane_b32 {s_w}, v2
    s_bfe_u32 {s_r}, s2, 0x10002
    s_lshl_b32 {s_r}, {s_r}, 3
    s_bfe_u32 s3, s2, 0x30003
    s_add_u32 {s_r}, {s_r}, s3
    s_and_b32 {s_c}, s2, 3
    s_lshl_b32 {s_t0}, {s_c}, 1
    s_bfe_u32 {s_cl}, s2, 0x10006
    s_add_u32 {s_c}, {s_t0}, {s_cl}
    s_lshr_b32 {s_type}, s2, 7
    {f"s_xor_b32 {s_type}, {s_type}, 1" if OPT.get("swap") else ""}
    s_and_b32 {s_g}, {s_w}, 3
    s_lshl_b32 {s_g4k}, {s_g}, 12
    s_mul_i32 {s_gw}, {s_g}, {16*RS}
    s_and_b32 {s_t1}, s2, 4
    {f"s_add_u32 {s_t1}, {s_t0}, {s_t1}" if OPT["xc"] else ""}
    s_and_b32 {s_t1}, {s_t1}, 7
    s_mul_i32 {s_t1}, {s_t1}, 0x11111111
    s_lshr_b32 {s_t2}, s2, 6
    s_add_u32 {s_t2}, {s_t2}, s3
    s_mov_b32 {s_seq}, {hex(SQ[0])}
    s_mov_b32 {s_t3}, {hex(SQ[2])}
    s_bitcmp1_b32 {s_t2}, 0
    s_cselect_b32 {s_seq}, {hex(SQ[1])}, {s_seq}
    s_cselect_b32 {s_t3}, {hex(SQ[3])}, {s_t3}
    s_bitcmp1_b32 {s_t2}, 1
    s_cselect_b32 {s_seq}, {s_t3}, {s_seq}
    s_add_u32 {s_seq}, {s_seq}, {s_t1}
    s_and_b32 {s_seq}, {s_seq}, 0x77777777
    v_lshrrev_b32 v{T}, 3, v1
    v_lshrrev_b32 v{T+1}, 4, v1
    v_and_b32 v{T+2}, 7, v1
    v_xor_b32 v{T+2}, v{T+2}, v{T+1}
    v_lshlrev_b32 v{T+2}, 4, v{T+2}
    v_lshl_or_b32 v{T+8}, v{T}, 10, v{T+2}
    s_lshl_b32 {s_t0}, {s_r}, 17
    s_lshl_b32 {s_t1}, {s_g}, 15
    s_add_u32 {s_t1}, {s_t1}, {s_t0}
    v_add_u32 v{vXD0}, {s_t1}, v{T+8}
    v_add_u32 v{vXD1}, 0x2000, v{vXD0}
    v_xor_b32 v{vXD1}, 64, v{vXD1}
    s_mul_i32 {s_t1}, {s_c}, 448
    s_lshl_b32 {s_t3}, {s_c}, 7
    s_movk_i32 {s_stride}, 3584
    s_mov_b32 s64, -1
    s_mov_b32 s65, 0x00ffffff
    s_cmp_eq_u32 {s_type}, 0
    s_cselect_b32 {s_stride}, 3072, {s_stride}
    s_cselect_b32 {s_t1}, {s_t3}, {s_t1}
    s_cselect_b32 {s_t2}, 10, 7
    s_cselect_b32 s64, 0xf0ffffff, s64
    s_cselect_b32 s65, 0x000fffff, s65
    s_lshl_b32 {s_str64}, {s_stride}, 6
    s_lshl_b32 {s_str2}, {s_stride}, 1
    v_cmp_lt_u32 vcc, 27, v1
    v_subrev_u32 v{T+3}, 28, v1
    s_lshl_b32 {s_t0}, {s_g}, 4
    s_mul_i32 {s_t0}, {s_t0}, {s_stride}
    s_add_u32 {s_t1}, {s_t1}, {s_t0}
    v_mov_b32 v{T+4}, {s_stride}
    v_cndmask_b32 v{T+3}, v1, v{T+3}, vcc
    v_cndmask_b32 v{T+4}, 0, v{T+4}, vcc
    v_lshrrev_b32 v{T+5}, 3, v{T+3}
    v_lshlrev_b32 v{T+5}, {s_t2}, v{T+5}
    v_and_b32 v{T+3}, 7, v{T+3}
    v_lshl_add_u32 v{T+3}, v{T+3}, 4, v{T+5}
    v_add3_u32 v{vWD}, v{T+3}, v{T+4}, {s_t1}
    v_lshlrev_b32 v{vLN16}, 4, v1
    s_lshl_b32 {s_row}, {s_r}, 1
    s_add_u32 {s_row}, {s_row}, {s_type}
    s_lshl_b32 {s_row}, {s_row}, 3
    s_add_u32 {s_row}, {s_row}, {s_c}
    s_lshl_b32 {s_row}, {s_row}, 3
    s_mul_i32 {s_t3}, {s_g}, {2*RS}
    s_mul_i32 {s_t0}, {s_g}, 14
    s_mul_i32 {s_t0}, {s_t0}, {s_stride}
    v_subrev_u32 v{T+6}, {s_t0}, v{vWD}
    s_lshl_b32 {s_t2}, {s_stride}, 3
    s_lshl_b32 {s_t0}, {s_r}, 17
    s_sub_u32 {s_t0}, {s_t0}, 0x4000
    s_and_b32 {s_t1}, {s_g}, 1
    s_lshl_b32 {s_so}, {s_t1}, 13
    s_add_u32 {s_t0}, {s_t0}, {s_so}
    s_lshl_b32 {s_t1}, {s_t1}, 6
    v_xor_b32 v{T+7}, {s_t1}, v{T+8}
    v_add_u32 v{T+7}, {s_t0}, v{T+7}
    s_and_b32 {s_so}, {s_g}, 2
    s_lshl_b32 {s_so}, {s_so}, 1
    s_lshr_b32 {s_so}, {s_seq}, {s_so}
    s_lshl_b32 {s_hld}, {s_g}, 10
    s_mov_b32 s10, 0x200000
    s_mov_b32 s11, 0x20000
    s_lshl_b32 s14, {s_stride}, 9
    s_mov_b32 s15, 0x20000
    s_cmp_eq_u32 {s_type}, 0
    s_waitcnt lgkmcnt(0)
    """)
    stamp(a, 1)
    a(f"""
    s_mov_b32 s8, s36
    s_mov_b32 s9, s37
    s_cselect_b32 s12, s38, s44
    s_cselect_b32 s13, s39, s45
    s_cmp_ge_u32 {s_w}, 4
    s_cbranch_scc1 L_b0
    s_and_b32 {s_d1}, {s_seq}, 15
    s_lshl_b32 {s_d0}, {s_d1}, 7
    s_mul_i32 {s_d1}, {s_d1}, {s_str64}
    """)
    for i in range(4):
        if i == 2: a(f"s_add_u32 {s_d0}, {s_d0}, 0x4000")
        dma(a, None, None, (vXD0, vXD1)[i & 1], sX, s_d0, s_g4k, i*1024)
        if i > 0: a(f"s_add_u32 {s_d1}, {s_d1}, {s_t2}")
        dma(a, None, None, T+6, sW, s_d1, s_t3, WOFF + i*8*RS, True)
    def halo(i):
        a(f"s_bfe_u32 {s_d0}, {s_so}, {hex(0x40000 + 8*i)}\ns_lshl_b32 {s_d0}, {s_d0}, 7")
        dma(a, None, None, T+7, sX, s_d0, s_hld, L_HALO + i*4096)
    a(f"s_cmp_eq_u32 {s_type}, 0\ns_cbranch_scc0 L_nh0")
    halo(0)
    a("L_nh0:")
    for j in range(4, 8):
        a(f"s_add_u32 {s_d1}, {s_d1}, {s_t2}")
        dma(a, None, None, T+6, sW, s_d1, s_t3, WOFF + j*8*RS, True)
    a("L_b0:")
    if OPT.get("pf") == 1: a(f"s_mov_b64 exec, 15\nglobal_load_dword v{T+15}, v{T+15}, s[4:5]\ns_mov_b64 exec, -1")
    global HALO_FN
    HALO_FN = halo
    srd(a, 32, 50, 51, 256)
    a(f"""
    s_cmp_eq_u32 s2, 0
    s_cselect_b32 s3, {s_w}, 0
    s_cmp_eq_u32 s3, 4
    s_cbranch_scc0 L_nonz
    s_memrealtime s[4:5]
    s_waitcnt lgkmcnt(0)
    s_bitset1_b32 s5, 31
    v_mov_b32 v{T+2}, s4
    v_mov_b32 v{T+3}, s5
    v_mov_b32 v{T+4}, 0
    s_mov_b64 exec, 1
    buffer_store_dwordx2 {vr(T+2,2)}, v{T+4}, {sDBG}, 0 offen sc1
    s_mov_b64 exec, -1
    L_nonz:
    """)
    srd(a, 16, 52, 53, WS_SIZE)
    srd(a, 20, 46, 47, 1792*512*2)
    srd(a, 24, 40, 41, 512*512*2)
    srd(a, 28, 48, 49, 2048*512*2)
    if OPT["diag"]: a("s_mov_b32 s101, 0")
    a(f"""
    v_bfe_u32 v{T+9}, v1, 2, 2
    v_lshrrev_b32 v{T+10}, 5, v1
    v_and_b32 v{vINU}, 1, v1
    v_lshlrev_b32 v{vINU}, 5, v{vINU}
    v_and_b32 v{T+2}, 16, v1
    v_or_b32 v{vINU}, v{vINU}, v{T+2}
    v_and_b32 v{T+2}, 2, v1
    v_lshl_or_b32 v{vINU}, v{T+2}, 2, v{vINU}
    v_lshl_add_u32 v{T+11}, v{T+10}, 3, v{T+9}
    v_mul_u32_u24 v{T+13}, {RS}, v{T+11}
    v_add_u32 v{T+13}, v{T+13}, v{vINU}
    v_add_u32 v{T+13}, {WOFF}, v{T+13}
    s_lshr_b32 {s_th}, {s_g}, 1
    s_and_b32 {s_nh}, {s_g}, 1
    s_lshl_b32 {s_t0}, {s_r}, 1
    s_add_u32 {s_t0}, {s_t0}, {s_th}
    s_mul_i32 {s_hst}, {s_t0}, {WS_RB2}
    s_lshr_b32 {s_t1}, {s_c}, 1
    s_mul_i32 {s_t2}, {s_t1}, {36*2048}
    s_add_u32 {s_hst}, {s_hst}, {s_t2}
    s_lshl_b32 {s_t3}, {s_nh}, 10
    s_add_u32 {s_hst}, {s_hst}, {s_t3}
    s_lshl_b32 {s_t2}, {s_cl}, 12
    s_add_u32 {s_hs6}, {s_hst}, {s_t2}
    s_lshl_b32 {s_t2}, {s_cl}, 1
    s_add_u32 {s_t2}, {s_t2}, {s_nh}
    s_lshl_b32 {s_t3}, {s_t2}, 12
    s_add_u32 {s_hst}, {s_hst}, {s_t3}
    s_xor_b32 {s_hs1}, {s_hst}, 0x400
    s_lshl_b32 {s_pfl}, {s_t0}, 2
    s_add_u32 {s_pfl}, {s_pfl}, {s_t1}
    s_lshl_b32 {s_pfl}, {s_pfl}, 6
    s_add_u32 {s_pfl}, {s_pfl}, {s_t2}
    s_lshl_b32 {s_pfl}, {s_pfl}, 3
    s_add_u32 {s_pfl}, {s_pfl}, {hex(WS_FLAGS)}
    s_mul_i32 {s_t0}, {s_g}, 12288
    s_cmp_eq_u32 {s_g}, 3
    s_cselect_b32 {s_t0}, {L_HALO}, {s_t0}
    v_add_u32 v{T+14}, {s_t0}, v{vLN16}
    s_cmp_ge_u32 {s_w}, 4
    s_cbranch_scc1 L_B
    """)

def flag_store(stage, t):
    return [f"v_mov_b32 v{t}, {s_n0}", f"v_mov_b32 v{t+1}, {s_n1}", f"v_mov_b32 v{t+2}, 0",
            "s_mov_b64 exec, 1\n" + f"buffer_store_dwordx2 {vr(t,2)}, v{t+2}, {sWS}, {s_pfl} offen offset:{stage*128} sc1\n" + "s_mov_b64 exec, -1"]
def derive(src, nm, sd):
    return [f"v_and_b32 v{sd}, 0xffff0000, v{src}", f"v_and_b32 v{nm}, 0xffff, v{src}", f"v_xor_b32 v{nm}, 0x8000, v{nm}",
            f"v_lshl_or_b32 v{nm}, v{nm}, 16, v{nm}", f"v_mov_b32 v{nm+1}, v{nm}", f"v_mov_b32 v{nm+2}, v{nm}", f"v_mov_b32 v{nm+3}, v{nm}"]
def lds_signal(vh, off):
    return f"s_mov_b64 exec, 1\nds_add_u32 v{vh}, v{vh+1} offset:{MISCO+off}\ns_mov_b64 exec, -1"
def lds_spin(a, vh, t, off, lbl, sleep=True):
    a(f"""
    s_mov_b32 {s_spin}, 0
    {lbl}:
    ds_read_b32 v{t}, v{vh} offset:{MISCO+off}
    s_waitcnt lgkmcnt(0)
    v_readfirstlane_b32 s3, v{t}
    s_cmp_ge_u32 s3, 4
    s_cbranch_scc1 {lbl}k
    s_add_u32 {s_spin}, {s_spin}, 1
    s_cmp_ge_u32 {s_spin}, 0x200000
    s_cbranch_scc1 {lbl}k
    {"s_sleep 1" if sleep else "s_nop 7"}
    s_nop 7
    s_branch {lbl}
    {lbl}k:
    """)
def silu_ops(acc, c1, sd, t, pk=None):
    ops = []
    if pk is None: pk = OPT['pk']
    for h in range(2):
        b = acc + 8*h
        if pk:
            def bc(r): return (vr(r & ~1, 2), r & 1)
            cp, cs = bc(c1); sp, ss = bc(sd)
            for j in range(0, 8, 2): ops.append(f"v_pk_mul_f32 {vr(t+j,2)}, {vr(b+j,2)}, {cp} op_sel:[0,{cs}] op_sel_hi:[1,{cs}]")
            for j in range(8): ops.append(f"v_exp_f32 v{t+j}, v{t+j}")
            for j in range(0, 8, 2): ops.append(f"v_pk_fma_f32 {vr(t+j,2)}, {vr(t+j,2)}, {sp}, {sp} op_sel:[0,{ss},{ss}] op_sel_hi:[1,{ss},{ss}]")
            for j in range(8): ops.append(f"v_rcp_f32 v{t+j}, v{t+j}")
            for j in range(0, 8, 2): ops.append(f"v_pk_mul_f32 {vr(b+j,2)}, {vr(b+j,2)}, {vr(t+j,2)}")
        else:
            for j in range(8): ops.append(f"v_mul_f32 v{t+j}, v{b+j}, v{c1}")
            for j in range(8): ops.append(f"v_exp_f32 v{t+j}, v{t+j}")
            for j in range(8): ops.append(f"v_fma_f32 v{t+j}, v{t+j}, v{sd}, v{sd}")
            for j in range(8): ops.append(f"v_rcp_f32 v{t+j}, v{t+j}")
            for j in range(8): ops.append(f"v_mul_f32 v{b+j}, v{b+j}, v{t+j}")
        for j in range(4): ops.append(f"v_cvt_pk_bf16_f32 v{b+j}, v{b+2*j}, v{b+2*j+1}")
    return ops
def hstore(b, h):
    if OPT.get('nost'): return 's_nop 0'
    return f"buffer_store_dwordx4 {vr(b,4)}, v{vLN16}, {sWS}, {s_so} offen offset:{h*2048} sc1"

POS = {"w1": 0, "w2": 16384, "w0": 32768, "w3": 49152, "att": 57344}
def blk(p):
    if p < 12:
        e, cl, nh = p >> 2, (p >> 1) & 1, p & 1
        base, tau = [(s_wqp, 2 + nh), (s_wqm, 4 + nh), (s_wq, nh)][e]
        return sW2, base, 224*cl + 32*tau
    if p < 14: return sW2, s_wq, 224*(p - 12) + 192
    cl, nh = ((p - 14) >> 1) & 1, p & 1
    return sWO, s_oq, 64*cl + 32*nh

def waveA_setup(a):
    T = vP
    if OPT["prioA"]: a(f"s_setprio {OPT['prioA']}")
    a(f"""
    v_bfe_u32 v{T+12}, v1, 1, 3
    v_xor_b32 v{T+12}, v{T+12}, v{T+10}
    v_and_b32 v{T+2}, 31, v1
    v_lshl_add_u32 v{T+4}, v{T+2}, 7, {s_g4k}
    v_and_b32 v{T+3}, 15, v1
    v_lshlrev_b32 v{T+3}, 7, v{T+3}
    v_add_u32 v{T+3}, {hex(L_HALO)}, v{T+3}
    """)
    for ks in range(4):
        a(f"""
        v_xor_b32 v{T+5}, {2*ks}, v{T+12}
        v_lshl_add_u32 v{aXR[0][ks]}, v{T+5}, 4, v{T+4}
        v_xor_b32 v{aXR[1][ks]}, 0x1000, v{aXR[0][ks]}
        v_lshl_add_u32 v{aHR[ks]}, v{T+5}, 4, v{T+3}
        """)
    a(f"""
    s_lshl_b32 {s_t0}, {s_nh}, 6
    s_lshl_b32 {s_t1}, {s_th}, 7
    v_add_u32 v{aWR[0]}, {s_t0}, v{T+13}
    s_add_u32 {s_t2}, {s_t1}, 128
    v_add_u32 v{aWR[1]}, {s_t2}, v{aWR[0]}
    s_sub_u32 {s_t3}, 256, {s_t1}
    v_add_u32 v{aWR[2]}, {s_t3}, v{aWR[0]}
    v_add_u32 v{aWR[3]}, 384, v{T+13}
    v_add_u32 v{aCR[3]}, {L_CS}, v{vLN16}
    s_lshl_b32 {s_t0}, {s_t0}, 4
    s_lshl_b32 {s_t2}, {s_t2}, 4
    s_lshl_b32 {s_t3}, {s_t3}, 4
    v_add_u32 v{aCR[0]}, {s_t0}, v{aCR[3]}
    v_add_u32 v{aCR[1]}, {s_t2}, v{aCR[0]}
    v_add_u32 v{aCR[2]}, {s_t3}, v{aCR[0]}
    v_add_u32 v{aCR[3]}, 6144, v{aCR[3]}
    v_mov_b32 v{aHO}, v{T+14}
    v_mov_b32 v{aHI}, {HI}
    v_mov_b32 v{aHI+1}, 1
    s_lshl_b32 {s_t0}, {s_g}, 3
    s_add_u32 {s_t0}, {s_t0}, {HI}
    v_mov_b32 v{aSW}, {s_t0}
    s_cmp_eq_u32 {s_type}, 0
    s_cbranch_scc0 L_nh1
    """)
    for i in range(1, 4): HALO_FN(i)
    a(f"""
    L_nh1:
    s_lshl_b32 {s_t0}, {s_g}, 1
    s_add_u32 {s_t0}, {s_t0}, {s_row}
    s_lshl_b32 {s_t0}, {s_t0}, 10
    buffer_load_dwordx4 {vr(vSR,4)}, v{vLN16}, {sX}, {s_t0} offen
    buffer_load_dwordx4 {vr(vSR+12,4)}, v{vLN16}, {sX}, {s_t0} offen offset:1024
    s_cmp_eq_u32 {s_type}, 0
    s_cbranch_scc1 L_A_att
    """)

def waveA(a, att, P):
    lg = Cnt(a, "lgkmcnt", 15)
    def fr(t, i): return aFR + (t % 2)*24 + 4*i
    def rd(txt, tag):
        def f(): a(txt); lg.issue(tag)
        return f
    def read_ops(t):
        if t == 32:
            order = [(3, 1), (4, 2), (2, 0), (5, 3)] if not att else [(3, 1), (4, 2), (2, 0)]
            return [rd(f"ds_read_b128 {vr(fr(t,i),4)}, v{aCR[m]}", (t, i)) for i, m in order]
        s, ks = divmod(t, 4)
        ops = []
        def wfrag(i, m):
            return [rd(f"ds_read_b64_tr_b16 {vr(fr(t,i)+2*b,2)}, v{aWR[m]} offset:{(16*ks+4*b)*RS}", (t, i)) for b in range(2)]
        ops.append(rd(f"ds_read_b128 {vr(fr(t,0),4)}, v{aXR[0][ks]}", (t, 0)))
        ops += wfrag(2, 0)
        ops.append(rd(f"ds_read_b128 {vr(fr(t,1),4)}, v{aXR[1][ks]}", (t, 1)))
        ops += wfrag(3, 1) + wfrag(4, 2)
        if att: ops.append(rd(f"ds_read_b128 {vr(fr(t,5),4)}, v{aHR[ks]} offset:{s*2048}", (t, 5)))
        else: ops += wfrag(5, 3)
        return ops
    def adv(regs, s):
        d = SLOT if (s + 1) % 3 else -2*SLOT
        return [f"v_add_u32 v{r}, {hex(d & 0xffffffff)}, v{r}" for r in regs]
    MM = [(2, 0), (2, 1), (3, 0), (3, 1), (4, 0), (4, 1), (3, 5) if att else (5, 0)]
    vKV = [aT+4, aT+5]; vTOK = [aT+6, aT+7]; vNEG = aT+3
    def kv_ops(acc, rs, addr, off):
        ops = [f"v_mul_f32 v{acc+j}, v{acc+j}, v{rs}" for j in range(16)]
        ops += [f"v_cvt_pk_bf16_f32 v{acc+j}, v{acc+2*j}, v{acc+2*j+1}" for j in range(8)]
        ops += [rd(f"ds_write_b128 v{addr}, {vr(acc,4)} offset:{off}", "KW"), rd(f"ds_write_b128 v{addr}, {vr(acc+4,4)} offset:{off+16}", "KW")]
        return ops
    def shadow_ops():
        if not att: return silu_ops(aACC[2], aC1[0], aS[0], aT, pk=0)
        txt = f"""
        v_and_b32 v{vTOK[0]}, 31, v1
        s_lshl_b32 {s_t0}, {s_g}, 5
        v_add_u32 v{vTOK[0]}, {s_t0}, v{vTOK[0]}
        v_xor_b32 v{vTOK[1]}, 32, v{vTOK[0]}
        v_and_b32 v{aT+2}, 32, v1
        s_lshl_b32 {s_t1}, {s_nh}, 6
        s_add_u32 {s_t1}, {s_t1}, {L_KV + 2*KVS}
        v_add_u32 v{aT+2}, {s_t1}, v{aT+2}
        v_mul_u32_u24 v{vKV[0]}, {KVS}, v{vTOK[0]}
        v_mul_u32_u24 v{vKV[1]}, {KVS}, v{vTOK[1]}
        v_add_u32 v{vKV[0]}, v{vKV[0]}, v{aT+2}
        v_add_u32 v{vKV[1]}, v{vKV[1]}, v{aT+2}
        s_lshl_b32 {s_t0}, {s_r}, 7
        v_add_u32 v{vTOK[0]}, {s_t0}, v{vTOK[0]}
        v_add_u32 v{vTOK[1]}, {s_t0}, v{vTOK[1]}
        s_lshl_b32 {s_t0}, {s_th}, 7
        s_xor_b32 {s_t1}, {s_t0}, 128
        v_add_u32 v8, {s_t0}, v{vKV[0]}
        v_add_u32 v9, {s_t0}, v{vKV[1]}
        v_add_u32 v10, {s_t1}, v{vKV[0]}
        v_add_u32 v11, {s_t1}, v{vKV[1]}
        v_and_b32 v12, 15, v1
        v_mul_u32_u24 v12, {KVS}, v12
        v_add3_u32 v12, v12, v{aT+2}, {s_t0}
        v_subrev_u32 v12, {2*KVS}, v12
        s_mov_b32 {s_selL}, 0x05040100
        s_mov_b32 {s_selH}, 0x07060302
        v_mov_b32 v{vNEG}, {f32(-1e30)}
        """
        ops = [l.strip() for l in txt.split("\n") if l.strip()]
        return (ops + kv_ops(aACC[2], aRS[0], 8, 14*KVS) + kv_ops(aACC[3], aRS[1], 9, 14*KVS) + kv_ops(aACC[6], aRS[2], 12, 0)
                + kv_ops(aACC[4], aRS[0], 10, 14*KVS) + kv_ops(aACC[5], aRS[1], 11, 14*KVS))
    yng = (5 if att else 2) + (1 if OPT.get('pf') == 1 else 0)
    a(f"s_waitcnt vmcnt({yng + 4 if OPT['split0'] else yng})\ns_barrier")
    stamp(a, 2)
    s0, s1 = stats_ops(vSR, 0, s_t2), stats_ops(vSR+12, 1, s_t3)
    sfill = []
    for x, y in zip(s0, s1): sfill += [x, y]
    sfill.append(f"v_mov_b32 v{vSR+1}, v{vSR+12}")
    sfill.append(rd(f"ds_write_b64 v{aSW}, {vr(vSR,2)} offset:{MISCO}", "SW"))
    X7 = lambda ks, x: 224 + (2*ks + x)*4
    R7 = []
    M7 = []
    pool = [0]
    def pslot(i): return aFR + (i % 12)*4
    def addw(m, ks):
        i = pool[0]; pool[0] += 1
        R7.append(([rd(f"ds_read_b64_tr_b16 {vr(pslot(i)+2*b,2)}, v{aWR[m]} offset:{(16*ks+4*b)*RS}", ("p", i)) for b in range(2)], i)); return i
    def addq(txt):
        i = pool[0]; pool[0] += 1
        R7.append(([rd(txt.format(d=vr(pslot(i),4)), ("p", i))], i)); return i
    R7.append(([rd(f"ds_read_b32 v{aT+1}, v{aT} offset:{MISCO+128}", "S"), rd(f"ds_read_b32 v{aT+2}, v{aT+6} offset:{MISCO+128}", "S"),
                rd(f"ds_read_b64 {vr(aT+4,2)}, v{aHI} offset:{MISCO+64}", "S")]
               + ([rd(f"ds_read_b32 v{aT+3}, v{aT+7} offset:{MISCO+128+512}", "S")] if att else []), None))
    groups = [(1, (2, 3)), (2, (4, 5)), (0, (0, 1))] + ([] if att else [(3, (6,))])
    for gi, (m, accs) in enumerate(groups):
        for ks in range(4):
            if gi == 0: R7.append(([rd(f"ds_read_b128 {vr(X7(ks,0),4)}, v{aXR[0][ks]}", ("x", ks, 0))], None))
            w = addw(m, ks)
            if gi == 0: R7.append(([rd(f"ds_read_b128 {vr(X7(ks,1),4)}, v{aXR[1][ks]}", ("x", ks, 1))], None))
            for x, acc in enumerate(accs): M7.append((acc, pslot(w), X7(ks, x), [("p", w), ("x", ks, x)], [w]))
            if gi == 0 and att:
                h = addq("ds_read_b128 {d}, " + f"v{aHR[ks]} offset:{7*2048}")
                M7.append((6, pslot(w), pslot(h), [("p", w), ("p", h)], [w, h]))
        c = addq("ds_read_b128 {d}, " + f"v{aCR[m]}")
        for x, acc in enumerate(accs): M7.append((acc, pslot(c), aNM[x], [("p", c)], [c]))
        if gi == 0 and att: M7.append((6, pslot(c), aNM[2], [("p", c)], [c]))
        if gi == 0: g1_end = len(M7)
    last_use = {}
    for k, mm in enumerate(M7):
        for i in mm[4]: last_use[i] = k
    R7f = []
    for ops, i in R7:
        for op in ops: R7f.append((op, i))
    def r7_issue(n, done):
        cnt = 0
        while R7f and cnt < n:
            op, i = R7f[0]
            if i is not None:
                if 6 <= i < 12 and done < 0: break
                if i >= 12 and last_use[i-12] >= done: break
            R7f.pop(0); op(); cnt += 1
        return cnt
    k1 = f32(0.25*LOG2E if att else -LOG2E)
    dv = [lambda: lg.wait("S")] + derive(aT+1, aNM[0], aS[0]) + derive(aT+2, aNM[1], aS[1])
    if att: dv += derive(aT+3, aNM[2], aRS[2]) + [f"v_rcp_f32 v{aRS[2]}, v{aRS[2]}"]
    dv += [f"v_rcp_f32 v{aRS[0]}, v{aS[0]}", f"v_rcp_f32 v{aRS[1]}, v{aS[1]}", f"v_readfirstlane_b32 {s_n0}, v{aT+4}", f"v_readfirstlane_b32 {s_n1}, v{aT+5}",
           f"v_mul_f32 v{aC1[0]}, {k1}, v{aRS[0]}", f"v_mul_f32 v{aC1[1]}, {k1}, v{aRS[1]}"]

    for f in read_ops(0): f()
    for t in range(28):
        s, ks = divmod(t, 4)
        rds = read_ops(t + 1) if t < 27 else []
        post = adv([aXR[0][(t+1) % 4], aXR[1][(t+1) % 4]], (t+1)//4) if t + 1 < 28 else []
        if ks == 2: post += adv(aWR[:3] if att else aWR, s)
        if t == 0: post += adv([aXR[0][0], aXR[1][0]], 0)
        if t == 3: post.append("s_waitcnt vmcnt(0)")
        if 3 <= t <= 10:
            k = 18 if t < 10 else 999
            post += sfill[:k]; sfill = sfill[k:]
        if t == 24:
            post += [f"v_and_b32 v{aT}, 31, v1", f"s_lshl_b32 {s_t0}, {s_g}, 7\ns_add_u32 {s_t0}, {s_t0}, {HI}",
                     f"v_lshl_add_u32 v{aT}, v{aT}, 2, {s_t0}", f"v_xor_b32 v{aT+6}, 0x80, v{aT}",
                     f"v_and_b32 v{aT+7}, 15, v1", f"v_lshl_add_u32 v{aT+7}, v{aT+7}, 2, v{aHI}"]
        for m, (wi, xi) in enumerate(MM):
            bar = (m == 0 and ks == 3)
            if bar: lg.wait_all()
            lg.wait((t, wi)); lg.wait((t, xi))
            c = "0" if t == 0 else vr(aACC[m], 16)
            a(f"{MF} {vr(aACC[m],16)}, {vr(fr(t,wi),4)}, {vr(fr(t,xi),4)}, {c}")
            if m == 0 and t == 1 and OPT["split0"]: a(f"s_waitcnt vmcnt({yng})\ns_barrier")
            if bar:
                a("s_barrier")
                stamp(a, 3 + s, 1)
                if s == 3: stamp(a, 3)
                if s == 6: stamp(a, 4)
            if t == 27:
                n = r7_issue(3, -1 if m < 6 else 0)
                if m >= 3:
                    for _ in range(5 - n):
                        if dv: emit(a, dv.pop(0))
                continue
            n = 0
            for _ in range(3):
                if rds: rds.pop(0)(); n += 1
            if not rds:
                for _ in range(5 - n if m < 6 else 99):
                    if post: emit(a, post.pop(0))
    fill = shadow_ops()
    signalled = False
    for k, (acc, ra, rb, tags, _u) in enumerate(M7):
        if rb in aNM:
            while dv: emit(a, dv.pop(0))
        for tg in tags: lg.wait(tg)
        a(f"{MF} {vr(aACC[acc],16)}, {vr(ra,4)}, {vr(rb,4)}, {vr(aACC[acc],16)}")
        n = r7_issue(2, k + 1)
        src = dv if dv else (fill if k >= g1_end + 1 else [])
        budget = 5 - n
        while budget > 0 and src:
            op = src.pop(0); emit(a, op)
            budget -= 2 if (isinstance(op, str) and op.startswith(("v_exp", "v_rcp"))) else 1
    assert not R7f
    a(lds_signal(aHI, C_FRE)); lg.issue("SG")
    stamp(a, 5)
    if not att:
        def act(m, x):
            for op in silu_ops(aACC[m], aC1[x], aS[x], aT): a(op)
        def put(m, base, off):
            a(f"s_add_u32 {s_so}, {base}, {off}")
            for h in range(2): a(hstore(aACC[m] + 8*h, h))
        def flag(st):
            a("s_waitcnt vmcnt(0)")
            for op in flag_store(st, aT+12): a(op)
        T7 = [(2, 0, s_hst, "w1"), (3, 1, s_hs1, "w1"), (4, 0, s_hst, "w2"), (5, 1, s_hs1, "w2"), (0, 0, s_hst, "w0"), (1, 1, s_hs1, "w0"), (6, 0, s_hs6, "w3")]
        def fl(st, n):
            a(f"s_waitcnt vmcnt({n})")
            for op in flag_store(st, aT+12): a(op)
        FL = {0: {4: (1, 4), 6: (2, 5)}, 1: {3: (1, 2), 5: (2, 2)}}[OPT.get("fe", 0)]
        HOLD = OPT.get("hold", 0)
        for i, (m, x, base, pos) in enumerate(T7):
            if i == 0:
                for op in fill: emit(a, op)
            else: act(m, x)
            if not HOLD:
                if i in FL: fl(*FL[i])
                put(m, base, POS[pos])
            elif i == HOLD - 1:
                for (m2, x2, b2, p2) in T7[:HOLD]: put(m2, b2, POS[p2])
            elif i >= HOLD: put(m, base, POS[pos])
            if i == 1: stamp(a, 6)
            if i == 3: stamp(a, 7)
            if OPT["quiet"] and i == OPT.get("qs", 6): a(lds_signal(aHI, C_ST))
        stamp(a, 8)
        if HOLD:
            fl(1, 10); a("s_waitcnt vmcnt(7)"); a(flag_store(2, aT+12)[-1]); a("s_waitcnt vmcnt(2)"); a(flag_store(3, aT+12)[-1])
        else: flag(3)
        stamp(a, 9)
        a('s_branch L_finA')
        return
    for op in fill: emit(a, op)
    a(lds_signal(aHI, C_KV))
    for x in range(2):
        q = aACC[x]
        for j in range(8): a(f"v_cvt_pk_bf16_f32 v{q+j}, v{q+2*j}, v{q+2*j+1}")
    stamp(a, 6)
    lds_spin(a, aHI, aRC, C_KV, P + "c1", sleep=False)
    stamp(a, 7)
    lg.q = []
    K = 144; V0 = 64
    def Vr(j): return V0 + 8*j if j < 6 else 208 + 8*(j-6)
    L = 8; Pp = 16; TT = 20; O = 224
    for x in range(2):
        kv = vKV[x]
        if OPT.get("noatt") and x == 1:
            q = aACC[x]
            a(f"s_add_u32 {s_so}, {(s_hst, s_hs1)[x]}, {POS['att']}")
            for h in range(2): a(hstore(q+8+4*h, h))
            continue
        for j in range(8):
            for hh in range(2):
                a(f"ds_read_b128 {vr(K+8*j+4*hh,4)}, v{kv} offset:{(14-2*j)*KVS + 16*hh}"); lg.issue(("K", j))
                if len(lg.q) > 14: lg.wait(lg.q[1])
        q = aACC[x]
        a(f"v_mov_b32 v{L}, 0")
        for j in range(1, 8):
            a(f"v_cmp_gt_u32 vcc, {2*j}, v{vTOK[x]}\nv_cndmask_b32 v{L+j}, 0, v{vNEG}, vcc")
        for j in range(8):
            lg.wait(("K", j))
            for hh in range(2):
                a(f"ds_read_b128 {vr(Vr(j)+4*hh,4)}, v{kv} offset:{(14-2*j)*KVS + 128 + 16*hh}"); lg.issue(("V", j))
                if len(lg.q) > 14: lg.wait(lg.q[1])
            for i in range(8): a(f"v_dot2c_f32_bf16 v{L+j}, v{q+i}, v{K+8*j+i}")
        a(f"""
        v_max3_f32 v{TT}, v{L}, v{L+1}, v{L+2}
        v_max3_f32 v{TT+1}, v{L+3}, v{L+4}, v{L+5}
        v_max3_f32 v{TT}, v{TT}, v{L+6}, v{L+7}
        v_max_f32 v{TT}, v{TT}, v{TT+1}
        v_mul_f32 v{TT}, v{TT}, v{aC1[x]}
        """)
        for j in range(8): a(f"v_fma_f32 v{L+j}, v{L+j}, v{aC1[x]}, -v{TT}")
        for j in range(8): a(f"v_exp_f32 v{L+j}, v{L+j}")
        a(f"""
        v_add_f32 v{TT}, v{L}, v{L+1}
        v_add_f32 v{TT+1}, v{L+2}, v{L+3}
        v_add_f32 v{TT+2}, v{L+4}, v{L+5}
        v_add_f32 v{TT+3}, v{L+6}, v{L+7}
        v_add_f32 v{TT}, v{TT}, v{TT+1}
        v_add_f32 v{TT+2}, v{TT+2}, v{TT+3}
        v_add_f32 v{TT}, v{TT}, v{TT+2}
        v_rcp_f32 v{TT}, v{TT}
        """)
        for j in range(8): a(f"v_mul_f32 v{L+j}, v{L+j}, v{TT}")
        for j in range(4): a(f"v_cvt_pk_bf16_f32 v{Pp+j}, v{L+2*j}, v{L+2*j+1}")
        for j in range(16): a(f"v_mov_b32 v{O+j}, 0")
        for jp in range(4):
            lg.wait(("V", 2*jp+1))
            va, vb = Vr(2*jp), Vr(2*jp+1)
            for i in range(8):
                a(f"v_perm_b32 v{K+2*i}, v{vb+i}, v{va+i}, {s_selL}\nv_perm_b32 v{K+2*i+1}, v{vb+i}, v{va+i}, {s_selH}")
            for i in range(16): a(f"v_dot2c_f32_bf16 v{O+i}, v{K+i}, v{Pp+jp}")
        for j in range(8): a(f"v_cvt_pk_bf16_f32 v{q+8+j}, v{O+2*j}, v{O+2*j+1}")
        for x2 in ([x] if not OPT.get("ah") else ([] if x == 0 else [0, 1])):
            a(f"s_add_u32 {s_so}, {(s_hst, s_hs1)[x2]}, {POS['att']}")
            for h in range(2): a(hstore(aACC[x2]+8+4*h, h))
        if x == 0: stamp(a, 8)
    a("s_waitcnt vmcnt(0)")
    for op in flag_store(0, aT+12): a(op)
    stamp(a, 9)
    a('s_branch L_finA')

def waveB(a):
    T = vP
    vm = Cnt(a, "vmcnt", 63); lg = Cnt(a, "lgkmcnt", 15)
    HB, WB = 3, 8
    vHB, vWB, vA = 16, 64, 192
    bCR, bHO = 11, 12
    a("L_B:")
    a(f"s_setprio {OPT['prioB']}")
    bHI = 62
    MAP2 = f"""s_bfe_u32 {s_rb2}, s2, 0x20001
    s_lshl_b32 {s_rb2}, {s_rb2}, 3
    s_bfe_u32 s3, s2, 0x30003
    s_add_u32 {s_rb2}, {s_rb2}, s3
    s_and_b32 {s_cb}, s2, 1
    s_lshl_b32 {s_cb}, {s_cb}, 2
    s_lshr_b32 s3, s2, 6
    s_add_u32 {s_cb}, {s_cb}, s3"""
    a(f"""
    s_and_b32 {s_rb2}, s2, 7
    s_lshl_b32 {s_rb2}, {s_rb2}, 2
    s_bfe_u32 s3, s2, 0x20003
    s_add_u32 {s_rb2}, {s_rb2}, s3
    s_lshr_b32 {s_cb}, s2, 5
    {f"s_and_b32 s3, s3, 1" if OPT.get("mix") else ""}
    {f"s_lshl_b32 s3, s3, 2" if OPT.get("mix") else ""}
    {f"s_xor_b32 {s_cb}, {s_cb}, s3" if OPT.get("mix") else ""}
    {MAP2 if OPT.get("map2") else ""}
    s_add_u32 {s_lam}, {s_rb2}, {s_cb}
    s_and_b32 {s_lam}, {s_lam}, 3
    v_lshrrev_b32 v{T+6}, 2, v1
    v_xor_b32 v{T+6}, v{T+6}, v{T+1}
    v_and_b32 v{T+6}, 1, v{T+6}
    v_and_b32 v{T+5}, 3, v1
    v_lshlrev_b32 v{bFA}, 3, v{T+5}
    v_lshl_or_b32 v{bFA}, v{T+9}, 7, v{bFA}
    v_lshlrev_b32 v{T+5}, 4, v{T+5}
    v_lshl_or_b32 v{T+6}, v{T+6}, 6, v{T+5}
    s_lshl_b32 {s_t3}, {s_cb}, 7
    v_lshl_or_b32 v{bD2}, v{T}, 10, v{T+6}
    v_add_u32 v{bD2}, {s_t3}, v{bD2}
    s_mul_i32 {s_wq}, {s_g}, {448*1024}
    s_and_b32 {s_t3}, {s_rb2}, 1
    s_lshl_b32 {s_t3}, {s_t3}, 16
    s_add_u32 {s_wqp}, {s_wq}, {s_t3}
    s_sub_u32 {s_wqm}, {s_wq}, {s_t3}
    s_lshl_b32 {s_oq}, {s_g}, 17
    s_mul_i32 {s_ring}, {s_g}, 12288
    s_add_u32 {s_ring}, {s_ring}, {L_RING}
    s_bfe_u32 {s_t2}, {s_r}, 0x10002
    s_lshl_b32 {s_t2}, {s_t2}, 1
    s_and_b32 {s_t3}, {s_r}, 1
    s_add_u32 {s_t2}, {s_t2}, {s_t3}
    s_lshl_b32 {s_t3}, {s_t2}, 7
    s_add_u32 {s_t3}, {s_t3}, {s_gw}
    v_add_u32 v{bCR}, {s_t3}, v{T+13}
    s_lshl_b32 {s_t1}, {s_type}, 3
    s_add_u32 {s_t1}, {s_t1}, {s_c}
    s_lshl_b32 {s_t1}, {s_t1}, 13
    s_add_u32 {s_csb}, {s_t1}, {hex(WS_CS)}
    s_lshl_b32 {s_t0}, {s_t2}, 11
    s_bfe_u32 {s_t1}, {s_r}, 0x10001
    s_lshl_b32 {s_t1}, {s_t1}, 3
    s_add_u32 {s_t0}, {s_t0}, {s_t1}
    s_lshr_b32 {s_t1}, {s_r}, 3
    s_lshl_b32 {s_t1}, {s_t1}, 9
    s_add_u32 {s_t0}, {s_t0}, {s_t1}
    s_add_u32 {s_csp}, {s_t0}, {s_csb}
    s_lshl_b32 {s_t0}, {s_g}, 11
    s_add_u32 {s_csb}, {s_csb}, {s_t0}
    s_lshl_b32 {s_row}, {s_row}, 4
    s_add_u32 {s_row}, {s_row}, {hex(WS_STATS)}
    v_and_b32 v{bT+12}, 31, v1
    v_lshlrev_b32 v{bT+13}, 5, v{bT+12}
    v_add_u32 v{bT+13}, {HI}, v{bT+13}
    v_lshl_or_b32 v{bT+14}, v{T+10}, 2, v{bT+13}
    s_lshl_b32 {s_t0}, {s_g}, 3
    v_add_u32 v{bT+14}, {s_t0}, v{bT+14}
    s_lshl_b32 {s_t0}, {s_g}, 11
    s_add_u32 {s_t0}, {s_t0}, {HI}
    v_add_u32 v{bT+15}, {s_t0}, v{vLN16}
    s_lshl_b32 {s_t0}, {s_r}, 11
    s_lshl_b32 {s_t1}, {s_g}, 9
    s_add_u32 {s_t1}, {s_t1}, {s_t0}
    s_max_u32 {s_t0}, {s_t0}, 256
    s_sub_u32 {s_t0}, {s_t0}, 256
    s_cmp_eq_u32 {s_type}, 0
    s_cselect_b32 {s_t0}, {s_t0}, {s_t1}
    v_and_b32 v{bT+8}, 15, v1
    v_lshl_add_u32 v{bT+9}, v{bT+8}, 4, {s_t0}
    v_lshl_add_u32 v{bT+7}, v{bT+12}, 4, {s_t1}
    v_cmp_gt_u32 vcc, 32, v1
    s_lshl_b32 {s_t0}, {s_g}, 7
    s_add_u32 {s_t0}, {s_t0}, {HI}
    v_cndmask_b32 v{bT+9}, v{bT+9}, v{bT+7}, vcc
    v_lshl_add_u32 v{bT+10}, v{bT+12}, 2, {s_t0}
    v_lshlrev_b32 v{bT+8}, 2, v{bT+8}
    v_add_u32 v{bT+8}, {HI+512}, v{bT+8}
    v_cndmask_b32 v{bT+10}, v{bT+8}, v{bT+10}, vcc
    v_lshlrev_b32 v{bT+12}, 4, v{bT+12}
    v_lshl_or_b32 v{bT+12}, v{T+10}, 10, v{bT+12}
    v_lshlrev_b32 v{bT+13}, 5, v1
    v_add_u32 v{bT+13}, {HI}, v{bT+13}
    v_mov_b32 v{bT+4}, 0
    v_mov_b32 v{bT+5}, 0
    v_mov_b32 v{bHO}, v{T+14}
    v_lshl_add_u32 v{T+3}, v{T+10}, 4, v{T+9}
    v_lshl_add_u32 v{T+2}, v{T+3}, 7, v{vINU}
    v_lshrrev_b32 v{T+3}, 1, v{T+9}
    v_xor_b32 v{T+3}, {s_th}, v{T+3}
    v_lshl_add_u32 v{T+2}, v{T+3}, 6, v{T+2}
    v_add_u32 v{bR[0]}, {s_ring}, v{T+2}
    v_xor_b32 v{bR[1]}, 64, v{bR[0]}
    s_lshl_b32 {s_t2}, {s_nh}, 10
    v_add_u32 v{bH[0]}, {s_t2}, v{vLN16}
    v_xor_b32 v{bH[1]}, 0x400, v{bH[0]}
    s_mul_i32 {s_hld}, {s_rb2}, {WS_RB2}
    s_mul_i32 {s_t2}, {s_g}, {36*2048}
    s_add_u32 {s_hld}, {s_hld}, {s_t2}
    v_and_b32 v{T+3}, 31, v1
    v_lshlrev_b32 v{T+3}, 10, v{T+3}
    v_lshl_or_b32 v{T+3}, v{T+10}, 5, v{T+3}
    s_lshl_b32 {s_t2}, {s_rb2}, 16
    s_lshl_b32 {s_t1}, {s_nh}, 15
    s_add_u32 {s_t2}, {s_t2}, {s_t1}
    s_lshl_b32 {s_t1}, {s_cb}, 7
    s_add_u32 {s_t2}, {s_t2}, {s_t1}
    s_lshl_b32 {s_t0}, {s_th}, 6
    s_add_u32 {s_t2}, {s_t2}, {s_t0}
    v_add_u32 v{bO}, {s_t2}, v{T+3}
    s_lshl_b32 {s_fst}, {s_rb2}, 2
    s_add_u32 {s_fst}, {s_fst}, {s_g}
    s_lshl_b32 {s_fst}, {s_fst}, 9
    s_add_u32 {s_fst}, {s_fst}, {hex(WS_FLAGS)}
    v_mov_b32 v{bHI}, {HI}
    v_mov_b32 v{bHI+1}, 1
    v_lshlrev_b32 v{bT}, 2, v1
    v_add_u32 v{bT+11}, {HI}, v{bT}
    v_mov_b32 v{bT+2}, 0
    ds_write_b32 v{bT+11}, v{bT+2} offset:{MISCO+C_RDY}
    """)
    SP = OPT.get("sp", 0)
    spl = []
    if SP:
        a(f"""
        s_lshl_b32 {s_t0}, s2, 2
        s_add_u32 {s_t0}, {s_t0}, {s_g}
        s_mul_i32 {s_t1}, {s_t0}, 9216
        s_add_u32 s{SPB}, s16, {s_t1}
        s_addc_u32 s{SPB+1}, s17, 0
        s_mul_i32 {s_t1}, {s_t0}, 1792
        s_add_u32 s{SPB+2}, s20, {s_t1}
        s_addc_u32 s{SPB+3}, s21, 0
        s_lshl_b32 {s_t1}, {s_t0}, 9
        s_add_u32 s{SPB+4}, s24, {s_t1}
        s_addc_u32 s{SPB+5}, s25, 0
        """)
        st_ = OPT.get("spw", 64)
        if SP & 1:
            spl += [(SPB+2, o) for o in range(0, 1792, st_)] + [(SPB+4, o) for o in range(0, 512, st_)]
        if SP & 2:
            spl += [(SPB, o) for o in range(0, 9216, OPT.get("sph", 128))]
    def spf(n):
        for _ in range(n):
            if spl:
                b, o = spl.pop(0)
                a(f"s_load_dword s{SPB+6}, s[{b}:{b+1}], {o}")
    pieces = []
    for u in range(1, 8): pieces += [(u, f) for f in unit_pieces(a, vm, u)]
    def issue(n, s):
        for _ in range(n):
            if pieces and pieces[0][0] <= s + 2: pieces.pop(0)[1]()
    if not OPT["split0"]: issue(OPT.get("q0", 6), 0)
    a("s_waitcnt lgkmcnt(0)\ns_barrier")
    stamp(a, 2)
    if OPT["split0"]:
        issue(4, 0)
        a("s_barrier")
    def nonce_load():
        a(f"v_mov_b32 v{bT+8}, 0\nbuffer_load_dwordx2 {vr(bNM,2)}, v{bT+8}, {sDBG}, 0 offen sc1")
    def cs_read(s):
        for u in range(2):
            for b in range(2):
                a(f"ds_read_b64_tr_b16 {vr(bCF+4*u+2*b,2)}, v{bCR} offset:{s*SLOT + u*64 + 4*b*RS}"); lg.issue("C")
    def cs_ops(s):
        ops = [lambda: lg.wait("C")]
        for i in range(8):
            acc = bT + 4 + i // 4
            ops.append(f"v_lshlrev_b32 v{bT}, 16, v{bCF+i}\nv_and_b32 v{bT+1}, 0xffff0000, v{bCF+i}\n"
                       f"v_add_f32 v{bT}, v{bT}, v{bT+1}\nv_add_f32 v{acc}, v{acc}, v{bT}")
        return ops
    def cs_write():
        for u in range(2):
            a(f"ds_write_b32 v{bT+14}, v{bT+4+u} offset:{CSRO + u*1024}"); lg.issue("CW")
    def pub_stats_pre():
        a(f"ds_read_b32 v{bST}, v{bT+11} offset:{MISCO}"); lg.issue("P")
    def nonce_head():
        a(f"""
        s_cmp_eq_u32 {s_g}, 0
        s_cbranch_scc0 B_nnh
        s_mov_b32 {s_spin}, 0
        B_nchk:
        v_readfirstlane_b32 {s_n1}, v{bNM+1}
        s_cmp_lg_u32 {s_n1}, 0
        s_cbranch_scc1 B_nok
        s_add_u32 {s_spin}, {s_spin}, 1
        s_cmp_ge_u32 {s_spin}, {SPIN_MAX}
        s_cbranch_scc1 B_nok
        s_sleep 2
        """)
        nonce_load()
        a(f"s_waitcnt vmcnt(0)\ns_branch B_nchk\nB_nok:")
        if OPT["diag"]: a(f"s_mov_b32 s101, {s_spin}")
        a(f"""
        ds_write_b64 v{bHI}, {vr(bNM,2)} offset:{MISCO+64}
        v_mov_b32 v{bST+1}, v{bNM}
        v_mov_b32 v{bST+2}, v{bNM+1}
        v_mov_b32 v{bST+3}, 0
        B_nnh:
        """)
        lg.issue("P0")
    def pub_stats():
        lg.wait("P")
        a(f"""
        s_cmp_eq_u32 {s_g}, 0
        s_cbranch_scc0 B_npub
        s_mov_b64 exec, 0xff
        buffer_store_dwordx4 {vr(bST,4)}, v{vLN16}, {sWS}, {s_row} offen sc1
        s_mov_b64 exec, -1
        B_npub:
        """)
    def pub_cs_ops():
        def r():
            a(f"""
            ds_read_b128 {vr(bCF,4)}, v{bT+13} offset:{CSRO}
            ds_read_b128 {vr(bCF+4,4)}, v{bT+13} offset:{CSRO+16}
            ds_read_b64 {vr(bNM,2)}, v{bHI} offset:{MISCO+64}
            """)
            for _ in range(3): lg.issue("P")
        return [r, "s_nop 0", lambda: lg.wait("P"),
            f"v_add_f32 v{bCF}, v{bCF}, v{bCF+1}\nv_add_f32 v{bCF+2}, v{bCF+2}, v{bCF+3}\nv_add_f32 v{bCF+4}, v{bCF+4}, v{bCF+5}\nv_add_f32 v{bCF+6}, v{bCF+6}, v{bCF+7}",
            f"v_add_f32 v{bCF}, v{bCF}, v{bCF+2}\nv_add_f32 v{bCF+4}, v{bCF+4}, v{bCF+6}\nv_readfirstlane_b32 {s_n0}, v{bNM}\nv_add_f32 v{bCF}, v{bCF}, v{bCF+4}",
            f"v_cvt_pk_bf16_f32 v{bCF+2}, v{bCF}, v{bCF}\nv_and_b32 v{bCF+2}, 0xffff0000, v{bCF+2}\nv_readfirstlane_b32 {s_n1}, v{bNM+1}\nv_sub_f32 v{bCF+2}, v{bCF}, v{bCF+2}",
            f"""v_cvt_pk_bf16_f32 v{bCF}, v{bCF}, v{bCF+2}
            v_mov_b32 v{bCF+1}, v{bNM}
            s_cmp_eq_u32 {s_g}, 1
            s_cbranch_scc0 B_npc
            buffer_store_dwordx2 {vr(bCF,2)}, v{bT+12}, {sWS}, {s_csp} offen sc1
            B_npc:"""]
    def fetch():
        a(f"""
        s_mov_b32 {s_t0}, {hex(WS_STATS)}
        buffer_load_dwordx4 {vr(bST,4)}, v{bT+9}, {sWS}, {s_t0} offen sc1
        buffer_load_dwordx4 {vr(bCF,4)}, v{vLN16}, {sWS}, {s_csb} offen sc1
        buffer_load_dwordx4 {vr(bCF+4,4)}, v{vLN16}, {sWS}, {s_csb} offen offset:1024 sc1
        """)
        for _ in range(3): vm.issue("ST")
    def handover():
        vm.wait("ST")
        a(f"""
        s_mov_b32 {s_spin}, 0
        B_schk:
        v_cmp_ne_u32 vcc, {s_n0}, v{bST+1}
        """)
        for reg, n in [(bST+2, s_n1), (bCF+1, s_n0), (bCF+3, s_n0), (bCF+5, s_n0), (bCF+7, s_n0)]:
            a(f"v_cmp_ne_u32 s[4:5], {n}, v{reg}\ns_or_b64 vcc, vcc, s[4:5]")
        a(f"""
        s_cbranch_scc0 B_sok
        s_add_u32 {s_spin}, {s_spin}, 1
        s_cmp_ge_u32 {s_spin}, {SPIN_MAX}
        s_cbranch_scc1 B_sok
        s_sleep 2
        """)
        sv = list(vm.q); fetch(); vm.q = sv
        a(f"s_waitcnt vmcnt(0)\ns_branch B_schk\nB_sok:")
        if OPT["diag"]: a(f"s_lshl_b32 s3, {s_spin}, 8\ns_and_b32 s101, s101, 0xff\ns_or_b32 s101, s101, s3")
        a(f"""
        ds_write_b32 v{bT+10}, v{bST} offset:{MISCO+128}
        v_mov_b32 v{bCF+1}, 0
        v_mov_b32 v{bCF+3}, 0
        v_mov_b32 v{bCF+5}, 0
        v_mov_b32 v{bCF+7}, 0
        ds_write_b128 v{bT+15}, {vr(bCF,4)} offset:{CSO}
        s_cmp_eq_u32 {s_g}, 3
        s_cbranch_scc1 B_nu7
        ds_write_b128 v{bT+15}, {vr(bCF+4,4)} offset:{CSO+1024}
        B_nu7:
        """)
        lg.issue("SW")
    NRAW = OPT["nraw"]
    slot_of = {}; free = [RHI, RHI + 4096, RHI + 8192]
    def rslot(b):
        if b not in slot_of: slot_of[b] = free.pop(0)
        return slot_of[b]
    def woff(b, dst):
        if OPT.get("fakew"):
            a(f"s_add_u32 {dst}, {s_oq}, {(b%2)*32768}"); return None
        if not OPT.get("perm"):
            sr, base, row0 = blk(b)
            a(f"s_add_u32 {dst}, {base}, {row0*1024}"); return sr
        if 12 <= b < 14:
            sr, base, row0 = blk(12)
            a(f"s_xor_b32 s3, {s_lam}, {b-12}\ns_and_b32 s3, s3, 1\ns_mul_i32 s3, s3, {224*1024}\ns_add_u32 s3, s3, {row0*1024}\ns_add_u32 {dst}, {base}, s3"); return sr
        b0 = (b & ~3) if b < 12 else 14
        k = b - b0
        sr, base, row0 = blk(b0)
        cs_ = 224 if b < 12 else 64
        a(f"""
        s_xor_b32 s3, {s_lam}, {k}
        s_lshr_b32 {dst}, s3, 1
        s_mul_i32 {dst}, {dst}, {cs_*1024}
        s_and_b32 s3, s3, 1
        s_lshl_b32 s3, s3, 15
        s_add_u32 {dst}, {dst}, s3
        s_add_u32 {dst}, {dst}, {base}
        s_add_u32 {dst}, {dst}, {row0*1024}
        """); return sr
    def Dp(b):
        if b >= 18: return []
        ps = []
        sr = blk(b)[0]
        for i in range(4):
            def f(i=i):
                if i == 0: woff(b, s_d0)
                else: a(f"s_add_u32 {s_d0}, {s_d0}, 8192")
                dma(a, vm, ("D", b), bD2, sr, s_d0, s_ring, rslot(b) + i*1024)
            ps.append(f)
        return ps
    def Trp(b):
        if b >= 18: return []
        ps = []
        for f in range(2):
            for nu in range(2):
                def g(f=f, nu=nu):
                    vm.wait(("D", b))
                    for b2 in range(2):
                        d = vWB + (b % WB)*16 + (f*2 + nu)*4 + 2*b2
                        a(f"ds_read_b64_tr_b16 {vr(d,2)}, v{bR[nu]} offset:{rslot(b) + (8*f+4*b2)*128}"); lg.issue(("T", b))
                ps.append(g)
        return ps
    def TD(b):
        return Trp(b) + [lambda: lg.wait(("T", b))] + Dp(b + 3)
    def raw(b):
        sr, base, row0 = blk(b)
        for i in range(4):
            a(f"s_add_u32 {s_t0}, {base}, {row0*1024 + i*8192}")
            a(f"buffer_load_dwordx4 {vr(vWB+16*b+4*i,4)}, v{bD2}, {sr}, {s_t0} offen"); vm.issue(("D", b))
    def convert(b):
        vm.wait(("D", b))
        for i in range(4): a(f"ds_write_b128 v{bCR}, {vr(vWB+16*b+4*i,4)} offset:{rslot(b) + i*1024}")
        for f in Trp(b): f()
        lg.wait(("T", b))
    def nonce0():
        a(f"s_cmp_eq_u32 {s_g}, 0\ns_cbranch_scc0 B_t0")
        nonce_load()
        a("B_t0:")
    def touch():
        a(f"""
        v_lshlrev_b32 v{bT+8}, 7, v1
        s_cmp_eq_u32 {s_g}, 1
        s_cbranch_scc0 B_t2
        s_mul_i32 {s_t1}, s2, {56*128}
        s_mov_b32 exec_hi, 0xffffff
        buffer_load_dword v{bT+6}, v{bT+8}, {sW2}, {s_t1} offen
        s_branch B_t3
        B_t2:
        s_cmp_eq_u32 {s_g}, 2
        s_cbranch_scc0 B_t3
        s_lshl_b32 {s_t0}, s2, 11
        s_mov_b64 exec, 0xffff
        buffer_load_dword v{bT+6}, v{bT+8}, {sWO}, {s_t0} offen
        B_t3:
        s_mov_b64 exec, -1
        """)
    def htouch():
        a(f"""
        s_cmp_eq_u32 {s_type}, 0
        s_cbranch_scc1 B_ht
        v_and_b32 v{bT+8}, 31, v1
        v_lshlrev_b32 v{bT+8}, 7, v{bT+8}
        v_lshrrev_b32 v{bT+7}, 5, v1
        v_lshl_or_b32 v{bT+7}, v{bT+7}, 14, v{bT+8}
        s_andn2_b32 {s_t0}, {s_hst}, 0x400
        buffer_load_dword v{bT+6}, v{bT+7}, {sWS}, {s_t0} offen
        s_add_u32 {s_t0}, {s_t0}, 32768
        s_mov_b32 exec_hi, 0
        buffer_load_dword v{bT+6}, v{bT+8}, {sWS}, {s_t0} offen
        v_and_b32 v{bT+7}, 0x400, v{bT+8}
        v_add_u32 v{bT+8}, v{bT+8}, v{bT+7}
        s_add_u32 {s_t0}, {s_hs6}, 49152
        s_mov_b64 exec, 0xffff
        buffer_load_dword v{bT+6}, v{bT+8}, {sWS}, {s_t0} offen
        s_mov_b64 exec, -1
        B_ht:
        """)
    nr = 0
    QUOTA = {0: [14, 15, 15, 12, 12, 12], 1: [14, 15, 12, 13, 13, 13], 2: [12, 14, 13, 14, 13, 14], 3: [16, 16, 12, 12, 12, 12]}[OPT.get('qt', 0)]
    for s in range(7):
        ex = []
        if s in {0: (), 1: (2, 6), 2: (6,)}[int(OPT.get("vw", 0))]: vm.wait_all()
        if s == 2: cs_write(); nonce_head()
        if s == 6: handover()
        if s < 6:
            issue(1, s)
            if s < 2: cs_read(s); ex = cs_ops(s)
            if s == 3: pub_stats_pre(); ex = pub_cs_ops() + [pub_stats]
            for k in range(1, QUOTA[s]):
                issue(1, s)
                if (k >= 2 or s == 3) and ex: emit(a, ex.pop(0))
                if s in (4, 5) and k == 8: spf(14)
            assert not ex and (not pieces or pieces[0][0] > s + 1)
        else:
            assert not pieces
            d6 = Dp(0) + Dp(1) + Dp(2)
            for f in d6[:OPT.get("n6", 12)]: f()
        if s == 0: nonce0()
        if s == OPT['w2touch']: touch()
        if s == OPT.get('ht', -1): htouch()
        if s == 4: fetch()
        if s < 6 and s >= 6 - NRAW: raw(nr); nr += 1
        vm.wait(("U", s + 1))
        if lg.q: lg.wait_all()
        if s in (1, 3, 4, 5, 6) or (s == 2 and OPT.get("sp2")): spf(14)
        a("s_barrier")
        stamp(a, 3 + s, 1)
        if s == 3: stamp(a, 3)
        if s == 6: stamp(a, 4)
    for f in d6[OPT.get("n6", 12):]: f()
    if NRAW:
        a(f"v_add_u32 v{bCR}, {s_ring}, v{vLN16}")
        for b in range(NRAW): convert(b)
        for f in Dp(NRAW + 2): f()
    GR = {0: 0x00f0, 4: 0x0f00, 8: 0xf000, 14: 0x000f}
    s_ok, s_pend = s_t2, s_t3
    LD = (f"v_mov_b32 v{bF}, 0\nv_mov_b32 v{bF+1}, 0\ns_mov_b64 exec, 0xffff\n"
          f"buffer_atomic_or_x2 {vr(bF,2)}, v{bFA}, {sWS}, {s_fst} offen sc0 sc1\ns_mov_b64 exec, -1")
    issued = [0]; _iss = vm.issue
    def cnt_issue(tag): issued[0] += 1; _iss(tag)
    vm.issue = cnt_issue
    mark = {}
    def do_poll(b):
        if b not in GR: return
        if b == 0: a(f"s_mov_b32 {s_ok}, 0")
        if b == 0 and OPT.get("pl"):
            a(f"""
            s_cmp_eq_u32 {s_type}, 0
            s_cbranch_scc1 P2a0
            buffer_load_dwordx2 {vr(bF,2)}, v{bFA}, {sWS}, {s_fst} offen sc1
            s_branch P2p0
            P2a0:
            """)
        a(f"""
        s_andn2_b32 s3, {hex(GR[b])}, {s_ok}
        s_cbranch_scc0 P2p{b}
        {LD}
        P2p{b}:
        """)
        mark[b] = issued[0]
    def ensure(b):
        a(f"""
        s_andn2_b32 s3, {hex(GR[b])}, {s_ok}
        s_cbranch_scc0 P2k{b}
        s_waitcnt vmcnt({issued[0] - mark[b]})
        s_mov_b32 {s_spin}, 0
        P2c{b}:
        v_cmp_eq_u32 vcc, {s_n0}, v{bF}
        v_cmp_eq_u32 s[4:5], {s_n1}, v{bF+1}
        s_and_b32 {s_ok}, vcc_lo, s4
        s_andn2_b32 s3, {hex(GR[b])}, {s_ok}
        s_cbranch_scc0 P2k{b}
        s_add_u32 {s_spin}, {s_spin}, 1
        """)
        if OPT["diag"]:
            sh = 16 if b == 0 else (20 if b < 8 else (24 if b < 14 else 28))
            a(f"s_bitset1_b32 s101, {sh}")
        a(f"""
        s_cmp_ge_u32 {s_spin}, {SPIN_MAX}
        s_cbranch_scc1 P2k{b}
        s_sleep 1
        s_nop 7
        {LD}
        s_waitcnt vmcnt(0)
        s_branch P2c{b}
        P2k{b}:
        """)
    def Hp(b):
        if b >= 18: return []
        ps = []
        for f in range(2):
            for tg in range(2):
                def g(f=f, tg=tg):
                    if f == 0 and tg == 0:
                        if b in GR: ensure(b)
                        if OPT.get("fakeh"): a(f"s_add_u32 {s_t1}, {s_hld}, {(b%3)*4096}")
                        elif OPT.get("perm"):
                            b0 = (b & ~3) if b < 12 else (12 if b < 14 else 14)
                            a(f"s_xor_b32 s3, {s_lam}, {b-b0}\n" + (f"s_and_b32 s3, s3, 1\n" if b0 == 12 else "") +
                              f"s_lshl_b32 s3, s3, 12\ns_add_u32 s3, s3, {b0*4096}\ns_add_u32 {s_t1}, {s_hld}, s3")
                        else: a(f"s_add_u32 {s_t1}, {s_hld}, {b*4096}")
                    d = vHB + (b % HB)*16 + (f*2 + tg)*4
                    a(f"buffer_load_dwordx4 {vr(d,4)}, v{bH[tg]}, {sWS}, {s_t1} offen offset:{f*2048} sc1"); vm.issue(("H", b, f, tg))
                ps.append(g)
        return ps
    def Mp(b):
        ps = []
        for f in range(2):
            for nu in range(2):
                for tg in range(2):
                    def g(f=f, nu=nu, tg=tg):
                        lg.wait(("T", b)); vm.wait(("H", b, f, tg))
                        acc = vA + (nu*2 + tg)*16
                        c = "0" if (b == 0 and f == 0) else vr(acc, 16)
                        if not (OPT.get("nom2") and (nu or tg)): a(f"{MF} {vr(acc,16)}, {vr(vWB+(b%WB)*16+(f*2+nu)*4,4)}, {vr(vHB+(b%HB)*16+(f*2+tg)*4,4)}, {c}")
                    ps.append(g)
        return ps
    st = dict(d=3, t=0)
    def Dn():
        b = st["d"]; st["d"] += 1; rslot(b); return Dp(b)
    def Tn():
        b = st["t"]; st["t"] += 1; assert b < st["d"]; return b, Trp(b)
    def release(b):
        lg.wait(("T", b)); free.append(slot_of[b])
    def round_():
        b, ts = Tn()
        for f in ts: f()
        release(b)
        for f in Dn(): f()
    for _ in range(OPT.get("npre", 4)): round_()
    stamp(a, 5)
    lds_spin(a, bHI, bT, C_FRE, "B_f9"); lg.q = []
    free.extend([0, 4096, 8192])
    for _ in range(OPT.get("nlow", 3)):
        for f in Dn(): f()
    stamp(a, 6)
    done = []
    while st["t"] < min(8, st["d"]):
        b, ts = Tn(); done.append(b)
        for f in ts: f()
    for b in done: release(b)
    PO = OPT.get("po", 0)
    HF = OPT.get("hf", 0)
    if HF == 1: do_poll(0)
    if OPT["quiet"]:
        a(f"s_cmp_eq_u32 {s_type}, 0\ns_cbranch_scc1 B_qk")
        lds_spin(a, bHI, bT, C_ST, "B_q")
    stamp(a, 7)
    if HF:
        if HF == 2:
            do_poll(0)
            for _ in range(PO):
                for f in Dn(): f()
        for f in Hp(0) + Hp(1) + Hp(2): f()
        stamp(a, 10)
        for k in range(OPT["npost"] - (PO if HF == 2 else 0)):
            for f in Dn(): f()
    else:
        for k in range(OPT.get("npost", 2)):
            if k == PO: do_poll(0)
            for f in Dn(): f()
        if PO >= OPT.get("npost", 2): do_poll(0)
        stamp(a, 10)
        for f in Hp(0) + Hp(1) + Hp(2): f()
    stamp(a, 11)
    carry = []; dit = {b: -9 for b in range(st["d"])}; pend = None
    for b in range(18):
        ms = Mp(b)
        assert st["t"] > b
        rel = pend; pend = None
        ds = []
        if st["d"] < 18 and (free or rel is not None):
            ds = "go"
        ts = []
        if st["t"] < 18 and st["t"] <= b + 7 and st["t"] < st["d"] and dit[st["t"]] <= b - OPT.get("dlag", 3):
            tb, ts = Tn(); pend = tb
        do_poll(b + 4)
        hs = Hp(b + 3)
        if b == 16:
            a(f"""
            v_lshrrev_b32 v2, 5, v1
            v_lshlrev_b32 v2, 7, v2
            v_xor_b32 v2, v2, v{vLN16}
            v_add_u32 v2, {s_ring}, v2
            v_xor_b32 v3, 64, v2
            """)
        if b == 17 and OPT.get("lt", 1):
            assert not ts and not ds and not carry
            def wr(sg):
                for j in range(4):
                    a(f"ds_write_b128 v{2 + (j >> 1)}, {vr(vA+16*sg+4*j,4)} offset:{(sg*4096 if sg < 3 else RHI) + j*1024}")
            for sg in range(4):
                ms[sg](); ms[4 + sg]()
                if sg >= 2: wr(sg - 2)
            wr(2); wr(3)
            continue
        for i in range(8):
            ms[i]()
            if i < 2 and carry: carry.pop(0)()
            if i == 0:
                if rel is not None: release(rel)
                if ds: dit[st["d"]] = b; ds = Dn()
            if i < 4:
                if ds: ds[i]()
            else:
                if ts: ts[i-4]()
                if i < 6 and hs: hs[i-4]()
        carry = hs[2:]
        if b == 7: stamp(a, 12)
    assert st["t"] == 18 and st["d"] == 18
    stamp(a, 13); stamp(a, 3, 6)
    if not OPT.get("lt", 1):
        for sg in range(4):
            for j in range(4):
                a(f"ds_write_b128 v{2 + (j >> 1)}, {vr(vA+16*sg+4*j,4)} offset:{(sg*4096 if sg < 3 else RHI) + j*1024}")
    a("s_branch L_fin")
    a(f"""
    L_finA:
    s_and_b32 {s_rb2}, s2, 7
    s_lshl_b32 {s_rb2}, {s_rb2}, 2
    s_bfe_u32 s3, s2, 0x20003
    s_add_u32 {s_rb2}, {s_rb2}, s3
    s_lshr_b32 {s_cb}, s2, 5
    L_fin:
    v_lshrrev_b32 v13, 3, v1
    v_and_b32 v14, 7, v1
    s_lshl_b32 {s_t0}, {s_rb2}, 6
    s_lshl_b32 {s_t1}, {s_w}, 3
    s_add_u32 {s_t0}, {s_t0}, {s_t1}
    s_lshl_b32 {s_t0}, {s_t0}, 10
    s_lshl_b32 {s_t2}, {s_cb}, 7
    s_add_u32 {s_t0}, {s_t0}, {s_t2}
    v_lshlrev_b32 v12, 4, v14
    v_lshl_or_b32 v12, v13, 10, v12
    s_and_b32 {s_t1}, {s_t1}, 31
    v_add_u32 v13, {s_t1}, v13
    v_and_b32 v15, 3, v14
    v_lshlrev_b32 v4, 2, v15
    v_xor_b32 v13, v13, v4
    v_lshlrev_b32 v13, 4, v13
    v_lshrrev_b32 v4, 1, v15
    v_lshl_or_b32 v13, v4, 9, v13
    v_and_b32 v4, 1, v15
    v_lshl_or_b32 v13, v4, 11, v13
    v_lshrrev_b32 v14, 2, v14
    s_lshr_b32 {s_t1}, {s_w}, 2
    v_lshl_or_b32 v14, v14, 1, {s_t1}
    v_mov_b32 v15, {RHI}
    """)
    for q in range(4):
        a(f"""
        v_xor_b32 v4, {q}, v14
        v_cmp_eq_u32 vcc, 3, v4
        v_lshlrev_b32 v4, 12, v4
        v_add_u32 v5, {L_RING + q*12288}, v13
        v_cndmask_b32 v4, v4, v15, vcc
        v_add_u32 v{8+q}, v4, v5
        """)
    Dd = 64; XR = 96
    a(f"""
    s_lshl_b32 {s_t1}, {s_g}, 10
    s_add_u32 {s_t1}, {s_t1}, {L_CS}
    v_add_u32 v5, {s_t1}, v{vLN16}
    s_cmp_ge_u32 {s_w}, 4
    s_cbranch_scc1 L_fb
    s_add_u32 {s_t1}, {s_t0}, 0x8000
    buffer_load_dwordx4 {vr(XR+4,4)}, v12, {sX}, {s_t1} offen
    buffer_load_dwordx4 {vr(XR,4)}, v12, {sX}, {s_t0} offen
    """)
    lds_spin(a, aHI, 16, C_FRE, "L_ff")
    a(f"""
    s_waitcnt vmcnt(1)
    ds_write_b128 v5, {vr(XR+4,4)}
    s_waitcnt vmcnt(0) lgkmcnt(0)
    s_barrier
    s_branch L_fc
    L_fb:
    s_waitcnt lgkmcnt(0)
    s_barrier
    ds_read_b128 {vr(XR,4)}, v5
    L_fc:
    """)
    lg.q = []
    for q in range(4):
        for jj in range(2):
            a(f"ds_read_b128 {vr(Dd+8*q+4*jj,4)}, v{8+q} offset:{jj*1024}"); lg.issue(("F", q))
    lg.wait(("F", 0))
    for i in range(4):
        a(f"v_lshlrev_b32 v{XR+8+2*i}, 16, v{XR+i}\nv_and_b32 v{XR+9+2*i}, 0xffff0000, v{XR+i}")
    for j in range(0, 8, 2): a(f"v_pk_add_f32 {vr(Dd+j,2)}, {vr(Dd+j,2)}, {vr(XR+8+j,2)}")
    lg.wait(("F", 1))
    for j in range(0, 8, 2): a(f"v_pk_add_f32 {vr(Dd+j,2)}, {vr(Dd+j,2)}, {vr(Dd+8+j,2)}")
    lg.wait(("F", 3))
    for j in range(0, 8, 2): a(f"v_pk_add_f32 {vr(Dd+16+j,2)}, {vr(Dd+16+j,2)}, {vr(Dd+24+j,2)}")
    for j in range(0, 8, 2): a(f"v_pk_add_f32 {vr(Dd+j,2)}, {vr(Dd+j,2)}, {vr(Dd+16+j,2)}")
    for j in range(4): a(f"v_cvt_pk_bf16_f32 v{Dd+8+j}, v{Dd+2*j}, v{Dd+2*j+1}")
    OF = {0: '', 1: 'sc1', 2: 'nt', 3: 'sc0 sc1'}[OPT.get('of', 0)]
    a(f"buffer_store_dwordx4 {vr(Dd+8,4)}, v12, {sOUT}, {s_t0} offen {OF}")
    endpgm(a)

def build():
    a = Asm()
    prologue(a)
    waveA_setup(a)
    waveA(a, False, "M_")
    a("L_A_att:")
    waveA(a, True, "T_")
    waveB(a)
    a("L_done:\ns_endpgm\nL_codeend:")
    body = "\n".join(hazard.fix(a.lines)) + "\n"
    return single(body, 256, 512, 163840)

if __name__ == "__main__":
    out = sys.argv[1]
    for arg in sys.argv[2:]:
        if "=" in arg:
            k, v = arg.split("="); OPT[k] = int(v)
        else: OPT[arg] = True
    open(out, "w").write(build())
```

```python
import sys
from asmlib import *
import hazard
N="parallel_sum__sliding_local_dilated__dense_activation_silu__prompt_kernel"
HDRK = """
    s_cmp_ge_u32 s2, 1
    s_cbranch_scc1 {p}_done
    s_memrealtime s[30:31]
    s_load_dwordx2 s[4:5], s[0:1], 64
    s_waitcnt lgkmcnt(0)
    s_mov_b32 s8, s4
    s_mov_b32 s9, s5
    s_mov_b32 s10, 0x1000000
    s_mov_b32 s11, 0x20000
"""
def k0():
    a = Asm(); a(HDRK.format(p="Z"))
    a("""
    s_memrealtime s[30:31]
    s_waitcnt lgkmcnt(0)
    v_mov_b32 v1, s30
    v_mov_b32 v2, 0
    s_mov_b32 s12, 0xB00000
    buffer_store_dword v1, v2, s[8:11], s12 offen
    Z_done:
    s_endpgm
    """)
    return "\n".join(hazard.fix(a.lines)) + "\n"
def reader(mode, K):
    a = Asm(); a(HDRK.format(p="R"))
    idx, op = (15, "min") if mode == "pre" else (16, "max")
    a("s_mov_b32 s12, 0xA00000\nv_lshlrev_b32 v1, 12, v0\nv_mov_b32 v2, 0\ns_mov_b32 s13, 0xB00000\nbuffer_load_dword v9, v2, s[8:11], s13 offen")
    n = 0
    for k in range(4):
        for w in range(8):
            a(f"buffer_load_dword v{20+n}, v1, s[8:11], s12 offen offset:{k*1024 + w*128 + 4*idx}"); n += 1
    a("s_waitcnt vmcnt(0)\nv_readfirstlane_b32 s14, v9")
    for k in range(n): a(f"v_subrev_u32 v{20+k}, s14, v{20+k}")
    for k in range(1, n): a(f"v_{op}_u32 v20, v20, v{20+k}")
    if op == "min": a("v_not_b32 v20, v20")
    for sh in (1, 2, 4, 8): a(f"v_max_u32_dpp v20, v20, v20 row_shr:{sh} row_mask:0xf bank_mask:0xf bound_ctrl:0")
    a("v_max_u32_dpp v20, v20, v20 row_bcast:15 row_mask:0xa bank_mask:0xf\nv_max_u32_dpp v20, v20, v20 row_bcast:31 row_mask:0xc bank_mask:0xf\nv_readlane_b32 s20, v20, 63")
    if op == "min": a("s_not_b32 s20, s20")
    else: a("s_sub_u32 s21, s30, s14\ns_sub_u32 s20, s21, s20")
    a(f"""
    s_min_u32 s20, s20, 0x1000
    s_mul_i32 s20, s20, {K}
    s_add_u32 s20, s20, 500
    s_memrealtime s[22:23]
    s_waitcnt lgkmcnt(0)
    R_l:
    s_memrealtime s[24:25]
    s_waitcnt lgkmcnt(0)
    s_sub_u32 s26, s24, s22
    s_cmp_lt_u32 s26, s20
    s_cbranch_scc1 R_l
    R_done:
    s_endpgm
    """)
    return "\n".join(hazard.fix(a.lines)) + "\n"
s = open(sys.argv[1]).read()
L="; @launch grid=(256,1,1) block=(512,1,1) lds=163840\n"
one=f"; @launch kernel={N} grid=(256,1,1) block=(512,1,1) lds=163840\n"
for name, mode, K in [("b", "pre", 0), ("pre", "pre", 8), ("post", "post", 8)]:
    e0="; @launch kernel=zz_kernel grid=(1,1,1) block=(64,1,1) lds=0\n"
    e="; @launch kernel=rdr_kernel grid=(1,1,1) block=(64,1,1) lds=0\n"
    t=s.replace(L, e0+one+e).replace('.section .rodata,"a"\n', kernel_wrap("zz_kernel", k0())+kernel_wrap("rdr_kernel", reader(mode, K))+'.section .rodata,"a"\n')+kd("rdr_kernel", 64, 40, 64)+kd("zz_kernel", 8, 40, 8)
    open(f"pz_{name}.s","w").write(t)
```
